```python
import torch

def _softmax(x, axis=-1):
    return torch.softmax(x, dim=axis)
def _gelu(x):
    return torch.nn.functional.gelu(x, approximate="tanh")
def _silu(x):
    return torch.nn.functional.silu(x)
def _sigmoid(x):
    return torch.sigmoid(x)
def _layernorm(x, axis=-1, eps=1e-5):
    m = x.mean(dim=axis, keepdim=True)
    v = x.var(dim=axis, keepdim=True, unbiased=False)
    return (x - m) / torch.sqrt(v + eps)
def _scatter_add(tgt, idx, src, axis=0):
    return tgt.clone().index_add_(axis, idx, src)
def _segment_sum(src, seg, n):
    out = torch.zeros((n,) + src.shape[1:], dtype=src.dtype)
    return out.index_add_(0, seg, src)
def _pad(x, pw):
    flat = tuple(v for pair in reversed(pw) for v in pair)
    return torch.nn.functional.pad(x, flat)

kernel_name = 'gated_mix__grouped_kv_mqa__dense_activation_relu__prompt'

def setup_inputs():

    _w = (lambda a: (lambda t: t.to(torch.bfloat16) if t.is_floating_point() else t)(torch.as_tensor(a)))
    def _A_setup():
        B, S, D, H = 1, 2048, 512, 32
        Dh = D // H
        return {
            "x": _w((lambda *s: torch.randn(*s, dtype=torch.bfloat16) * 0.05)(B, S, D)),
            "wq": _w((lambda *s: torch.randn(*s, dtype=torch.bfloat16) * 0.8)(D, H * Dh)),
            "wk": _w((lambda *s: torch.randn(*s, dtype=torch.bfloat16) * 0.8)(D, Dh)),
            "wv": _w((lambda *s: torch.randn(*s, dtype=torch.bfloat16) * 0.2)(D, Dh)),
            "wo": _w((lambda *s: torch.randn(*s, dtype=torch.bfloat16) * 0.2)(H * Dh, D)),
        }
    _A_in = _A_setup()

    def _B_setup():
        B, S, D, Dff = 1, 2048, 512, 1792
        return {
            "x": _w((lambda *s: torch.randn(*s, dtype=torch.bfloat16) * 0.05)(B, S, D)),
            "w1": _w((lambda *s: torch.randn(*s, dtype=torch.bfloat16) * 0.05)(D, Dff)),
            "w2": _w((lambda *s: torch.randn(*s, dtype=torch.bfloat16) * 0.05)(Dff, D)),
        }
    _B_in = _B_setup()

    return {
        "A_x": _A_in["x"],
        "A_wq": _A_in["wq"],
        "A_wk": _A_in["wk"],
        "A_wv": _A_in["wv"],
        "A_wo": _A_in["wo"],
        "B_x": _B_in["x"],
        "B_w1": _B_in["w1"],
        "B_w2": _B_in["w2"],
        "gate_w": _w((lambda *s: torch.randn(*s, dtype=torch.bfloat16) * 0.05)(512) * 16.0),
    }

def reference(A_x, A_wq, A_wk, A_wv, A_wo, B_x, B_w1, B_w2, gate_w):
    def _A_ref(x, wq, wk, wv, wo):
        B, S, D = x.shape
        H = 32
        Dh = D // H
        q = (lambda x, *d: x.permute(*d))((x @ wq).reshape(B, S, H, Dh), 0, 2, 1, 3)
        k = x @ wk
        v = x @ wv
        scores = torch.einsum("bhqd,bkd->bhqk", q, k) * (Dh ** -0.5)
        p = _softmax(scores, axis=-1)
        o = torch.einsum("bhqk,bkd->bhqd", p, v)
        return (lambda x, *d: x.permute(*d))(o, 0, 2, 1, 3).reshape(B, S, H * Dh) @ wo

    def _B_ref(x, w1, w2):
        h = torch.einsum("bsd,df->bsf", x, w1)
        zero = torch.zeros_like(h)
        h = torch.maximum(h, zero)
        return torch.einsum("bsf,fd->bsd", h, w2)

    x = A_x
    g = _sigmoid((x * gate_w).sum(-1, keepdims=True))
    a = _A_ref(x, A_wq, A_wk, A_wv, A_wo)
    b = _B_ref(x, B_w1, B_w2)
    return g * a + (1 - g) * b
```

```python
import re

REG_RE = re.compile(r'\b([vas])(?:(\d+)|\[(\d+):(\d+)\])')

def regs_of(tok):
    out = set()
    for m in REG_RE.finditer(tok):
        k = m.group(1)
        if m.group(2) is not None:
            out.add((k, int(m.group(2))))
        else:
            for i in range(int(m.group(3)), int(m.group(4)) + 1):
                out.add((k, i))
    if re.search(r'\bvcc\b', tok):
        out.add(('s', 106)); out.add(('s', 107))
    if re.search(r'\bvcc_lo\b', tok): out.add(('s', 106))
    if re.search(r'\bvcc_hi\b', tok): out.add(('s', 107))
    if re.search(r'\bm0\b', tok): out.add(('m', 0))
    if re.search(r'\bexec\b', tok): out.add(('e', 0))
    return out

TRANS = ('v_exp_', 'v_log_', 'v_rcp_', 'v_rsq_', 'v_sqrt_', 'v_sin_', 'v_cos_')

class Ins:
    __slots__ = ('text', 'op', 'ops', 'kind', 'wr', 'rd', 'passes', 'cregs', 'ab', 'label', 'target', 'mods', 'nop')
    def __init__(self, text):
        self.text = text
        self.label = None
        self.target = None
        self.wr = set(); self.rd = set(); self.cregs = set(); self.ab = set()
        self.passes = 0
        self.nop = 1
        t = text.split(';')[0].strip()
        if t.endswith(':'):
            self.kind = 'label'; self.label = t[:-1]; self.op = ''; self.ops = []; self.mods = ''; self.nop = 0
            return
        if t == '' or t.startswith('.'):
            self.kind = 'dir'; self.op = ''; self.ops = []; self.mods = ''; self.nop = 0
            return
        parts = t.split(None, 1)
        self.op = op = parts[0]
        rest = parts[1] if len(parts) > 1 else ''
        ops = []; cur = ''; depth = 0
        for ch in rest:
            if ch == '[': depth += 1
            if ch == ']': depth -= 1
            if ch == ',' and depth == 0:
                ops.append(cur.strip()); cur = ''
            else:
                cur += ch
        if cur.strip(): ops.append(cur.strip())
        self.mods = ''
        if ops:
            sp = ops[-1].split(None, 1)
            if len(sp) > 1:
                ops[-1] = sp[0]; self.mods = sp[1]
        self.ops = ops
        R = [regs_of(o) for o in ops]
        if op.startswith('v_mfma'):
            self.kind = 'mfma'
            self.passes = 8 if '32x32' in op else 4
            self.wr = R[0]; self.ab = R[1] | R[2]; self.cregs = R[3]; self.rd = self.ab | self.cregs
        elif op.startswith('v_'):
            self.kind = 'valu'
            if op.startswith('v_cmp'):
                self.wr = R[0]; self.rd = set().union(*R[1:])
                if not ops[0].startswith(('vcc', 's')):
                    raise ValueError(text)
            elif op.startswith(('v_permlane32_swap', 'v_permlane16_swap', 'v_swap')):
                self.wr = R[0] | R[1]; self.rd = R[0] | R[1]
            elif op.startswith(('v_add_co', 'v_sub_co', 'v_subrev_co')):
                self.wr = R[0] | R[1]; self.rd = set().union(*R[2:])
            elif op.startswith(('v_addc_co', 'v_subb_co')):
                self.wr = R[0] | R[1]; self.rd = set().union(*R[2:])
            else:
                self.wr = R[0]; self.rd = set().union(*R[1:]) if len(R) > 1 else set()
                if op.startswith(('v_fmac', 'v_dot2c', 'v_pk_fmac', 'v_mac', 'v_writelane', 'v_dot4c')) or 'UNUSED_PRESERVE' in self.mods:
                    self.rd |= R[0]
                if op.startswith('v_cndmask') and len(ops) == 3:
                    self.rd |= {('s', 106), ('s', 107)}
        elif op.startswith('ds_'):
            self.kind = 'ds'
            if op.startswith(('ds_read', 'ds_bpermute', 'ds_permute', 'ds_swizzle')) or '_rtn' in op:
                self.wr = R[0]; self.rd = set().union(*R[1:])
            else:
                self.rd = set().union(*R)
        elif op.startswith(('buffer_', 'global_', 'flat_')):
            self.kind = 'vmem'
            isl = re.search(r'\blds\b', self.mods) is not None or '_lds_' in op
            if isl:
                self.rd = set().union(*R) | {('m', 0)}
                self.kind = 'dma'
            elif '_load' in op:
                self.wr = R[0]; self.rd = set().union(*R[1:])
                if 'd16' in op: self.rd |= R[0]
            elif 'atomic' in op:
                if re.search(r'\b(glc|sc0)\b', self.mods):
                    self.wr = R[0]; self.rd = set().union(*R[1:])
                else:
                    self.rd = set().union(*R)
            else:
                self.rd = set().union(*R)
        elif op.startswith('s_'):
            self.kind = 'salu'
            if op == 's_nop':
                self.nop = int(ops[0], 0) + 1
            elif op.startswith(('s_cbranch', 's_branch')):
                self.target = ops[0]
            elif op.startswith(('s_waitcnt', 's_barrier', 's_endpgm', 's_setprio', 's_sleep', 's_sethalt')):
                pass
            elif op.startswith('s_cmp') or op.startswith('s_bitcmp'):
                self.rd = set().union(*R)
            elif op.startswith(('s_load', 's_memtime', 's_memrealtime', 's_getpc', 's_getreg')):
                self.wr = R[0]; self.rd = set().union(*R[1:]) if len(R) > 1 else set()
            else:
                self.wr = R[0]; self.rd = set().union(*R[1:]) if len(R) > 1 else set()
                if 'saveexec' in op:
                    self.wr |= {('e', 0)}
        else:
            raise ValueError("unknown instruction: " + text)

def vg(s):
    return {r for r in s if r[0] in 'va'}
def sg(s):
    return {r for r in s if r[0] == 's'}

def required(prod, cons):
    need = 0
    pk, ck = prod.kind, cons.kind
    if pk == 'valu':
        w = vg(prod.wr)
        if ck == 'mfma' and (w & cons.rd): need = max(need, 2)
        if ck == 'valu':
            if w & cons.rd:
                if prod.op.startswith(TRANS) and not cons.op.startswith(TRANS): need = max(need, 1)
                if prod.op.startswith(TRANS): need = max(need, 1)
                if 'dpp' in cons.op or re.search(r'\b(row_|quad_perm|wave_)', cons.mods): need = max(need, 2)
                if cons.op.startswith('v_permlane'): need = max(need, 2)
                if cons.op.startswith(('v_readlane', 'v_readfirstlane')): need = max(need, 1)
                if 'op_sel' in prod.mods or 'sdwa' in prod.op or 'dst_sel' in prod.mods: need = max(need, 1)
            if (w & cons.wr) and ('op_sel' in prod.mods or 'dst_sel' in prod.mods): need = max(need, 1)
        ws = sg(prod.wr)
        if ws:
            if ck == 'valu' and (ws & cons.rd): need = max(need, 4 if cons.op.startswith(('v_readlane', 'v_writelane')) else 2)
            if ck in ('vmem', 'dma') and (ws & cons.rd): need = max(need, 5)
            if ck == 'mfma' and (ws & cons.rd): need = max(need, 2)
        if ('e', 0) in prod.wr:
            need = max(need, 5)
        if prod.op.startswith(TRANS) and ck in ('ds', 'vmem', 'dma') and (w & cons.rd): need = max(need, 1)
    if pk == 'mfma':
        d = prod.wr
        p8 = prod.passes == 8
        if ck == 'mfma':
            if d & cons.cregs:
                if cons.cregs == d and cons.passes == prod.passes: pass
                else: need = max(need, 10 if p8 else 6)
            if d & cons.ab: need = max(need, 12 if p8 else 8)
            if (d & cons.wr) and not (cons.cregs == d and cons.wr == d):
                need = max(need, 12 if p8 else 8)
        elif ck in ('valu', 'ds', 'vmem', 'dma'):
            if d & (cons.rd | cons.wr): need = max(need, 12 if p8 else 8)
            if ck == 'valu' and (prod.cregs & cons.wr): need = max(need, 7 if p8 else 3)
            if ck in ('ds', 'vmem') and (prod.cregs & cons.wr): need = max(need, 7 if p8 else 3)
    if pk == 'salu':
        if ('m', 0) in prod.wr and (ck == 'dma' or ('m', 0) in cons.rd): need = max(need, 1)
    if pk == 'vmem' and ('store' in prod.op or 'atomic' in prod.op) and re.search(r'x[34]\b', prod.op):
        if vg(prod.rd) & cons.wr:
            need = max(need, 2)
    if pk == 'ds' and prod.op.startswith('ds_write') and re.search(r'b(96|128)\b', prod.op):
        if vg(prod.rd) & cons.wr: need = max(need, 2)
    return need

MAXD = 20

class Asm:
    def __init__(self):
        self.ins = []
    def __call__(self, s, *a):
        for line in s.split('\n'):
            if line.strip():
                self.ins.append(Ins(line.strip()))
    def label(self, l):
        self.ins.append(Ins(l + ':'))
    def comment(self, c):
        self.ins.append(Ins('; ' + c)) if False else None
    def fix(self):
        ins = self.ins
        total = 0
        TERM = ('s_branch', 's_endpgm', 's_setpc_b64')
        i = 0
        def build():
            jumps = {}
            for k, x in enumerate(ins):
                if x.target is not None:
                    jumps.setdefault(x.target, []).append(k)
            return jumps
        jumps = build()
        while i < len(ins):
            c = ins[i]
            if c.kind in ('label', 'dir') or (c.kind == 'salu'):
                i += 1
                continue
            need = 0
            stack = []
            if i > 0 and ins[i - 1].op not in TERM:
                stack.append((i - 1, 0))
            seen = {}
            while stack:
                j, dist = stack.pop()
                while j >= 0 and dist < MAXD:
                    if seen.get(j, 99) <= dist: break
                    seen[j] = dist
                    p = ins[j]
                    if p.kind == 'label':
                        for b in jumps.get(p.label, []):
                            stack.append((b, dist))
                    elif p.kind != 'dir':
                        r = required(p, c)
                        if r > dist: need = max(need, r - dist)
                        dist += p.nop
                    j -= 1
                    if j >= 0 and ins[j].op in TERM:
                        break
            if need > 0:
                k = need
                while k > 0:
                    q = min(k, 16)
                    ins.insert(i, Ins(f's_nop {q-1}'))
                    k -= q
                    total += 1
                    i += 1
                jumps = build()
            i += 1
        return total
    def text(self):
        out = []
        for x in self.ins:
            if x.kind == 'label': out.append(x.text)
            else: out.append('  ' + x.text)
        return '\n'.join(out) + '\n'
```

```python
import sys, os
sys.path.insert(0, os.path.dirname(os.path.abspath(__file__)))
from asmlib import Asm

NAME = "gated_mix__grouped_kv_mqa__dense_activation_relu__prompt"
OUT = f"cdna_kernels/{NAME}.s"

WS_Q    = 0x000000
WS_KF   = 0x200000
WS_VF   = 0x210000
WS_G    = 0x220000
WS_KMAX = 0x222000
WS_CNT  = 0x223000
WS_HF   = 0x300000
WS_W2F  = 0xA00000
WS_WOF  = 0xC00000
WS_OF   = 0xD00000
WS_SIZE = 0x1000000

QSCALE = 0.25 * 1.4426950408889634

def f32hex(x):
    import struct
    return "0x%08x" % struct.unpack('<I', struct.pack('<f', x))[0]

def srd(a, base, ptr, size):
    a(f"s_mov_b32 s{base}, s{ptr}")
    a(f"s_mov_b32 s{base+1}, s{ptr+1}")
    a(f"s_mov_b32 s{base+2}, {size}")
    a(f"s_mov_b32 s{base+3}, 0x00020000")

def kernel_header(name):
    return (f".globl {name}\n.p2align 8\n.type {name},@function\n")

def kernel_desc(name, vgpr, accum, sgpr=102):
    return f""".p2align 6
.amdhsa_kernel {name}
  .amdhsa_next_free_vgpr {vgpr}
  .amdhsa_next_free_sgpr {sgpr}
  .amdhsa_accum_offset {accum}
  .amdhsa_group_segment_fixed_size 0
  .amdhsa_kernarg_size 96
  .amdhsa_user_sgpr_count 2
  .amdhsa_user_sgpr_kernarg_segment_ptr 1
  .amdhsa_system_sgpr_workgroup_id_x 1
.end_amdhsa_kernel
"""

def gen_k1(name):
    a = Asm()
    a.label(name)
    HIMG, QIMG, EIMG = 0, 114688, 147456
    sX, sW1, sWQ, sKV, sWS, sTR = 36, 40, 44, 48, 52, 56
    sTB, sNB, sW, sM0H, sM0Q, sT0, sT1, sTYPE, sSEL = 60, 61, 62, 63, 64, 65, 69, 68, 70
    sMASK = 66
    vLane, vTok, vG4 = 1, 2, 3
    vXo0, vXo1, vHsrc, vQsrc, vHa0, vHa1, vQa0, vQa1, vEa = 4, 5, 6, 7, 8, 9, 10, 11, 12
    vT = [13, 14, 15, 16, 17, 18, 19, 20]
    ACC = 32
    def acc(ct, tt): return ACC + (ct * 2 + tt) * 4
    ACCE = ACC + 72
    WF = 108
    def wf(buf, ct): return WF + (buf * 10 + ct) * 4
    TRV = 188
    def xr(tt, ks): return (tt * 16 + ks) * 4

    a("s_cmp_ge_u32 s2, 256")
    a("s_cbranch_scc1 K1_END")
    a("s_load_dwordx16 s[16:31], s[0:1], 0")
    a("s_load_dwordx2 s[32:33], s[0:1], 64")
    a("s_load_dwordx2 s[34:35], s[0:1], 88")
    a(f"s_and_b32 s{sTB}, s2, 3")
    a(f"s_lshr_b32 s{sT0}, s2, 3")
    a(f"s_and_b32 s{sT0}, s{sT0}, 3")
    a(f"s_lshl_b32 s{sT0}, s{sT0}, 2")
    a(f"s_or_b32 s{sTB}, s{sTB}, s{sT0}")
    a(f"s_lshr_b32 s{sNB}, s2, 2")
    a(f"s_and_b32 s{sNB}, s{sNB}, 1")
    a(f"s_lshr_b32 s{sT0}, s2, 5")
    a(f"s_lshl_b32 s{sT0}, s{sT0}, 1")
    a(f"s_or_b32 s{sNB}, s{sNB}, s{sT0}")
    a(f"s_lshr_b32 s{sTYPE}, s{sNB}, 1")
    a(f"s_and_b32 s{sSEL}, s{sNB}, 1")
    a(f"v_lshrrev_b32 v{vT[0]}, 6, v0")
    a(f"v_and_b32 v{vLane}, 63, v0")
    a(f"v_readfirstlane_b32 s{sW}, v{vT[0]}")
    a(f"v_and_b32 v{vTok}, 15, v{vLane}")
    a(f"v_lshrrev_b32 v{vG4}, 4, v{vLane}")
    a(f"s_mov_b32 s{sMASK}, -1")
    a(f"s_mov_b32 s{sMASK+1}, 0x00ffffff")
    a(f"s_lshl_b32 s{sT0}, s{sTB}, 7")
    a(f"s_lshl_b32 s{sT1}, s{sW}, 5")
    a(f"s_add_u32 s{sT0}, s{sT0}, s{sT1}")
    a(f"s_lshl_b32 s{sT1}, s{sSEL}, 4")
    a(f"s_add_u32 s{sT0}, s{sT0}, s{sT1}")
    a(f"v_add_u32 v{vT[0]}, s{sT0}, v{vTok}")
    a(f"v_lshlrev_b32 v{vT[0]}, 10, v{vT[0]}")
    a(f"v_lshl_add_u32 v{vXo0}, v{vG4}, 4, v{vT[0]}")
    a(f"v_xor_b32 v{vXo1}, 0x4000, v{vXo0}")
    a(f"v_mul_u32_u24 v{vT[0]}, 4682, v{vLane}")
    a(f"v_lshrrev_b32 v{vT[0]}, 16, v{vT[0]}")
    a(f"v_mul_u32_u24 v{vT[1]}, 14, v{vT[0]}")
    a(f"v_sub_u32 v{vT[1]}, v{vLane}, v{vT[1]}")
    a(f"s_and_b32 s{sT0}, s{sW}, 1")
    a(f"s_lshl_b32 s{sT0}, s{sT0}, 1")
    a(f"s_lshr_b32 s{sT1}, s{sW}, 1")
    a(f"s_or_b32 s{sT0}, s{sT0}, s{sT1}")
    a(f"s_lshl_b32 s{sT0}, s{sT0}, 2")
    a(f"v_add_u32 v{vT[0]}, s{sT0}, v{vT[0]}")
    a(f"v_mul_u32_u24 v{vT[0]}, 3584, v{vT[0]}")
    a(f"v_lshl_add_u32 v{vT[0]}, v{vT[1]}, 4, v{vT[0]}")
    a(f"s_mul_i32 s{sT0}, s{sNB}, 224")
    a(f"v_add_u32 v{vHsrc}, s{sT0}, v{vT[0]}")
    a(f"s_mul_i32 s{sM0H}, s{sW}, 896")
    a(f"v_lshrrev_b32 v{vT[0]}, 2, v{vLane}")
    a(f"v_and_b32 v{vT[1]}, 3, v{vT[0]}")
    a(f"v_bfe_u32 v{vT[2]}, v{vT[0]}, 2, 1")
    a(f"v_bfe_u32 v{vT[3]}, v{vT[0]}, 3, 1")
    a(f"v_lshl_add_u32 v{vT[1]}, v{vT[2]}, 3, v{vT[1]}")
    a(f"v_lshl_add_u32 v{vT[1]}, v{vT[3]}, 2, v{vT[1]}")
    a(f"s_lshl_b32 s{sT0}, s{sW}, 4")
    a(f"v_add_u32 v{vT[1]}, s{sT0}, v{vT[1]}")
    a(f"v_lshlrev_b32 v{vT[1]}, 10, v{vT[1]}")
    a(f"v_and_b32 v{vT[3]}, 3, v{vLane}")
    a(f"v_lshlrev_b32 v{vT[2]}, 1, v{vT[2]}")
    a(f"v_xor_b32 v{vT[3]}, v{vT[3]}, v{vT[2]}")
    a(f"v_lshl_add_u32 v{vT[1]}, v{vT[3]}, 4, v{vT[1]}")
    a(f"s_lshl_b32 s{sT0}, s{sNB}, 6")
    a(f"v_add_u32 v{vQsrc}, s{sT0}, v{vT[1]}")
    a(f"s_lshl_b32 s{sM0Q}, s{sW}, 10")
    a(f"s_add_u32 s{sM0Q}, s{sM0Q}, {QIMG}")
    a(f"v_lshrrev_b32 v{vT[0]}, 1, v{vG4}")
    a(f"v_lshlrev_b32 v{vT[0]}, 4, v{vT[0]}")
    a(f"v_and_b32 v{vT[1]}, 1, v{vG4}")
    a(f"v_lshl_add_u32 v{vT[0]}, v{vT[1]}, 2, v{vT[0]}")
    a(f"v_lshrrev_b32 v{vT[2]}, 2, v{vTok}")
    a(f"v_add_u32 v{vT[0]}, v{vT[0]}, v{vT[2]}")
    a(f"v_and_b32 v{vT[2]}, 3, v{vTok}")
    a(f"v_lshlrev_b32 v{vT[2]}, 3, v{vT[2]}")
    a(f"v_mul_u32_u24 v{vT[3]}, 224, v{vT[0]}")
    a(f"v_add_u32 v{vHa0}, v{vT[3]}, v{vT[2]}")
    a(f"v_add_u32 v{vHa1}, 57344, v{vHa0}")
    a(f"v_lshl_add_u32 v{vT[3]}, v{vT[0]}, 6, v{vT[2]}")
    a(f"v_add_u32 v{vT[3]}, {QIMG}, v{vT[3]}")
    a(f"v_lshl_add_u32 v{vQa0}, v{vT[1]}, 5, v{vT[3]}")
    a(f"v_xor_b32 v{vQa1}, 32, v{vQa0}")
    a(f"v_lshl_add_u32 v{vT[3]}, v{vT[0]}, 5, v{vT[2]}")
    a(f"v_add_u32 v{vEa}, {EIMG}, v{vT[3]}")
    a("s_waitcnt lgkmcnt(0)")
    srd(a, sX, 16, 0x200000)
    srd(a, sW1, 28, 512 * 3584)
    srd(a, sWQ, 18, 0x80000)
    srd(a, sWS, 34, WS_SIZE)
    a(f"s_cmp_eq_u32 s{sTYPE}, 0")
    a(f"s_cselect_b32 s{sKV}, s20, s22")
    a(f"s_cselect_b32 s{sKV+1}, s21, s23")
    a(f"s_mov_b32 s{sKV+2}, 16384")
    a(f"s_mov_b32 s{sKV+3}, 0x00020000")

    vm = [0]
    a(f"s_cmp_gt_u32 s{sTYPE}, 1")
    a("s_cbranch_scc1 K1_NOKV")
    a(f"v_lshrrev_b32 v{vT[0]}, 1, v{vLane}")
    a(f"v_and_b32 v{vT[1]}, 0x13, v{vT[0]}")
    a(f"v_bfe_u32 v{vT[2]}, v{vT[0]}, 2, 1")
    a(f"v_bfe_u32 v{vT[3]}, v{vT[0]}, 3, 1")
    a(f"v_lshl_add_u32 v{vT[1]}, v{vT[2]}, 3, v{vT[1]}")
    a(f"v_lshl_add_u32 v{vT[1]}, v{vT[3]}, 2, v{vT[1]}")
    a(f"v_lshlrev_b32 v{vT[1]}, 5, v{vT[1]}")
    a(f"v_and_b32 v{vT[2]}, 1, v{vLane}")
    a(f"v_lshl_add_u32 v{vT[1]}, v{vT[2]}, 4, v{vT[1]}")
    a(f"s_lshl_b32 s{sT0}, s{sW}, 12")
    a(f"v_add_u32 v{vT[1]}, s{sT0}, v{vT[1]}")
    a(f"s_add_u32 m0, s{sT0}, {EIMG}")
    for il in range(4):
        a(f"buffer_load_dwordx4 v{vT[1]}, s[{sKV}:{sKV+3}], 0 offen offset:{il*1024} lds")
    a("s_branch K1_EDONE")
    a.label("K1_NOKV")
    a(f"s_cmp_eq_u32 s{sTYPE}, 2")
    a("s_cbranch_scc0 K1_EDONE")
    a(f"s_lshl_b32 s{sT0}, s{sW}, 7")
    a(f"v_add_u32 v{vT[4]}, s{sT0}, v{vLane}")
    a(f"v_lshlrev_b32 v{vT[5]}, 1, v{vT[4]}")
    a(f"global_load_ushort v{vT[6]}, v{vT[5]}, s[32:33]")
    a(f"global_load_ushort v{vT[7]}, v{vT[5]}, s[32:33] offset:128")
    a(f"v_and_b32 v{vT[1]}, 0xfffffff3, v{vT[4]}")
    a(f"v_bfe_u32 v{vT[2]}, v{vT[4]}, 2, 1")
    a(f"v_bfe_u32 v{vT[3]}, v{vT[4]}, 3, 1")
    a(f"v_lshl_add_u32 v{vT[1]}, v{vT[2]}, 3, v{vT[1]}")
    a(f"v_lshl_add_u32 v{vT[1]}, v{vT[3]}, 2, v{vT[1]}")
    a(f"v_lshlrev_b32 v{vT[1]}, 5, v{vT[1]}")
    a(f"v_add_u32 v{vT[1]}, {EIMG}, v{vT[1]}")
    a.label("K1_EDONE")

    def issue_chunk_ops(c):
        g = []
        for q in range(4):
            ks = 2 * c + (q >> 1)
            g.append([f"s_add_u32 m0, s{sM0H}, {(16*c+4*q)*896}",
                      f"s_mov_b32 s{sT0}, {(64*c+16*q)*3584}",
                      f"s_mov_b64 exec, s[{sMASK}:{sMASK+1}]",
                      f"buffer_load_dwordx4 v{vHsrc}, s[{sW1}:{sW1+3}], s{sT0} offen lds",
                      f"s_mov_b64 exec, -1"])
            tt = q & 1
            g.append([f"buffer_load_dwordx4 a[{xr(tt,ks)}:{xr(tt,ks)+3}], v{vXo0 if tt==0 else vXo1}, s[{sX}:{sX+3}], 0 offen offset:{ks*64}"])
            if q == 0:
                g.append([f"s_add_u32 m0, s{sM0Q}, {4*c*1024}",
                          f"s_mov_b32 s{sT1}, {64*c*1024}",
                          f"buffer_load_dwordx4 v{vQsrc}, s[{sWQ}:{sWQ+3}], s{sT1} offen lds"])
        return g

    chunk_end = {}
    def issue_group(grp):
        for l in grp: a(l)
        vm[0] += 1

    PRE = 3
    for c in range(PRE):
        for grp in issue_chunk_ops(c): issue_group(grp)
        chunk_end[c] = vm[0]
    a(f"s_cmp_eq_u32 s{sTYPE}, 2")
    a("s_cbranch_scc0 K1_NOGATE")
    a(f"s_waitcnt vmcnt({vm[0]})")
    a(f"ds_write_b16 v{vT[1]}, v{vT[6]}")
    a(f"ds_write_b16 v{vT[1]}, v{vT[7]} offset:2048")
    a.label("K1_NOGATE")
    sSrc = [72, 74, 76]
    sDst = [78, 79, 80]
    sSh1 = 81
    vN2, vTA, vTB, vL16 = 21, 22, 23, 24
    a(f"v_and_b32 v{vN2}, 31, v{vLane}")
    a(f"v_lshlrev_b32 v{vN2}, 1, v{vN2}")
    a(f"v_lshrrev_b32 v{vT[0]}, 5, v{vLane}")
    a(f"v_lshl_add_u32 v{vTA}, v{vT[0]}, 12, v{vN2}")
    a(f"v_lshlrev_b32 v{vL16}, 4, v{vLane}")
    a(f"s_mul_i32 s{sT0}, s{sNB}, 112")
    a(f"s_lshr_b32 s{sT1}, s{sW}, 1")
    a(f"s_lshl_b32 s{sT1}, s{sT1}, 5")
    a(f"s_add_u32 s{sT0}, s{sT0}, s{sT1}")
    a(f"s_and_b32 s{sT1}, s{sW}, 1")
    a(f"s_lshl_b32 s{sT1}, s{sT1}, 3")
    a(f"s_add_u32 s{sT0}, s{sT0}, s{sT1}")
    a(f"s_lshl_b32 s{sT0}, s{sT0}, 10")
    a(f"s_lshl_b32 s{sT1}, s{sTB}, 6")
    a(f"s_add_u32 s{sSrc[0]}, s{sT0}, s{sT1}")
    a(f"s_add_u32 s{sSrc[0]+1}, s{sSrc[0]}, {16*1024}")
    a(f"s_mul_i32 s{sT0}, s{sTB}, 112")
    a(f"s_mul_i32 s{sT1}, s{sNB}, 7")
    a(f"s_add_u32 s{sT0}, s{sT0}, s{sT1}")
    a(f"s_add_u32 s{sT0}, s{sT0}, s{sW}")
    a(f"s_lshl_b32 s{sT0}, s{sT0}, 10")
    a(f"s_add_u32 s{sDst[0]}, s{sT0}, {WS_W2F}")
    a(f"s_lshl_b32 s{sT0}, s{sNB}, 15")
    a(f"s_lshl_b32 s{sT1}, s{sTB}, 6")
    a(f"s_add_u32 s{sT0}, s{sT0}, s{sT1}")
    a(f"s_add_u32 s{sSrc[2]}, s{sT0}, {16*1024}")
    a(f"s_add_u32 s{sSrc[2]+1}, s{sSrc[2]}, {8*1024}")
    a(f"s_lshl_b32 s82, s{sTB}, 5")
    a(f"s_lshl_b32 s83, s{sNB}, 1")
    a(f"s_add_u32 s82, s82, s83")
    a(f"s_lshl_b32 s82, s82, 10")
    a(f"s_add_u32 s82, s82, {WS_WOF}")
    a(f"s_add_u32 s{sDst[2]}, s82, 1024")
    a(f"s_mul_i32 s84, s{sNB}, 112")
    a(f"s_lshl_b32 s85, s{sW}, 3")
    a(f"s_add_u32 s85, s85, 64")
    a(f"s_cmp_eq_u32 s{sW}, 2")
    a(f"s_cselect_b32 s85, 96, s85")
    a(f"s_mov_b32 s86, {16*1024}")
    a(f"s_cselect_b32 s86, {4*1024}, s86")
    a(f"s_cselect_b32 s{sSh1}, 13, 12")
    a(f"s_add_u32 s84, s84, s85")
    a(f"s_lshl_b32 s84, s84, 10")
    a(f"s_add_u32 s84, s84, s{sT1}")
    a(f"s_add_u32 s85, s{sDst[0]}, {4*1024}")
    a(f"s_cmp_eq_u32 s{sW}, 3")
    a(f"s_cselect_b32 s{sSrc[1]}, s{sT0}, s84")
    a(f"s_cselect_b32 s86, {8*1024}, s86")
    a(f"s_cselect_b32 s{sDst[1]}, s82, s85")
    a(f"s_cselect_b32 s{sTR}, s24, s30")
    a(f"s_cselect_b32 s{sTR+1}, s25, s31")
    a(f"s_mov_b32 s{sTR+2}, {1792*1024}")
    a(f"s_cselect_b32 s{sTR+2}, 0x80000, s{sTR+2}")
    a(f"s_mov_b32 s{sTR+3}, 0x00020000")
    a(f"s_add_u32 s{sSrc[1]+1}, s{sSrc[1]}, s86")
    a(f"v_lshlrev_b32 v{vTB}, s{sSh1}, v{vT[0]}")
    a(f"v_add_u32 v{vTB}, v{vTB}, v{vN2}")
    sW2, sWO = 88, 92
    srd(a, sW2, 30, 1792 * 1024)
    srd(a, sWO, 24, 0x80000)
    TRL = 200
    def tr_groups():
        g = []
        for slot, (sr, vo) in enumerate([(sW2, vTA), (sTR, vTB), (sWO, vTA)]):
            for j in range(8):
                g.append([f"buffer_load_ushort v{TRL+slot*8+j}, v{vo}, s[{sr}:{sr+3}], s{sSrc[slot]+(j>>2)} offen offset:{(j&3)*1024}"])
        return g
    for r in range(ACC, ACC + 76):
        a(f"v_mov_b32 v{r}, 0")

    def frag_reads(ks, buf):
        rd = []
        for ct in range(7):
            base = vHa0 if ks < 8 else vHa1
            off = (ks % 8) * 7168 + ct * 32
            for t in range(2):
                rd.append(f"ds_read_b64_tr_b16 v[{wf(buf,ct)+2*t}:{wf(buf,ct)+2*t+1}], v{base} offset:{off+t*1792}")
        for q in range(2):
            for t in range(2):
                rd.append(f"ds_read_b64_tr_b16 v[{wf(buf,7+q)+2*t}:{wf(buf,7+q)+2*t+1}], v{vQa0 if q==0 else vQa1} offset:{ks*2048+t*512}")
        for t in range(2):
            rd.append(f"ds_read_b64_tr_b16 v[{wf(buf,9)+2*t}:{wf(buf,9)+2*t+1}], v{vEa} offset:{ks*1024+t*256}")
        return rd

    def wait_chunk(c):
        n = vm[0] - chunk_end[c]
        assert n <= 63
        a(f"s_waitcnt vmcnt({n}) lgkmcnt(0)")
        a("s_barrier")

    wait_chunk(0)
    for l in frag_reads(0, 0): a(l)
    pending = []
    for ks in range(16):
        buf = ks & 1
        c = ks >> 1
        if ks % 2 == 0 and c + PRE < 8:
            pending = issue_chunk_ops(c + PRE)
            pend_chunk = c + PRE
        if ks == 10:
            pending = tr_groups()
            pend_chunk = 'tr'
        nxt = []
        if ks + 1 < 16:
            if (ks + 1) % 2 == 0:
                wait_chunk((ks + 1) // 2)
            else:
                a("s_waitcnt lgkmcnt(0)")
            nxt = frag_reads(ks + 1, buf ^ 1)
        else:
            a("s_waitcnt lgkmcnt(0)")
        mf = []
        for ct in range(9):
            for tt in range(2):
                mf.append(f"v_mfma_f32_16x16x32_bf16 v[{acc(ct,tt)}:{acc(ct,tt)+3}], v[{wf(buf,ct)}:{wf(buf,ct)+3}], a[{xr(tt,ks)}:{xr(tt,ks)+3}], v[{acc(ct,tt)}:{acc(ct,tt)+3}]")
        mf.append(f"v_mfma_f32_16x16x32_bf16 v[{ACCE}:{ACCE+3}], v[{wf(buf,9)}:{wf(buf,9)+3}], a[{xr(0,ks)}:{xr(0,ks)+3}], v[{ACCE}:{ACCE+3}]")
        for i, m in enumerate(mf):
            a(m)
            if i < 10:
                for l in nxt[2*i:2*i+2]: a(l)
            else:
                if pending and ((i - 10) % 2 == 0 or pend_chunk == 'tr'):
                    issue_group(pending.pop(0))
                    if not pending: chunk_end[pend_chunk] = vm[0]
        if ks % 2 == 1 and pend_chunk != 'tr':
            while pending:
                issue_group(pending.pop(0))
                if not pending: chunk_end[pend_chunk] = vm[0]
    assert not pending
    E = 108
    vT32 = [E, E + 1]; vHp = [E + 2, E + 3]; vHl = [E + 4, E + 5]; vQo = [E + 6, E + 7]
    D = E + 8
    a(f"s_lshl_b32 s{sT0}, s{sSEL}, 4")
    a(f"v_add_u32 v{vT32[0]}, s{sT0}, v{vTok}")
    a(f"v_xor_b32 v{vT32[1]}, 16, v{vT32[0]}")
    a(f"v_lshrrev_b32 v{D}, 1, v{vG4}")
    a(f"v_and_b32 v{D+1}, 1, v{vG4}")
    for tt in range(2):
        a(f"v_lshlrev_b32 v{D+2}, 4, v{vT32[tt]}")
        a(f"v_lshl_add_u32 v{D+3}, v{D}, 10, v{D+2}")
        a(f"v_lshl_add_u32 v{vHp[tt]}, v{D+1}, 9, v{D+3}")
        a(f"v_lshl_add_u32 v{D+3}, v{D}, 9, v{D+2}")
        a(f"v_lshl_add_u32 v{vHl[tt]}, v{D+1}, 3, v{D+3}")
        a(f"v_lshlrev_b32 v{D+3}, 3, v{vG4}")
        a(f"v_sub_u32 v{vQo[tt]}, v{vXo0 if tt==0 else vXo1}, v{D+3}")
    sH, sH2, sQd, sTK = 72, 73, 74, 75
    a(f"s_lshl_b32 s{sTK}, s{sTB}, 2")
    a(f"s_add_u32 s{sTK}, s{sTK}, s{sW}")
    a(f"s_mul_i32 s{sT0}, s{sTK}, 112")
    a(f"s_mul_i32 s{sT1}, s{sNB}, 7")
    a(f"s_add_u32 s{sT0}, s{sT0}, s{sT1}")
    a(f"s_lshl_b32 s{sT0}, s{sT0}, 10")
    a(f"s_add_u32 s{sH}, s{sT0}, {WS_HF}")
    a(f"s_add_u32 s{sH2}, s{sH}, 4096")
    a(f"s_lshl_b32 s{sQd}, s{sNB}, 6")
    if WS_Q: a(f"s_add_u32 s{sQd}, s{sQd}, {WS_Q}")
    d = D + 4
    for tt in range(2):
        for p in range(3):
            for h in range(2):
                r = acc(2*p + h, tt)
                a(f"v_cvt_pk_bf16_f32 v{d+2*h}, v{r}, v{r+1}")
                a(f"v_cvt_pk_bf16_f32 v{d+2*h+1}, v{r+2}, v{r+3}")
            for k in range(4):
                a(f"v_pk_max_i16 v{d+k}, v{d+k}, 0")
            so, off = (sH, p * 2048) if p < 2 else (sH2, 0)
            a(f"buffer_store_dwordx4 v[{d}:{d+3}], v{vHp[tt]}, s[{sWS}:{sWS+3}], s{so} offen offset:{off}")
            d = D + 4 + ((d - (D + 4) + 4) % 32)
        r = acc(6, tt)
        a(f"v_cvt_pk_bf16_f32 v{d}, v{r}, v{r+1}")
        a(f"v_cvt_pk_bf16_f32 v{d+1}, v{r+2}, v{r+3}")
        a(f"v_pk_max_i16 v{d}, v{d}, 0")
        a(f"v_pk_max_i16 v{d+1}, v{d+1}, 0")
        a(f"buffer_store_dwordx2 v[{d}:{d+1}], v{vHl[tt]}, s[{sWS}:{sWS+3}], s{sH2} offen offset:2048")
        d = D + 4 + ((d - (D + 4) + 4) % 32)
        for q in range(2):
            r = acc(7 + q, tt)
            for k in range(4):
                a(f"v_mul_f32 v{r+k}, {f32hex(QSCALE)}, v{r+k}")
            a(f"v_cvt_pk_bf16_f32 v{d}, v{r}, v{r+1}")
            a(f"v_cvt_pk_bf16_f32 v{d+1}, v{r+2}, v{r+3}")
            a(f"buffer_store_dwordx2 v[{d}:{d+1}], v{vQo[tt]}, s[{sWS}:{sWS+3}], s{sQd} offen offset:{q*32}")
            d = D + 4 + ((d - (D + 4) + 4) % 32)
    a("s_waitcnt vmcnt(20)")
    for slot in range(3):
        for q in range(4):
            a(f"v_lshl_or_b32 v{TRV+slot*4+q}, v{TRL+slot*8+2*q+1}, 16, v{TRL+slot*8+2*q}")
        a(f"buffer_store_dwordx4 v[{TRV+slot*4}:{TRV+slot*4+3}], v{vL16}, s[{sWS}:{sWS+3}], s{sDst[slot]} offen")
    T = D + 40
    a(f"s_cmp_gt_u32 s{sTYPE}, 2")
    a("s_cbranch_scc1 K1_END")
    a(f"s_cmp_eq_u32 s{sTYPE}, 1")
    a("s_cbranch_scc1 K1_VST")
    a(f"s_cmp_eq_u32 s{sTYPE}, 2")
    a("s_cbranch_scc1 K1_GST")
    a(f"v_cvt_pk_bf16_f32 v{T}, v{ACCE}, v{ACCE+1}")
    a(f"v_cvt_pk_bf16_f32 v{T+1}, v{ACCE+2}, v{ACCE+3}")
    a(f"s_lshl_b32 s{sT0}, s{sTK}, 10")
    a(f"s_add_u32 s{sT0}, s{sT0}, {WS_KF}")
    a(f"buffer_store_dwordx2 v[{T}:{T+1}], v{vHl[0]}, s[{sWS}:{sWS+3}], s{sT0} offen")
    a(f"v_mul_f32 v{T+2}, v{ACCE}, v{ACCE}")
    for k in range(1, 4):
        a(f"v_fmac_f32 v{T+2}, v{ACCE+k}, v{ACCE+k}")
    a(f"v_lshlrev_b32 v{T+3}, 2, v{vLane}")
    for mask in (16, 32):
        a(f"v_xor_b32 v{T+4}, {mask*4}, v{T+3}")
        a(f"ds_bpermute_b32 v{T+5}, v{T+4}, v{T+2}")
        a("s_waitcnt lgkmcnt(0)")
        a(f"v_add_f32 v{T+2}, v{T+2}, v{T+5}")
    for mask in (1, 2, 4, 8):
        a(f"v_xor_b32 v{T+4}, {mask*4}, v{T+3}")
        a(f"ds_bpermute_b32 v{T+5}, v{T+4}, v{T+2}")
        a("s_waitcnt lgkmcnt(0)")
        a(f"v_max_f32 v{T+2}, v{T+2}, v{T+5}")
    a(f"s_lshl_b32 s{sT0}, s{sTK}, 1")
    a(f"s_add_u32 s{sT0}, s{sT0}, s{sSEL}")
    a(f"s_lshl_b32 s{sT0}, s{sT0}, 2")
    a(f"s_add_u32 s{sT0}, s{sT0}, {WS_KMAX}")
    a(f"v_mov_b32 v{T+4}, 0")
    a("s_mov_b64 exec, 1")
    a(f"buffer_store_dword v{T+2}, v{T+4}, s[{sWS}:{sWS+3}], s{sT0} offen")
    a("s_endpgm")
    a.label("K1_VST")
    a(f"v_cvt_pk_bf16_f32 v{T}, v{ACCE}, v{ACCE+1}")
    a(f"v_cvt_pk_bf16_f32 v{T+1}, v{ACCE+2}, v{ACCE+3}")
    a(f"v_bfe_u32 v{T+2}, v{vTok}, 2, 1")
    a(f"v_lshlrev_b32 v{T+2}, 8, v{T+2}")
    a(f"v_lshl_add_u32 v{T+2}, v{vG4}, 6, v{T+2}")
    a(f"v_lshrrev_b32 v{T+3}, 3, v{vTok}")
    a(f"v_lshl_add_u32 v{T+2}, v{T+3}, 3, v{T+2}")
    a(f"v_and_b32 v{T+3}, 3, v{vTok}")
    a(f"v_lshl_add_u32 v{T+2}, v{T+3}, 1, v{T+2}")
    a(f"s_lshl_b32 s{sT0}, s{sTK}, 10")
    a(f"s_lshl_b32 s{sT1}, s{sSEL}, 9")
    a(f"s_add_u32 s{sT0}, s{sT0}, s{sT1}")
    a(f"s_add_u32 s{sT0}, s{sT0}, {WS_VF}")
    a(f"buffer_store_short v{T}, v{T+2}, s[{sWS}:{sWS+3}], s{sT0} offen")
    a(f"buffer_store_short_d16_hi v{T}, v{T+2}, s[{sWS}:{sWS+3}], s{sT0} offen offset:16")
    a(f"buffer_store_short v{T+1}, v{T+2}, s[{sWS}:{sWS+3}], s{sT0} offen offset:32")
    a(f"buffer_store_short_d16_hi v{T+1}, v{T+2}, s[{sWS}:{sWS+3}], s{sT0} offen offset:48")
    a("s_endpgm")
    a.label("K1_GST")
    a(f"v_mul_f32 v{T}, {f32hex(-1.4426950408889634)}, v{ACCE}")
    a(f"v_exp_f32 v{T}, v{T}")
    a(f"v_add_f32 v{T}, 1.0, v{T}")
    a(f"v_rcp_f32 v{T}, v{T}")
    a(f"v_lshlrev_b32 v{T+1}, 2, v{vT32[0]}")
    a(f"s_lshl_b32 s{sT0}, s{sTK}, 7")
    a(f"s_add_u32 s{sT0}, s{sT0}, {WS_G}")
    a("s_mov_b64 exec, 0xffff")
    a(f"buffer_store_dword v{T}, v{T+1}, s[{sWS}:{sWS+3}], s{sT0} offen")
    a.label("K1_END")
    a("s_endpgm")
    return a


K2_LDS = 131072 + 4096
def gen_k2(name):
    a = Asm()
    a.label(name)
    sWS = 8
    sW, sTB, sHG, sT0, sT1, sCnt, sPh, sOff, sTK, sHD = 12, 13, 14, 15, 16, 17, 18, 19, 20, 21
    sKM = 22
    vLane, vK, vV, vVi, vG, vT0, vT1, vT2, vT3 = 1, 2, 3, 4, 5, 6, 7, 96, 97
    Q, KF, V0, V1, P0, P1 = 8, 12, 16, 20, 24, 28
    S = [32, 48]
    O, C = 64, 80
    def r4(x): return f"v[{x}:{x+3}]"
    def r16(x): return f"v[{x}:{x+15}]"
    a("s_cmp_ge_u32 s2, 256")
    a("s_cbranch_scc1 K2_END")
    a("s_load_dwordx2 s[4:5], s[0:1], 88")
    a(f"v_lshrrev_b32 v{vT0}, 6, v0")
    a(f"v_and_b32 v{vLane}, 63, v0")
    a(f"v_readfirstlane_b32 s{sW}, v{vT0}")
    a(f"s_and_b32 s{sTB}, s2, 31")
    a(f"s_lshr_b32 s{sHG}, s2, 5")
    a(f"s_and_b32 s{sT0}, s{sW}, 1")
    a(f"s_lshl_b32 s{sTK}, s{sTB}, 1")
    a(f"s_add_u32 s{sTK}, s{sTK}, s{sT0}")
    a(f"s_lshr_b32 s{sT1}, s{sW}, 1")
    a(f"s_lshl_b32 s{sHD}, s{sHG}, 2")
    a(f"s_add_u32 s{sHD}, s{sHD}, s{sT1}")
    a(f"s_lshl_b32 s{sT0}, s{sT0}, 16")
    a(f"s_lshl_b32 s{sT1}, s{sT1}, 10")
    a(f"s_add_u32 s{sT0}, s{sT0}, s{sT1}")
    a(f"v_lshlrev_b32 v{vK}, 4, v{vLane}")
    a(f"s_mov_b32 m0, s{sT0}")
    a(f"s_add_u32 s{sOff}, s{sT0}, {WS_KF}")
    a(f"v_and_b32 v{vT0}, 31, v{vLane}")
    a(f"v_lshrrev_b32 v{vT1}, 5, v{vLane}")
    a(f"v_lshlrev_b32 v{vT2}, 10, v{vT0}")
    a(f"v_lshl_add_u32 v{vT2}, v{vT1}, 4, v{vT2}")
    a(f"s_lshl_b32 s{sT0}, s{sTK}, 15")
    a(f"s_lshl_b32 s{sT1}, s{sHD}, 5")
    a(f"s_add_u32 s{sT0}, s{sT0}, s{sT1}")
    if WS_Q: a(f"s_add_u32 s{sT0}, s{sT0}, {WS_Q}")
    a(f"v_lshlrev_b32 v{vT3}, 2, v{vT0}")
    a(f"s_lshl_b32 s{sT1}, s{sTK}, 7")
    a(f"s_add_u32 s{sT1}, s{sT1}, {WS_G}")
    a(f"v_lshlrev_b32 v{vG}, 3, v{vLane}")
    a(f"s_mov_b32 s{sKM}, {WS_KMAX}")
    a("s_waitcnt lgkmcnt(0)")
    srd(a, sWS, 4, WS_SIZE)
    W = f"s[{sWS}:{sWS+3}]"
    a(f"buffer_load_dwordx4 {r4(Q)}, v{vT2}, {W}, s{sT0} offen")
    a(f"buffer_load_dwordx2 v[{S[1]}:{S[1]+1}], v{vG}, {W}, s{sKM} offen")
    a(f"buffer_load_dword v{vG}, v{vT3}, {W}, s{sT1} offen")
    for r in range(16):
        a(f"buffer_load_dwordx4 v{vK}, {W}, s{sOff} offen lds")
        if r < 15:
            a(f"s_add_u32 m0, m0, 4096")
            a(f"s_add_u32 s{sOff}, s{sOff}, 4096")
    a(f"v_mov_b32 v{S[0]}, 0x3f803f80")
    a(f"v_mov_b32 v{S[0]+1}, 0x3f803f80")
    a(f"v_lshlrev_b32 v{vT2}, 3, v0")
    a(f"v_add_u32 v{vT2}, 131072, v{vT2}")
    a(f"ds_write_b64 v{vT2}, v[{S[0]}:{S[0]+1}]")
    a(f"v_lshlrev_b32 v{vT2}, 8, v{vT1}")
    a(f"v_lshl_add_u32 v{vT2}, v{vT0}, 4, v{vT2}")
    a(f"v_add_u32 v{vT2}, 65536, v{vT2}")
    a(f"v_mov_b32 v{vT3}, 131072")
    a(f"v_cmp_gt_u32 vcc, 16, v{vT0}")
    a(f"v_cndmask_b32 v{vV}, v{vT3}, v{vT2}, vcc")
    a(f"v_mov_b32 v{vT3}, 2048")
    a(f"v_cndmask_b32 v{vVi}, 0, v{vT3}, vcc")
    for r in range(16):
        a(f"v_mov_b32 v{O+r}, 0")
        a(f"v_mov_b32 v{C+r}, 0")
    for r in range(4):
        a(f"v_mov_b32 v{P1+r}, 0")
    a("s_waitcnt vmcnt(17)")
    km = S[1]
    a(f"v_max_f32 v{km}, v{km}, v{km+1}")
    for sh in (1, 2, 4, 8):
        a(f"v_max_f32_dpp v{km}, v{km}, v{km} row_shr:{sh} row_mask:0xf bank_mask:0xf")
    a(f"v_max_f32_dpp v{km}, v{km}, v{km} row_bcast:15 row_mask:0xa bank_mask:0xf")
    a(f"v_max_f32_dpp v{km}, v{km}, v{km} row_bcast:31 row_mask:0xc bank_mask:0xf")
    a(f"v_readlane_b32 s{sKM}, v{km}, 63")
    a(f"v_mov_b32 v{vT2}, 0")
    for r in range(4):
        a(f"v_dot2_f32_bf16 v{vT2}, v{Q+r}, v{Q+r}, v{vT2}")
    a(f"v_mul_f32 v{vT2}, s{sKM}, v{vT2}")
    a(f"v_cmp_nle_f32 vcc, v{vT2}, 0x45000000" if False else f"v_mov_b32 v{vT3}, 0x45000000")
    a(f"v_cmp_nle_f32 vcc, v{vT2}, v{vT3}")
    a("s_waitcnt vmcnt(14) lgkmcnt(0)")
    a("s_barrier")
    a(f"s_mov_b32 s{sCnt}, 3")
    a(f"s_mov_b32 s{sPh}, 0")
    a("s_cbranch_vccz K2_FAST")
    a("s_waitcnt vmcnt(0)")
    a("s_barrier")
    a(f"v_mov_b32 v{vT2}, 0xff800000")
    a(f"v_mov_b32 v{vT3}, v{vK}")
    a(f"s_mov_b32 s{sCnt}, 64")
    a.label("K2_MAXLOOP")
    a(f"ds_read_b128 {r4(KF)}, v{vT3}")
    a(f"v_add_u32 v{vT3}, 1024, v{vT3}")
    a("s_waitcnt lgkmcnt(0)")
    a(f"v_mfma_f32_32x32x16_bf16 {r16(S[0])}, {r4(KF)}, {r4(Q)}, {r16(C)}")
    for r in range(0, 16, 2):
        a(f"v_max3_f32 v{vT2}, v{S[0]+r}, v{S[0]+r+1}, v{vT2}")
    a(f"s_sub_u32 s{sCnt}, s{sCnt}, 1")
    a(f"s_cmp_lg_u32 s{sCnt}, 0")
    a("s_cbranch_scc1 K2_MAXLOOP")
    a(f"v_lshlrev_b32 v{vT3}, 2, v{vLane}")
    a(f"v_xor_b32 v{vT3}, 128, v{vT3}")
    a(f"ds_bpermute_b32 v{vT3}, v{vT3}, v{vT2}")
    a("s_waitcnt lgkmcnt(0)")
    a(f"v_max_f32 v{vT2}, v{vT2}, v{vT3}")
    for r in range(16):
        a(f"v_sub_f32 v{C+r}, 0, v{vT2}")
    a(f"s_mov_b32 s{sCnt}, 32")
    a(f"s_mov_b32 s{sPh}, 1")
    a.label("K2_FAST")
    a(f"ds_read_b128 {r4(KF)}, v{vK}")
    a("s_waitcnt lgkmcnt(0)")
    a(f"v_mfma_f32_32x32x16_bf16 {r16(S[0])}, {r4(KF)}, {r4(Q)}, {r16(C)}")
    a(f"ds_read_b128 {r4(KF)}, v{vK} offset:1024")
    a(f"ds_read_b128 {r4(V1)}, v{vV} offset:512")
    a(f"ds_read_b128 {r4(V0)}, v{vV}")
    a.label("K2_LOOP")
    for u in range(2):
        cur, nxt = S[u], S[u ^ 1]
        a("s_waitcnt lgkmcnt(2)")
        a(f"v_mfma_f32_32x32x16_bf16 {r16(nxt)}, {r4(KF)}, {r4(Q)}, {r16(C)}")
        a(f"ds_read_b128 {r4(KF)}, v{vK} offset:{(u+2)*1024}")
        for r in range(0, 4): a(f"v_exp_f32 v{cur+r}, v{cur+r}")
        a("s_waitcnt lgkmcnt(2)")
        a(f"v_mfma_f32_32x32x16_bf16 {r16(O)}, {r4(V1)}, {r4(P1)}, {r16(O)}")
        a(f"ds_read_b128 {r4(V1)}, v{vV} offset:{u*1024+512}")
        for r in range(4, 8): a(f"v_exp_f32 v{cur+r}, v{cur+r}")
        for r in range(4): a(f"v_cvt_pk_bf16_f32 v{P0+r}, v{cur+2*r}, v{cur+2*r+1}")
        for r in range(8, 10): a(f"v_exp_f32 v{cur+r}, v{cur+r}")
        a("s_waitcnt lgkmcnt(2)")
        a(f"v_mfma_f32_32x32x16_bf16 {r16(O)}, {r4(V0)}, {r4(P0)}, {r16(O)}")
        a(f"ds_read_b128 {r4(V0)}, v{vV} offset:{(u+1)*1024}")
        for r in range(10, 16): a(f"v_exp_f32 v{cur+r}, v{cur+r}")
        if u == 1:
            a(f"v_add_u32 v{vK}, 2048, v{vK}")
            a(f"v_add_u32 v{vV}, v{vVi}, v{vV}")
        for r in range(4): a(f"v_cvt_pk_bf16_f32 v{P1+r}, v{cur+8+2*r}, v{cur+8+2*r+1}")
    a(f"s_sub_u32 s{sCnt}, s{sCnt}, 1")
    a(f"s_cmp_lg_u32 s{sCnt}, 0")
    a("s_cbranch_scc1 K2_LOOP")
    a(f"s_cmp_lg_u32 s{sPh}, 0")
    a("s_cbranch_scc1 K2_DONE")
    a("s_waitcnt vmcnt(0)")
    a("s_barrier")
    a(f"s_mov_b32 s{sCnt}, 29")
    a(f"s_mov_b32 s{sPh}, 1")
    a("s_branch K2_LOOP")
    a.label("K2_DONE")
    a("s_waitcnt lgkmcnt(0)")
    a(f"v_mfma_f32_32x32x16_bf16 {r16(O)}, {r4(V1)}, {r4(P1)}, {r16(O)}")
    a(f"s_lshl_b32 s{sT0}, s{sTK}, 5")
    a(f"s_add_u32 s{sT0}, s{sT0}, s{sHD}")
    a(f"s_lshl_b32 s{sT0}, s{sT0}, 10")
    a(f"s_add_u32 s{sT0}, s{sT0}, {WS_OF}")
    a(f"v_lshlrev_b32 v{vT3}, 4, v{vLane}")
    a(f"v_rcp_f32 v{vT2}, v{O+8}")
    a(f"v_mul_f32 v{vT2}, v{vT2}, v{vG}")
    for r in range(8): a(f"v_mul_f32 v{O+r}, v{O+r}, v{vT2}")
    for r in range(4): a(f"v_cvt_pk_bf16_f32 v{P0+r}, v{O+2*r}, v{O+2*r+1}")
    a(f"buffer_store_dwordx4 {r4(P0)}, v{vT3}, {W}, s{sT0} offen")
    a.label("K2_END")
    a("s_endpgm")
    return a

K3_LDS = 65536
def gen_k3(name, DEPTH=8):
    a = Asm()
    a.label(name)
    sWS, sOUT = 8, 12
    sW, sTB, sNB, sT0, sT1 = 16, 17, 18, 19, 20
    sA = [22, 23]; sB = [24, 25]; sA2 = [26, 27]; sB2 = [28, 29]
    vLane, vL16, vG, vT0, vT1, vT2 = 1, 2, [3, 4], 5, 6, 7
    ACC = 16
    BUF = 80
    def acc(ns, ts): return ACC + (ns * 2 + ts) * 16
    def r4(x): return f"v[{x}:{x+3}]"
    def r16(x): return f"v[{x}:{x+15}]"
    a("s_cmp_ge_u32 s2, 256")
    a("s_cbranch_scc1 K3_END")
    a("s_load_dwordx2 s[4:5], s[0:1], 88")
    a("s_load_dwordx2 s[6:7], s[0:1], 72")
    a(f"v_lshrrev_b32 v{vT0}, 6, v0")
    a(f"v_and_b32 v{vLane}, 63, v0")
    a(f"v_readfirstlane_b32 s{sW}, v{vT0}")
    a(f"s_and_b32 s{sTB}, s2, 31")
    a(f"s_lshr_b32 s{sNB}, s2, 5")
    a(f"v_lshlrev_b32 v{vL16}, 4, v{vLane}")
    a(f"s_mul_i32 s{sT0}, s{sW}, 28")
    a(f"s_mul_i32 s{sT1}, s{sNB}, 224")
    a(f"s_add_u32 s{sT1}, s{sT1}, s{sT0}")
    a(f"s_lshl_b32 s{sT1}, s{sT1}, 10")
    a(f"s_add_u32 s{sA[0]}, s{sT1}, {WS_W2F}")
    a(f"s_add_u32 s{sA[1]}, s{sA[0]}, {112*1024}")
    a(f"s_mul_i32 s{sT1}, s{sTB}, 224")
    a(f"s_add_u32 s{sT1}, s{sT1}, s{sT0}")
    a(f"s_lshl_b32 s{sT1}, s{sT1}, 10")
    a(f"s_add_u32 s{sB[0]}, s{sT1}, {WS_HF}")
    a(f"s_add_u32 s{sB[1]}, s{sB[0]}, {112*1024}")
    a(f"s_lshl_b32 s{sT0}, s{sW}, 3")
    a(f"s_lshl_b32 s{sT1}, s{sNB}, 6")
    a(f"s_add_u32 s{sT1}, s{sT1}, s{sT0}")
    a(f"s_lshl_b32 s{sT1}, s{sT1}, 10")
    a(f"s_add_u32 s{sA2[0]}, s{sT1}, {WS_WOF}")
    a(f"s_add_u32 s{sA2[1]}, s{sA2[0]}, {32*1024}")
    a(f"s_lshl_b32 s{sT1}, s{sTB}, 6")
    a(f"s_add_u32 s{sT1}, s{sT1}, s{sT0}")
    a(f"s_lshl_b32 s{sT1}, s{sT1}, 10")
    a(f"s_add_u32 s{sB2[0]}, s{sT1}, {WS_OF}")
    a(f"s_add_u32 s{sB2[1]}, s{sB2[0]}, {32*1024}")
    a(f"v_and_b32 v{vT0}, 31, v{vLane}")
    a(f"v_lshlrev_b32 v{vT1}, 2, v{vT0}")
    a(f"s_lshl_b32 s{sT1}, s{sTB}, 8")
    a(f"s_add_u32 s{sT1}, s{sT1}, {WS_G}")
    a("s_waitcnt lgkmcnt(0)")
    srd(a, sWS, 4, WS_SIZE)
    srd(a, sOUT, 6, 0x200000)
    W = f"s[{sWS}:{sWS+3}]"
    a(f"buffer_load_dword v{vG[0]}, v{vT1}, {W}, s{sT1} offen")
    a(f"buffer_load_dword v{vG[1]}, v{vT1}, {W}, s{sT1} offen offset:128")
    NST = 36
    def buf(st, k): return BUF + ((st % DEPTH) * 4 + k) * 4
    def issue(st):
        L = []
        if st < 28:
            sa, sb, k = sA, sB, st
        else:
            sa, sb, k = sA2, sB2, st - 28
        off = (k % 4) * 1024
        for i in range(2):
            L.append(f"buffer_load_dwordx4 {r4(buf(st,i))}, v{vL16}, {W}, s{sa[i]} offen offset:{off}")
        for i in range(2):
            L.append(f"buffer_load_dwordx4 {r4(buf(st,2+i))}, v{vL16}, {W}, s{sb[i]} offen offset:{off}")
        if k % 4 == 3:
            for s_ in sa + sb:
                L.append(f"s_add_u32 s{s_}, s{s_}, 4096")
        return L
    for st in range(DEPTH):
        for l in issue(st): a(l)
    for r in range(64): a(f"v_mov_b32 v{ACC+r}, 0")
    for st in range(NST):
        issued = min(NST, st + DEPTH)
        a(f"s_waitcnt vmcnt({(issued - st - 1) * 4})")
        if st == 28:
            for ts in range(2):
                a(f"v_sub_f32 v{vG[ts]}, 1.0, v{vG[ts]}")
            for ns in range(2):
                for ts in range(2):
                    for r in range(16):
                        a(f"v_mul_f32 v{acc(ns,ts)+r}, v{acc(ns,ts)+r}, v{vG[ts]}")
        for ns in range(2):
            for ts in range(2):
                a(f"v_mfma_f32_32x32x16_bf16 {r16(acc(ns,ts))}, {r4(buf(st,ns))}, {r4(buf(st,2+ts))}, {r16(acc(ns,ts))}")
        if st + DEPTH < NST:
            for l in issue(st + DEPTH): a(l)
    a(f"s_lshl_b32 s{sT0}, s{sW}, 14")
    a(f"v_add_u32 v{vT0}, s{sT0}, v{vL16}")
    for sub in range(4):
        for rq in range(4):
            r = ACC + sub * 16 + rq * 4
            a(f"ds_write_b128 v{vT0}, {r4(r)} offset:{sub*4096+rq*1024}")
    a("s_waitcnt lgkmcnt(0)")
    a("s_barrier")
    a(f"v_and_b32 v{vT1}, 31, v{vLane}")
    a(f"v_lshrrev_b32 v{vT2}, 5, v{vLane}")
    a(f"v_lshlrev_b32 v{vT0}, 4, v{vT1}")
    a(f"v_lshl_add_u32 v{vT0}, v{vT2}, 10, v{vT0}")
    a(f"s_lshl_b32 s{sT0}, s{sW}, 12")
    a(f"v_add_u32 v{vT0}, s{sT0}, v{vT0}")
    R = BUF
    for p in range(2):
        for src in range(4):
            for half in range(2):
                r = R + ((p * 4 + src) * 2 + half) * 4
                a(f"ds_read_b128 {r4(r)}, v{vT0} offset:{src*16384 + p*2048 + half*512}")
    a(f"s_and_b32 s{sT0}, s{sW}, 1")
    a(f"s_lshl_b32 s{sT1}, s{sTB}, 1")
    a(f"s_add_u32 s{sT0}, s{sT0}, s{sT1}")
    a(f"s_lshl_b32 s{sT0}, s{sT0}, 15")
    a(f"s_lshl_b32 s{sT1}, s{sNB}, 7")
    a(f"s_add_u32 s{sT0}, s{sT0}, s{sT1}")
    a(f"s_lshr_b32 s{sT1}, s{sW}, 1")
    a(f"s_lshl_b32 s{sT1}, s{sT1}, 6")
    a(f"s_add_u32 s{sT0}, s{sT0}, s{sT1}")
    a(f"v_lshlrev_b32 v{vT1}, 10, v{vT1}")
    a(f"v_lshl_add_u32 v{vT1}, v{vT2}, 4, v{vT1}")
    for p in range(2):
        a(f"s_waitcnt lgkmcnt({8 if p == 0 else 0})")
        base = R + p * 32
        for src in range(1, 4):
            for k in range(8):
                a(f"v_add_f32 v{base+k}, v{base+k}, v{base+src*8+k}")
        for k in range(4):
            a(f"v_cvt_pk_bf16_f32 v{base+8+k}, v{base+2*k}, v{base+2*k+1}")
        a(f"buffer_store_dwordx4 {r4(base+8)}, v{vT1}, s[{sOUT}:{sOUT+3}], s{sT0} offen offset:{p*32}")
    a.label("K3_END")
    a("s_endpgm")
    return a

HEADER = """; gated_mix__grouped_kv_mqa__dense_activation_relu__prompt  (gfx950)  -- generated by gen/gen.py
"""
def build(out=OUT):
    ks = [
        ("k1_kernel", gen_k1("k1_kernel"), 256, 256, 163840, 512, 256),
        ("k2_kernel", gen_k2("k2_kernel"), 256, 512, K2_LDS, 128, 128),
        ("k3_kernel", gen_k3("k3_kernel"), 256, 256, K3_LDS, 256, 256),
    ]
    txt = HEADER
    for nm, a, g, b, lds, vg, acc in ks:
        txt += f"; @launch kernel={nm} grid=({g},1,1) block=({b},1,1) lds={lds}\n"
    txt += '.amdgcn_target "amdgcn-amd-amdhsa--gfx950"\n.text\n'
    for nm, a, g, b, lds, vg, acc in ks:
        n = a.fix()
        txt += kernel_header(nm) + a.text()
    txt += '.section .rodata,"a"\n'
    for nm, a, g, b, lds, vg, acc in ks:
        txt += kernel_desc(nm, vg, acc)
    open(out, "w").write(txt)
    return txt

if __name__ == "__main__":
    out = sys.argv[1] if len(sys.argv) > 1 else OUT
    build(out)
```

```python
import sys, os
sys.path.insert(0, os.path.dirname(os.path.abspath(__file__)))
from asmlib import Asm

NAME = "gated_mix__grouped_kv_mqa__dense_activation_relu__prompt"
OUT = f"cdna_kernels/{NAME}.s"

WS_Q    = 0x000000
WS_KF   = 0x200000
WS_VF   = 0x210000
WS_G    = 0x220000
WS_KMAX = 0x222000
WS_CNT  = 0x223000
WS_HF   = 0x300000
WS_W2F  = 0xA00000
WS_WOF  = 0xC00000
WS_OF   = 0xD00000
WS_SIZE = 0x1000000

QSCALE = 0.25 * 1.4426950408889634

def f32hex(x):
    import struct
    return "0x%08x" % struct.unpack('<I', struct.pack('<f', x))[0]

def srd(a, base, ptr, size):
    a(f"s_mov_b32 s{base}, s{ptr}")
    a(f"s_mov_b32 s{base+1}, s{ptr+1}")
    a(f"s_mov_b32 s{base+2}, {size}")
    a(f"s_mov_b32 s{base+3}, 0x00020000")

def kernel_header(name):
    return (f".globl {name}\n.p2align 8\n.type {name},@function\n")

def kernel_desc(name, vgpr, accum, sgpr=102):
    return f""".p2align 6
.amdhsa_kernel {name}
  .amdhsa_next_free_vgpr {vgpr}
  .amdhsa_next_free_sgpr {sgpr}
  .amdhsa_accum_offset {accum}
  .amdhsa_group_segment_fixed_size 0
  .amdhsa_kernarg_size 96
  .amdhsa_user_sgpr_count 2
  .amdhsa_user_sgpr_kernarg_segment_ptr 1
  .amdhsa_system_sgpr_workgroup_id_x 1
.end_amdhsa_kernel
"""


TS = int(os.environ.get("TS", "0"))
WS_TS = 0xF00000
def ts_begin(a):
    if not TS: return
    a("s_memrealtime s[96:97]")
    a("s_memtime s[98:99]")
def ts_mark(a, sreg):
    if not TS: return
    a(f"s_memtime s[{sreg}:{sreg+1}]")
def ts_end(a, kidx, sWS, sW, extra=()):
    if not TS: return
    a("s_mov_b64 exec, -1")
    a("s_memrealtime s[4:5]")
    a("s_memtime s[6:7]")
    a("s_waitcnt lgkmcnt(0)")
    a("v_mov_b32 v0, s96"); a("v_mov_b32 v1, s98"); a("v_mov_b32 v2, s4"); a("v_mov_b32 v3, s6")
    ex = list(extra) + [None] * (4 - len(extra))
    for i, e in enumerate(ex):
        a(f"v_mov_b32 v{4+i}, " + (f"s{e}" if e is not None else "0"))
    a("s_lshl_b32 s4, s2, 4")
    a(f"s_add_u32 s4, s4, s{sW}")
    a("s_lshl_b32 s4, s4, 5")
    a(f"s_add_u32 s4, s4, {WS_TS + kidx * 0x20000}")
    a("v_mov_b32 v8, 0")
    a("s_mov_b64 exec, 1")
    a(f"buffer_store_dwordx4 v[0:3], v8, s[{sWS}:{sWS+3}], s4 offen")
    a(f"buffer_store_dwordx4 v[4:7], v8, s[{sWS}:{sWS+3}], s4 offen offset:16")
def gen_k1(name, sentinel=False):
    a = Asm()
    a.label(name)
    HIMG, QIMG, EIMG = 0, 114688, 147456
    sX, sW1, sWQ, sKV, sWS, sTR = 36, 40, 44, 48, 52, 56
    sTB, sNB, sW, sM0H, sM0Q, sT0, sT1, sTYPE, sSEL = 60, 61, 62, 63, 64, 65, 69, 68, 70
    sMASK = 66
    vLane, vTok, vG4 = 1, 2, 3
    vXo0, vXo1, vHsrc, vQsrc, vHa0, vHa1, vQa0, vQa1, vEa = 4, 5, 6, 7, 8, 9, 10, 11, 12
    vT = [13, 14, 15, 16, 17, 18, 19, 20]
    ACC = 32
    def acc(ct, tt): return ACC + (ct * 2 + tt) * 4
    ACCE = ACC + 72
    WF = 108
    def wf(buf, ct): return WF + (buf * 10 + ct) * 4
    TRV = 188
    def xr(tt, ks): return (tt * 16 + ks) * 4

    a("s_cmp_ge_u32 s2, 256")
    a("s_cbranch_scc1 K1_END")
    ts_begin(a)
    a("s_load_dwordx16 s[16:31], s[0:1], 0")
    a("s_load_dwordx2 s[32:33], s[0:1], 64")
    a("s_load_dwordx2 s[34:35], s[0:1], 88")
    a(f"s_and_b32 s{sTB}, s2, 3")
    a(f"s_lshr_b32 s{sT0}, s2, 3")
    a(f"s_and_b32 s{sT0}, s{sT0}, 3")
    a(f"s_lshl_b32 s{sT0}, s{sT0}, 2")
    a(f"s_or_b32 s{sTB}, s{sTB}, s{sT0}")
    a(f"s_lshr_b32 s{sNB}, s2, 2")
    a(f"s_and_b32 s{sNB}, s{sNB}, 1")
    a(f"s_lshr_b32 s{sT0}, s2, 5")
    a(f"s_lshl_b32 s{sT0}, s{sT0}, 1")
    a(f"s_or_b32 s{sNB}, s{sNB}, s{sT0}")
    a(f"s_lshr_b32 s{sTYPE}, s{sNB}, 1")
    a(f"s_and_b32 s{sSEL}, s{sNB}, 1")
    a(f"v_lshrrev_b32 v{vT[0]}, 6, v0")
    a(f"v_and_b32 v{vLane}, 63, v0")
    a(f"v_readfirstlane_b32 s{sW}, v{vT[0]}")
    a(f"v_and_b32 v{vTok}, 15, v{vLane}")
    a(f"v_lshrrev_b32 v{vG4}, 4, v{vLane}")
    a(f"s_mov_b32 s{sMASK}, -1")
    a(f"s_mov_b32 s{sMASK+1}, 0x00ffffff")
    a(f"s_lshl_b32 s{sT0}, s{sTB}, 7")
    a(f"s_lshl_b32 s{sT1}, s{sW}, 5")
    a(f"s_add_u32 s{sT0}, s{sT0}, s{sT1}")
    a(f"s_lshl_b32 s{sT1}, s{sSEL}, 4")
    a(f"s_add_u32 s{sT0}, s{sT0}, s{sT1}")
    a(f"v_add_u32 v{vT[0]}, s{sT0}, v{vTok}")
    a(f"v_lshlrev_b32 v{vT[0]}, 10, v{vT[0]}")
    a(f"v_lshl_add_u32 v{vXo0}, v{vG4}, 4, v{vT[0]}")
    a(f"v_xor_b32 v{vXo1}, 0x4000, v{vXo0}")
    XM = os.environ.get("K1X", "")
    if XM == "lin":
        a(f"s_lshl_b32 s{sT0}, s{sTB}, 2")
        a(f"s_add_u32 s{sT0}, s{sT0}, s{sW}")
        a(f"s_lshl_b32 s{sT0}, s{sT0}, 15")
        a(f"v_lshlrev_b32 v25, 4, v{vLane}")
        a(f"v_add_u32 v25, s{sT0}, v25")
        a(f"v_add_u32 v26, 16384, v25")
    if XM == "pair":
        a(f"v_lshl_add_u32 v25, v{vG4}, 4, v{vXo0}")
        a(f"v_lshl_add_u32 v26, v{vG4}, 4, v{vXo1}")
    a(f"v_mul_u32_u24 v{vT[0]}, 4682, v{vLane}")
    a(f"v_lshrrev_b32 v{vT[0]}, 16, v{vT[0]}")
    a(f"v_mul_u32_u24 v{vT[1]}, 14, v{vT[0]}")
    a(f"v_sub_u32 v{vT[1]}, v{vLane}, v{vT[1]}")
    a(f"s_and_b32 s{sT0}, s{sW}, 1")
    a(f"s_lshl_b32 s{sT0}, s{sT0}, 1")
    a(f"s_lshr_b32 s{sT1}, s{sW}, 1")
    a(f"s_or_b32 s{sT0}, s{sT0}, s{sT1}")
    a(f"s_lshl_b32 s{sT0}, s{sT0}, 2")
    a(f"v_add_u32 v{vT[0]}, s{sT0}, v{vT[0]}")
    a(f"v_mul_u32_u24 v{vT[0]}, 3584, v{vT[0]}")
    a(f"v_lshl_add_u32 v{vT[0]}, v{vT[1]}, 4, v{vT[0]}")
    a(f"s_mul_i32 s{sT0}, s{sNB}, 224")
    a(f"v_add_u32 v{vHsrc}, s{sT0}, v{vT[0]}")
    a(f"s_mul_i32 s{sM0H}, s{sW}, 896")
    a(f"v_lshrrev_b32 v{vT[0]}, 2, v{vLane}")
    a(f"v_and_b32 v{vT[1]}, 3, v{vT[0]}")
    a(f"v_bfe_u32 v{vT[2]}, v{vT[0]}, 2, 1")
    a(f"v_bfe_u32 v{vT[3]}, v{vT[0]}, 3, 1")
    a(f"v_lshl_add_u32 v{vT[1]}, v{vT[2]}, 3, v{vT[1]}")
    a(f"v_lshl_add_u32 v{vT[1]}, v{vT[3]}, 2, v{vT[1]}")
    a(f"s_lshl_b32 s{sT0}, s{sW}, 4")
    a(f"v_add_u32 v{vT[1]}, s{sT0}, v{vT[1]}")
    a(f"v_lshlrev_b32 v{vT[1]}, 10, v{vT[1]}")
    a(f"v_and_b32 v{vT[3]}, 3, v{vLane}")
    a(f"v_lshlrev_b32 v{vT[2]}, 1, v{vT[2]}")
    a(f"v_xor_b32 v{vT[3]}, v{vT[3]}, v{vT[2]}")
    a(f"v_lshl_add_u32 v{vT[1]}, v{vT[3]}, 4, v{vT[1]}")
    a(f"s_lshl_b32 s{sT0}, s{sNB}, 6")
    a(f"v_add_u32 v{vQsrc}, s{sT0}, v{vT[1]}")
    a(f"s_lshl_b32 s{sM0Q}, s{sW}, 10")
    a(f"s_add_u32 s{sM0Q}, s{sM0Q}, {QIMG}")
    a(f"v_lshrrev_b32 v{vT[0]}, 1, v{vG4}")
    a(f"v_lshlrev_b32 v{vT[0]}, 4, v{vT[0]}")
    a(f"v_and_b32 v{vT[1]}, 1, v{vG4}")
    a(f"v_lshl_add_u32 v{vT[0]}, v{vT[1]}, 2, v{vT[0]}")
    a(f"v_lshrrev_b32 v{vT[2]}, 2, v{vTok}")
    a(f"v_add_u32 v{vT[0]}, v{vT[0]}, v{vT[2]}")
    a(f"v_and_b32 v{vT[2]}, 3, v{vTok}")
    a(f"v_lshlrev_b32 v{vT[2]}, 3, v{vT[2]}")
    a(f"v_mul_u32_u24 v{vT[3]}, 224, v{vT[0]}")
    a(f"v_add_u32 v{vHa0}, v{vT[3]}, v{vT[2]}")
    a(f"v_add_u32 v{vHa1}, 57344, v{vHa0}")
    a(f"v_lshl_add_u32 v{vT[3]}, v{vT[0]}, 6, v{vT[2]}")
    a(f"v_add_u32 v{vT[3]}, {QIMG}, v{vT[3]}")
    a(f"v_lshl_add_u32 v{vQa0}, v{vT[1]}, 5, v{vT[3]}")
    a(f"v_xor_b32 v{vQa1}, 32, v{vQa0}")
    a(f"v_lshl_add_u32 v{vT[3]}, v{vT[0]}, 5, v{vT[2]}")
    a(f"v_add_u32 v{vEa}, {EIMG}, v{vT[3]}")
    a("s_waitcnt lgkmcnt(0)")
    ts_mark(a, 8)
    srd(a, sX, 16, 0x200000)
    srd(a, sW1, 28, 512 * 3584)
    srd(a, sWQ, 18, 0x80000)
    srd(a, sWS, 34, WS_SIZE)
    if sentinel:
        for r in range(4): a(f"v_mov_b32 v{200+r}, -1")
        a(f"v_lshlrev_b32 v204, 4, v0")
        a(f"s_lshl_b32 s{sT0}, s2, 13")
        a(f"s_add_u32 s{sT0}, s{sT0}, {WS_OF}")
        a(f"buffer_store_dwordx4 v[200:203], v204, s[{sWS}:{sWS+3}], s{sT0} offen")
        a(f"s_add_u32 s{sT0}, s{sT0}, 4096")
        a(f"buffer_store_dwordx4 v[200:203], v204, s[{sWS}:{sWS+3}], s{sT0} offen")
    a(f"s_cmp_eq_u32 s{sTYPE}, 0")
    a(f"s_cselect_b32 s{sKV}, s20, s22")
    a(f"s_cselect_b32 s{sKV+1}, s21, s23")
    a(f"s_mov_b32 s{sKV+2}, 16384")
    a(f"s_mov_b32 s{sKV+3}, 0x00020000")

    vm = [0]
    a(f"s_cmp_gt_u32 s{sTYPE}, 1")
    a("s_cbranch_scc1 K1_NOKV")
    a(f"v_lshrrev_b32 v{vT[0]}, 1, v{vLane}")
    a(f"v_and_b32 v{vT[1]}, 0x13, v{vT[0]}")
    a(f"v_bfe_u32 v{vT[2]}, v{vT[0]}, 2, 1")
    a(f"v_bfe_u32 v{vT[3]}, v{vT[0]}, 3, 1")
    a(f"v_lshl_add_u32 v{vT[1]}, v{vT[2]}, 3, v{vT[1]}")
    a(f"v_lshl_add_u32 v{vT[1]}, v{vT[3]}, 2, v{vT[1]}")
    a(f"v_lshlrev_b32 v{vT[1]}, 5, v{vT[1]}")
    a(f"v_and_b32 v{vT[2]}, 1, v{vLane}")
    a(f"v_lshl_add_u32 v{vT[1]}, v{vT[2]}, 4, v{vT[1]}")
    a(f"s_lshl_b32 s{sT0}, s{sW}, 12")
    a(f"v_add_u32 v{vT[1]}, s{sT0}, v{vT[1]}")
    a(f"s_add_u32 m0, s{sT0}, {EIMG}")
    for il in range(4):
        a(f"buffer_load_dwordx4 v{vT[1]}, s[{sKV}:{sKV+3}], 0 offen offset:{il*1024} lds")
    a("s_branch K1_EDONE")
    a.label("K1_NOKV")
    a(f"s_cmp_eq_u32 s{sTYPE}, 2")
    a("s_cbranch_scc0 K1_EDONE")
    a(f"s_lshl_b32 s{sT0}, s{sW}, 7")
    a(f"v_add_u32 v{vT[4]}, s{sT0}, v{vLane}")
    a(f"v_lshlrev_b32 v{vT[5]}, 1, v{vT[4]}")
    a(f"global_load_ushort v{vT[6]}, v{vT[5]}, s[32:33]")
    a(f"global_load_ushort v{vT[7]}, v{vT[5]}, s[32:33] offset:128")
    a(f"v_and_b32 v{vT[1]}, 0xfffffff3, v{vT[4]}")
    a(f"v_bfe_u32 v{vT[2]}, v{vT[4]}, 2, 1")
    a(f"v_bfe_u32 v{vT[3]}, v{vT[4]}, 3, 1")
    a(f"v_lshl_add_u32 v{vT[1]}, v{vT[2]}, 3, v{vT[1]}")
    a(f"v_lshl_add_u32 v{vT[1]}, v{vT[3]}, 2, v{vT[1]}")
    a(f"v_lshlrev_b32 v{vT[1]}, 5, v{vT[1]}")
    a(f"v_add_u32 v{vT[1]}, {EIMG}, v{vT[1]}")
    a.label("K1_EDONE")

    def issue_chunk_ops(c):
        g = []
        for q in range(4):
            ks = 2 * c + (q >> 1)
            g.append([f"s_add_u32 m0, s{sM0H}, {(16*c+4*q)*896}",
                      f"s_mov_b32 s{sT0}, {(64*c+16*q)*3584}",
                      f"s_mov_b64 exec, s[{sMASK}:{sMASK+1}]",
                      f"buffer_load_dwordx4 v{vHsrc}, s[{sW1}:{sW1+3}], s{sT0} offen lds",
                      f"s_mov_b64 exec, -1"])
            tt = q & 1
            XM = os.environ.get("K1X", "")
            if XM == "lin":
                g.append([f"s_mov_b32 s{sT1}, {ks*1024}",
                          f"buffer_load_dwordx4 a[{xr(tt,ks)}:{xr(tt,ks)+3}], v{25 if tt==0 else 26}, s[{sX}:{sX+3}], s{sT1} offen"])
            elif XM == "pair":
                g.append([f"buffer_load_dwordx4 a[{xr(tt,ks)}:{xr(tt,ks)+3}], v{25 if tt==0 else 26}, s[{sX}:{sX+3}], 0 offen offset:{(ks>>1)*128+(ks&1)*16}"])
            elif XM == "rot":
                g.append([f"s_add_u32 s{sT1}, s2, {c}",
                          f"s_lshr_b32 s87, s2, 3",
                          f"s_add_u32 s{sT1}, s{sT1}, s87",
                          f"s_and_b32 s{sT1}, s{sT1}, 7",
                          f"s_lshl_b32 s{sT1}, s{sT1}, 7",
                          f"buffer_load_dwordx4 a[{xr(tt,ks)}:{xr(tt,ks)+3}], v{vXo0 if tt==0 else vXo1}, s[{sX}:{sX+3}], s{sT1} offen offset:{(ks&1)*64}"])
            else:
                g.append([f"buffer_load_dwordx4 a[{xr(tt,ks)}:{xr(tt,ks)+3}], v{vXo0 if tt==0 else vXo1}, s[{sX}:{sX+3}], 0 offen offset:{ks*64}"])
            if q == 0:
                g.append([f"s_add_u32 m0, s{sM0Q}, {4*c*1024}",
                          f"s_mov_b32 s{sT1}, {64*c*1024}",
                          f"buffer_load_dwordx4 v{vQsrc}, s[{sWQ}:{sWQ+3}], s{sT1} offen lds"])
        return g

    chunk_end = {}
    SKIP = os.environ.get("K1SKIP", "")
    def issue_group(grp):
        txt = ' '.join(grp)
        kind = 'x' if ' a[' in txt else ('h' if f"v{vHsrc}," in txt else ('q' if f"v{vQsrc}," in txt else 't'))
        if kind in SKIP: return
        for l in grp: a(l)
        vm[0] += 1

    PRE = 3
    for c in range(PRE):
        for grp in issue_chunk_ops(c): issue_group(grp)
        chunk_end[c] = vm[0]
    a(f"s_cmp_eq_u32 s{sTYPE}, 2")
    a("s_cbranch_scc0 K1_NOGATE")
    a(f"s_waitcnt vmcnt({vm[0]})")
    a(f"ds_write_b16 v{vT[1]}, v{vT[6]}")
    a(f"ds_write_b16 v{vT[1]}, v{vT[7]} offset:2048")
    a.label("K1_NOGATE")
    sSrc = [72, 74, 76]
    sDst = [78, 79, 80]
    sSh1 = 81
    vN2, vTA, vTB, vL16 = 21, 22, 23, 24
    a(f"v_and_b32 v{vN2}, 31, v{vLane}")
    a(f"v_lshlrev_b32 v{vN2}, 1, v{vN2}")
    a(f"v_lshrrev_b32 v{vT[0]}, 5, v{vLane}")
    a(f"v_lshl_add_u32 v{vTA}, v{vT[0]}, 12, v{vN2}")
    a(f"v_lshlrev_b32 v{vL16}, 4, v{vLane}")
    a(f"s_mul_i32 s{sT0}, s{sNB}, 112")
    a(f"s_lshr_b32 s{sT1}, s{sW}, 1")
    a(f"s_lshl_b32 s{sT1}, s{sT1}, 5")
    a(f"s_add_u32 s{sT0}, s{sT0}, s{sT1}")
    a(f"s_and_b32 s{sT1}, s{sW}, 1")
    a(f"s_lshl_b32 s{sT1}, s{sT1}, 3")
    a(f"s_add_u32 s{sT0}, s{sT0}, s{sT1}")
    a(f"s_lshl_b32 s{sT0}, s{sT0}, 10")
    a(f"s_lshl_b32 s{sT1}, s{sTB}, 6")
    a(f"s_add_u32 s{sSrc[0]}, s{sT0}, s{sT1}")
    a(f"s_add_u32 s{sSrc[0]+1}, s{sSrc[0]}, {16*1024}")
    a(f"s_mul_i32 s{sT0}, s{sTB}, 112")
    a(f"s_mul_i32 s{sT1}, s{sNB}, 7")
    a(f"s_add_u32 s{sT0}, s{sT0}, s{sT1}")
    a(f"s_add_u32 s{sT0}, s{sT0}, s{sW}")
    a(f"s_lshl_b32 s{sT0}, s{sT0}, 10")
    a(f"s_add_u32 s{sDst[0]}, s{sT0}, {WS_W2F}")
    a(f"s_lshl_b32 s{sT0}, s{sNB}, 15")
    a(f"s_lshl_b32 s{sT1}, s{sTB}, 6")
    a(f"s_add_u32 s{sT0}, s{sT0}, s{sT1}")
    a(f"s_add_u32 s{sSrc[2]}, s{sT0}, {16*1024}")
    a(f"s_add_u32 s{sSrc[2]+1}, s{sSrc[2]}, {8*1024}")
    a(f"s_lshl_b32 s82, s{sTB}, 5")
    a(f"s_lshl_b32 s83, s{sNB}, 1")
    a(f"s_add_u32 s82, s82, s83")
    a(f"s_lshl_b32 s82, s82, 10")
    a(f"s_add_u32 s82, s82, {WS_WOF}")
    a(f"s_add_u32 s{sDst[2]}, s82, 1024")
    a(f"s_mul_i32 s84, s{sNB}, 112")
    a(f"s_lshl_b32 s85, s{sW}, 3")
    a(f"s_add_u32 s85, s85, 64")
    a(f"s_cmp_eq_u32 s{sW}, 2")
    a(f"s_cselect_b32 s85, 96, s85")
    a(f"s_mov_b32 s86, {16*1024}")
    a(f"s_cselect_b32 s86, {4*1024}, s86")
    a(f"s_cselect_b32 s{sSh1}, 13, 12")
    a(f"s_add_u32 s84, s84, s85")
    a(f"s_lshl_b32 s84, s84, 10")
    a(f"s_add_u32 s84, s84, s{sT1}")
    a(f"s_add_u32 s85, s{sDst[0]}, {4*1024}")
    a(f"s_cmp_eq_u32 s{sW}, 3")
    a(f"s_cselect_b32 s{sSrc[1]}, s{sT0}, s84")
    a(f"s_cselect_b32 s86, {8*1024}, s86")
    a(f"s_cselect_b32 s{sDst[1]}, s82, s85")
    a(f"s_cselect_b32 s{sTR}, s24, s30")
    a(f"s_cselect_b32 s{sTR+1}, s25, s31")
    a(f"s_mov_b32 s{sTR+2}, {1792*1024}")
    a(f"s_cselect_b32 s{sTR+2}, 0x80000, s{sTR+2}")
    a(f"s_mov_b32 s{sTR+3}, 0x00020000")
    a(f"s_add_u32 s{sSrc[1]+1}, s{sSrc[1]}, s86")
    a(f"v_lshlrev_b32 v{vTB}, s{sSh1}, v{vT[0]}")
    a(f"v_add_u32 v{vTB}, v{vTB}, v{vN2}")
    sW2, sWO = 88, 92
    srd(a, sW2, 30, 1792 * 1024)
    srd(a, sWO, 24, 0x80000)
    TRL = 200
    def tr_groups():
        g = []
        for slot, (sr, vo) in enumerate([(sW2, vTA), (sTR, vTB), (sWO, vTA)]):
            for j in range(8):
                g.append([f"buffer_load_ushort v{TRL+slot*8+j}, v{vo}, s[{sr}:{sr+3}], s{sSrc[slot]+(j>>2)} offen offset:{(j&3)*1024}"])
        return g
    for r in range(ACC, ACC + 76):
        a(f"v_mov_b32 v{r}, 0")

    def frag_reads(ks, buf):
        rd = []
        for ct in range(7):
            base = vHa0 if ks < 8 else vHa1
            off = (ks % 8) * 7168 + ct * 32
            for t in range(2):
                rd.append(f"ds_read_b64_tr_b16 v[{wf(buf,ct)+2*t}:{wf(buf,ct)+2*t+1}], v{base} offset:{off+t*1792}")
        for q in range(2):
            for t in range(2):
                rd.append(f"ds_read_b64_tr_b16 v[{wf(buf,7+q)+2*t}:{wf(buf,7+q)+2*t+1}], v{vQa0 if q==0 else vQa1} offset:{ks*2048+t*512}")
        for t in range(2):
            rd.append(f"ds_read_b64_tr_b16 v[{wf(buf,9)+2*t}:{wf(buf,9)+2*t+1}], v{vEa} offset:{ks*1024+t*256}")
        return rd

    def wait_chunk(c):
        n = vm[0] - chunk_end[c]
        assert n <= 63
        a(f"s_waitcnt vmcnt({n}) lgkmcnt(0)")
        a("s_barrier")

    wait_chunk(0)
    ts_mark(a, 10)
    for l in frag_reads(0, 0): a(l)
    pending = []
    for ks in range(16):
        buf = ks & 1
        c = ks >> 1
        if ks % 2 == 0 and c + PRE < 8:
            pending = issue_chunk_ops(c + PRE)
            pend_chunk = c + PRE
        if ks == 10:
            pending = tr_groups()
            pend_chunk = 'tr'
        nxt = []
        if ks + 1 < 16:
            if (ks + 1) % 2 == 0:
                wait_chunk((ks + 1) // 2)
                if ks + 1 == 8: ts_mark(a, 12)
            else:
                a("s_waitcnt lgkmcnt(0)")
            nxt = frag_reads(ks + 1, buf ^ 1)
        else:
            a("s_waitcnt lgkmcnt(0)")
        mf = []
        for ct in range(9):
            for tt in range(2):
                mf.append(f"v_mfma_f32_16x16x32_bf16 v[{acc(ct,tt)}:{acc(ct,tt)+3}], v[{wf(buf,ct)}:{wf(buf,ct)+3}], a[{xr(tt,ks)}:{xr(tt,ks)+3}], v[{acc(ct,tt)}:{acc(ct,tt)+3}]")
        mf.append(f"v_mfma_f32_16x16x32_bf16 v[{ACCE}:{ACCE+3}], v[{wf(buf,9)}:{wf(buf,9)+3}], a[{xr(0,ks)}:{xr(0,ks)+3}], v[{ACCE}:{ACCE+3}]")
        for i, m in enumerate(mf):
            a(m)
            if i < 10:
                for l in nxt[2*i:2*i+2]: a(l)
            else:
                if pending and ((i - 10) % 2 == 0 or pend_chunk == 'tr'):
                    issue_group(pending.pop(0))
                    if not pending: chunk_end[pend_chunk] = vm[0]
        if ks % 2 == 1 and pend_chunk != 'tr':
            while pending:
                issue_group(pending.pop(0))
                if not pending: chunk_end[pend_chunk] = vm[0]
    assert not pending
    ts_mark(a, 84)
    E = 108
    vT32 = [E, E + 1]; vHp = [E + 2, E + 3]; vHl = [E + 4, E + 5]; vQo = [E + 6, E + 7]
    D = E + 8
    a(f"s_lshl_b32 s{sT0}, s{sSEL}, 4")
    a(f"v_add_u32 v{vT32[0]}, s{sT0}, v{vTok}")
    a(f"v_xor_b32 v{vT32[1]}, 16, v{vT32[0]}")
    a(f"v_lshrrev_b32 v{D}, 1, v{vG4}")
    a(f"v_and_b32 v{D+1}, 1, v{vG4}")
    for tt in range(2):
        a(f"v_lshlrev_b32 v{D+2}, 4, v{vT32[tt]}")
        a(f"v_lshl_add_u32 v{D+3}, v{D}, 10, v{D+2}")
        a(f"v_lshl_add_u32 v{vHp[tt]}, v{D+1}, 9, v{D+3}")
        a(f"v_lshl_add_u32 v{D+3}, v{D}, 9, v{D+2}")
        a(f"v_lshl_add_u32 v{vHl[tt]}, v{D+1}, 3, v{D+3}")
        a(f"v_lshlrev_b32 v{D+3}, 3, v{vG4}")
        a(f"v_sub_u32 v{vQo[tt]}, v{vXo0 if tt==0 else vXo1}, v{D+3}")
    sH, sH2, sQd, sTK = 72, 73, 74, 75
    a(f"s_lshl_b32 s{sTK}, s{sTB}, 2")
    a(f"s_add_u32 s{sTK}, s{sTK}, s{sW}")
    a(f"s_mul_i32 s{sT0}, s{sTK}, 112")
    a(f"s_mul_i32 s{sT1}, s{sNB}, 7")
    a(f"s_add_u32 s{sT0}, s{sT0}, s{sT1}")
    a(f"s_lshl_b32 s{sT0}, s{sT0}, 10")
    a(f"s_add_u32 s{sH}, s{sT0}, {WS_HF}")
    a(f"s_add_u32 s{sH2}, s{sH}, 4096")
    a(f"s_lshl_b32 s{sQd}, s{sNB}, 6")
    if WS_Q: a(f"s_add_u32 s{sQd}, s{sQd}, {WS_Q}")
    d = D + 4
    for tt in range(2):
        for p in range(3):
            for h in range(2):
                r = acc(2*p + h, tt)
                a(f"v_cvt_pk_bf16_f32 v{d+2*h}, v{r}, v{r+1}")
                a(f"v_cvt_pk_bf16_f32 v{d+2*h+1}, v{r+2}, v{r+3}")
            for k in range(4):
                a(f"v_pk_max_i16 v{d+k}, v{d+k}, 0")
            so, off = (sH, p * 2048) if p < 2 else (sH2, 0)
            a(f"buffer_store_dwordx4 v[{d}:{d+3}], v{vHp[tt]}, s[{sWS}:{sWS+3}], s{so} offen offset:{off}")
            d = D + 4 + ((d - (D + 4) + 4) % 32)
        r = acc(6, tt)
        a(f"v_cvt_pk_bf16_f32 v{d}, v{r}, v{r+1}")
        a(f"v_cvt_pk_bf16_f32 v{d+1}, v{r+2}, v{r+3}")
        a(f"v_pk_max_i16 v{d}, v{d}, 0")
        a(f"v_pk_max_i16 v{d+1}, v{d+1}, 0")
        a(f"buffer_store_dwordx2 v[{d}:{d+1}], v{vHl[tt]}, s[{sWS}:{sWS+3}], s{sH2} offen offset:2048")
        d = D + 4 + ((d - (D + 4) + 4) % 32)
        for q in range(2):
            r = acc(7 + q, tt)
            for k in range(4):
                a(f"v_mul_f32 v{r+k}, {f32hex(QSCALE)}, v{r+k}")
            a(f"v_cvt_pk_bf16_f32 v{d}, v{r}, v{r+1}")
            a(f"v_cvt_pk_bf16_f32 v{d+1}, v{r+2}, v{r+3}")
            a(f"buffer_store_dwordx2 v[{d}:{d+1}], v{vQo[tt]}, s[{sWS}:{sWS+3}], s{sQd} offen offset:{q*32}")
            d = D + 4 + ((d - (D + 4) + 4) % 32)
    a("s_waitcnt vmcnt(20)")
    for slot in range(3):
        for q in range(4):
            a(f"v_lshl_or_b32 v{TRV+slot*4+q}, v{TRL+slot*8+2*q+1}, 16, v{TRL+slot*8+2*q}")
        a(f"buffer_store_dwordx4 v[{TRV+slot*4}:{TRV+slot*4+3}], v{vL16}, s[{sWS}:{sWS+3}], s{sDst[slot]} offen")
    T = D + 40
    a(f"s_cmp_gt_u32 s{sTYPE}, 2")
    a("s_cbranch_scc1 K1_FIN")
    a(f"s_cmp_eq_u32 s{sTYPE}, 1")
    a("s_cbranch_scc1 K1_VST")
    a(f"s_cmp_eq_u32 s{sTYPE}, 2")
    a("s_cbranch_scc1 K1_GST")
    a(f"v_cvt_pk_bf16_f32 v{T}, v{ACCE}, v{ACCE+1}")
    a(f"v_cvt_pk_bf16_f32 v{T+1}, v{ACCE+2}, v{ACCE+3}")
    a(f"s_lshl_b32 s{sT0}, s{sTK}, 10")
    a(f"s_add_u32 s{sT0}, s{sT0}, {WS_KF}")
    a(f"buffer_store_dwordx2 v[{T}:{T+1}], v{vHl[0]}, s[{sWS}:{sWS+3}], s{sT0} offen")
    a(f"v_mul_f32 v{T+2}, v{ACCE}, v{ACCE}")
    for k in range(1, 4):
        a(f"v_fmac_f32 v{T+2}, v{ACCE+k}, v{ACCE+k}")
    a(f"v_lshlrev_b32 v{T+3}, 2, v{vLane}")
    for mask in (16, 32):
        a(f"v_xor_b32 v{T+4}, {mask*4}, v{T+3}")
        a(f"ds_bpermute_b32 v{T+5}, v{T+4}, v{T+2}")
        a("s_waitcnt lgkmcnt(0)")
        a(f"v_add_f32 v{T+2}, v{T+2}, v{T+5}")
    for mask in (1, 2, 4, 8):
        a(f"v_xor_b32 v{T+4}, {mask*4}, v{T+3}")
        a(f"ds_bpermute_b32 v{T+5}, v{T+4}, v{T+2}")
        a("s_waitcnt lgkmcnt(0)")
        a(f"v_max_f32 v{T+2}, v{T+2}, v{T+5}")
    a(f"s_lshl_b32 s{sT0}, s{sTK}, 1")
    a(f"s_add_u32 s{sT0}, s{sT0}, s{sSEL}")
    a(f"s_lshl_b32 s{sT0}, s{sT0}, 2")
    a(f"s_add_u32 s{sT0}, s{sT0}, {WS_KMAX}")
    a(f"v_mov_b32 v{T+4}, 0")
    a("s_mov_b64 exec, 1")
    a(f"buffer_store_dword v{T+2}, v{T+4}, s[{sWS}:{sWS+3}], s{sT0} offen")
    a("s_branch K1_FIN")
    a.label("K1_VST")
    a(f"v_cvt_pk_bf16_f32 v{T}, v{ACCE}, v{ACCE+1}")
    a(f"v_cvt_pk_bf16_f32 v{T+1}, v{ACCE+2}, v{ACCE+3}")
    a(f"v_bfe_u32 v{T+2}, v{vTok}, 2, 1")
    a(f"v_lshlrev_b32 v{T+2}, 8, v{T+2}")
    a(f"v_lshl_add_u32 v{T+2}, v{vG4}, 6, v{T+2}")
    a(f"v_lshrrev_b32 v{T+3}, 3, v{vTok}")
    a(f"v_lshl_add_u32 v{T+2}, v{T+3}, 3, v{T+2}")
    a(f"v_and_b32 v{T+3}, 3, v{vTok}")
    a(f"v_lshl_add_u32 v{T+2}, v{T+3}, 1, v{T+2}")
    a(f"s_lshl_b32 s{sT0}, s{sTK}, 10")
    a(f"s_lshl_b32 s{sT1}, s{sSEL}, 9")
    a(f"s_add_u32 s{sT0}, s{sT0}, s{sT1}")
    a(f"s_add_u32 s{sT0}, s{sT0}, {WS_VF}")
    a(f"buffer_store_short v{T}, v{T+2}, s[{sWS}:{sWS+3}], s{sT0} offen")
    a(f"buffer_store_short_d16_hi v{T}, v{T+2}, s[{sWS}:{sWS+3}], s{sT0} offen offset:16")
    a(f"buffer_store_short v{T+1}, v{T+2}, s[{sWS}:{sWS+3}], s{sT0} offen offset:32")
    a(f"buffer_store_short_d16_hi v{T+1}, v{T+2}, s[{sWS}:{sWS+3}], s{sT0} offen offset:48")
    a("s_branch K1_FIN")
    a.label("K1_GST")
    a(f"v_mul_f32 v{T}, {f32hex(-1.4426950408889634)}, v{ACCE}")
    a(f"v_exp_f32 v{T}, v{T}")
    a(f"v_add_f32 v{T}, 1.0, v{T}")
    a(f"v_rcp_f32 v{T}, v{T}")
    a(f"v_lshlrev_b32 v{T+1}, 2, v{vT32[0]}")
    a(f"s_lshl_b32 s{sT0}, s{sTK}, 7")
    a(f"s_add_u32 s{sT0}, s{sT0}, {WS_G}")
    a("s_mov_b64 exec, 0xffff")
    a(f"buffer_store_dword v{T}, v{T+1}, s[{sWS}:{sWS+3}], s{sT0} offen")
    a.label("K1_FIN")
    ts_end(a, 0, sWS, sW, (8, 10, 12, 84))
    a("s_endpgm")
    a.label("K1_END")
    a("s_endpgm")
    return a


K2_LDS = 131072 + 4096
def gen_k2(name):
    a = Asm()
    a.label(name)
    sWS = 8
    sW, sTB, sHG, sT0, sT1, sCnt, sPh, sOff, sTK, sHD = 12, 13, 14, 15, 16, 17, 18, 19, 20, 21
    sKM = 22
    vLane, vK, vV, vVi, vG, vT0, vT1, vT2, vT3 = 1, 2, 3, 4, 5, 6, 7, 96, 97
    Q, KF, V0, V1, P0, P1 = 8, 12, 16, 20, 24, 28
    S = [32, 48]
    O, C = 64, 80
    def r4(x): return f"v[{x}:{x+3}]"
    def r16(x): return f"v[{x}:{x+15}]"
    a("s_cmp_ge_u32 s2, 256")
    a("s_cbranch_scc1 K2_END")
    ts_begin(a)
    a("s_load_dwordx2 s[4:5], s[0:1], 88")
    a(f"v_lshrrev_b32 v{vT0}, 6, v0")
    a(f"v_and_b32 v{vLane}, 63, v0")
    a(f"v_readfirstlane_b32 s{sW}, v{vT0}")
    a(f"s_and_b32 s{sTB}, s2, 31")
    a(f"s_lshr_b32 s{sHG}, s2, 5")
    a(f"s_and_b32 s{sT0}, s{sW}, 1")
    a(f"s_lshl_b32 s{sTK}, s{sTB}, 1")
    a(f"s_add_u32 s{sTK}, s{sTK}, s{sT0}")
    a(f"s_lshr_b32 s{sT1}, s{sW}, 1")
    a(f"s_lshl_b32 s{sHD}, s{sHG}, 2")
    a(f"s_add_u32 s{sHD}, s{sHD}, s{sT1}")
    a(f"s_lshl_b32 s{sT0}, s{sT0}, 16")
    a(f"s_lshl_b32 s{sT1}, s{sT1}, 10")
    a(f"s_add_u32 s{sT0}, s{sT0}, s{sT1}")
    a(f"v_lshlrev_b32 v{vK}, 4, v{vLane}")
    a(f"s_mov_b32 m0, s{sT0}")
    a(f"s_add_u32 s{sOff}, s{sT0}, {WS_KF}")
    a(f"v_and_b32 v{vT0}, 31, v{vLane}")
    a(f"v_lshrrev_b32 v{vT1}, 5, v{vLane}")
    a(f"v_lshlrev_b32 v{vT2}, 10, v{vT0}")
    a(f"v_lshl_add_u32 v{vT2}, v{vT1}, 4, v{vT2}")
    a(f"s_lshl_b32 s{sT0}, s{sTK}, 15")
    a(f"s_lshl_b32 s{sT1}, s{sHD}, 5")
    a(f"s_add_u32 s{sT0}, s{sT0}, s{sT1}")
    if WS_Q: a(f"s_add_u32 s{sT0}, s{sT0}, {WS_Q}")
    a(f"v_lshlrev_b32 v{vT3}, 2, v{vT0}")
    a(f"s_lshl_b32 s{sT1}, s{sTK}, 7")
    a(f"s_add_u32 s{sT1}, s{sT1}, {WS_G}")
    a(f"v_lshlrev_b32 v{vG}, 3, v{vLane}")
    a(f"s_mov_b32 s{sKM}, {WS_KMAX}")
    a("s_waitcnt lgkmcnt(0)")
    srd(a, sWS, 4, WS_SIZE)
    W = f"s[{sWS}:{sWS+3}]"
    a(f"buffer_load_dwordx4 {r4(Q)}, v{vT2}, {W}, s{sT0} offen")
    a(f"buffer_load_dwordx2 v[{S[1]}:{S[1]+1}], v{vG}, {W}, s{sKM} offen")
    a(f"buffer_load_dword v{vG}, v{vT3}, {W}, s{sT1} offen")
    for r in range(16):
        a(f"buffer_load_dwordx4 v{vK}, {W}, s{sOff} offen lds")
        if r < 15:
            a(f"s_add_u32 m0, m0, 4096")
            a(f"s_add_u32 s{sOff}, s{sOff}, 4096")
    a(f"v_mov_b32 v{S[0]}, 0x3f803f80")
    a(f"v_mov_b32 v{S[0]+1}, 0x3f803f80")
    a(f"v_lshlrev_b32 v{vT2}, 3, v0")
    a(f"v_add_u32 v{vT2}, 131072, v{vT2}")
    a(f"ds_write_b64 v{vT2}, v[{S[0]}:{S[0]+1}]")
    a(f"v_lshlrev_b32 v{vT2}, 8, v{vT1}")
    a(f"v_lshl_add_u32 v{vT2}, v{vT0}, 4, v{vT2}")
    a(f"v_add_u32 v{vT2}, 65536, v{vT2}")
    a(f"v_mov_b32 v{vT3}, 131072")
    a(f"v_cmp_gt_u32 vcc, 16, v{vT0}")
    a(f"v_cndmask_b32 v{vV}, v{vT3}, v{vT2}, vcc")
    a(f"v_mov_b32 v{vT3}, 2048")
    a(f"v_cndmask_b32 v{vVi}, 0, v{vT3}, vcc")
    for r in range(16):
        a(f"v_mov_b32 v{O+r}, 0")
        a(f"v_mov_b32 v{C+r}, 0")
    for r in range(4):
        a(f"v_mov_b32 v{P1+r}, 0")
    a("s_waitcnt vmcnt(17)")
    km = S[1]
    a(f"v_max_f32 v{km}, v{km}, v{km+1}")
    for sh in (1, 2, 4, 8):
        a(f"v_max_f32_dpp v{km}, v{km}, v{km} row_shr:{sh} row_mask:0xf bank_mask:0xf")
    a(f"v_max_f32_dpp v{km}, v{km}, v{km} row_bcast:15 row_mask:0xa bank_mask:0xf")
    a(f"v_max_f32_dpp v{km}, v{km}, v{km} row_bcast:31 row_mask:0xc bank_mask:0xf")
    a(f"v_readlane_b32 s{sKM}, v{km}, 63")
    a(f"v_mov_b32 v{vT2}, 0")
    for r in range(4):
        a(f"v_dot2_f32_bf16 v{vT2}, v{Q+r}, v{Q+r}, v{vT2}")
    a(f"v_mul_f32 v{vT2}, s{sKM}, v{vT2}")
    a(f"v_cmp_nle_f32 vcc, v{vT2}, 0x45000000" if False else f"v_mov_b32 v{vT3}, 0x45000000")
    a(f"v_cmp_nle_f32 vcc, v{vT2}, v{vT3}")
    a("s_waitcnt vmcnt(14) lgkmcnt(0)")
    a("s_barrier")
    a(f"s_mov_b32 s{sCnt}, 3")
    a(f"s_mov_b32 s{sPh}, 0")
    ts_mark(a, 24)
    a("s_cbranch_vccz K2_FAST")
    a("s_waitcnt vmcnt(0)")
    a("s_barrier")
    a(f"v_mov_b32 v{vT2}, 0xff800000")
    a(f"v_mov_b32 v{vT3}, v{vK}")
    a(f"s_mov_b32 s{sCnt}, 64")
    a.label("K2_MAXLOOP")
    a(f"ds_read_b128 {r4(KF)}, v{vT3}")
    a(f"v_add_u32 v{vT3}, 1024, v{vT3}")
    a("s_waitcnt lgkmcnt(0)")
    a(f"v_mfma_f32_32x32x16_bf16 {r16(S[0])}, {r4(KF)}, {r4(Q)}, {r16(C)}")
    for r in range(0, 16, 2):
        a(f"v_max3_f32 v{vT2}, v{S[0]+r}, v{S[0]+r+1}, v{vT2}")
    a(f"s_sub_u32 s{sCnt}, s{sCnt}, 1")
    a(f"s_cmp_lg_u32 s{sCnt}, 0")
    a("s_cbranch_scc1 K2_MAXLOOP")
    a(f"v_lshlrev_b32 v{vT3}, 2, v{vLane}")
    a(f"v_xor_b32 v{vT3}, 128, v{vT3}")
    a(f"ds_bpermute_b32 v{vT3}, v{vT3}, v{vT2}")
    a("s_waitcnt lgkmcnt(0)")
    a(f"v_max_f32 v{vT2}, v{vT2}, v{vT3}")
    for r in range(16):
        a(f"v_sub_f32 v{C+r}, 0, v{vT2}")
    a(f"s_mov_b32 s{sCnt}, 32")
    a(f"s_mov_b32 s{sPh}, 1")
    a.label("K2_FAST")
    a(f"ds_read_b128 {r4(KF)}, v{vK}")
    a("s_waitcnt lgkmcnt(0)")
    a(f"v_mfma_f32_32x32x16_bf16 {r16(S[0])}, {r4(KF)}, {r4(Q)}, {r16(C)}")
    a(f"ds_read_b128 {r4(KF)}, v{vK} offset:1024")
    a(f"ds_read_b128 {r4(V1)}, v{vV} offset:512")
    a(f"ds_read_b128 {r4(V0)}, v{vV}")
    a.label("K2_LOOP")
    for u in range(2):
        cur, nxt = S[u], S[u ^ 1]
        a("s_waitcnt lgkmcnt(2)")
        a(f"v_mfma_f32_32x32x16_bf16 {r16(nxt)}, {r4(KF)}, {r4(Q)}, {r16(C)}")
        a(f"ds_read_b128 {r4(KF)}, v{vK} offset:{(u+2)*1024}")
        for r in range(0, 4): a(f"v_exp_f32 v{cur+r}, v{cur+r}")
        a("s_waitcnt lgkmcnt(2)")
        a(f"v_mfma_f32_32x32x16_bf16 {r16(O)}, {r4(V1)}, {r4(P1)}, {r16(O)}")
        a(f"ds_read_b128 {r4(V1)}, v{vV} offset:{u*1024+512}")
        for r in range(4, 8): a(f"v_exp_f32 v{cur+r}, v{cur+r}")
        for r in range(4): a(f"v_cvt_pk_bf16_f32 v{P0+r}, v{cur+2*r}, v{cur+2*r+1}")
        for r in range(8, 10): a(f"v_exp_f32 v{cur+r}, v{cur+r}")
        a("s_waitcnt lgkmcnt(2)")
        a(f"v_mfma_f32_32x32x16_bf16 {r16(O)}, {r4(V0)}, {r4(P0)}, {r16(O)}")
        a(f"ds_read_b128 {r4(V0)}, v{vV} offset:{(u+1)*1024}")
        for r in range(10, 16): a(f"v_exp_f32 v{cur+r}, v{cur+r}")
        if u == 1:
            a(f"v_add_u32 v{vK}, 2048, v{vK}")
            a(f"v_add_u32 v{vV}, v{vVi}, v{vV}")
        for r in range(4): a(f"v_cvt_pk_bf16_f32 v{P1+r}, v{cur+8+2*r}, v{cur+8+2*r+1}")
    a(f"s_sub_u32 s{sCnt}, s{sCnt}, 1")
    a(f"s_cmp_lg_u32 s{sCnt}, 0")
    a("s_cbranch_scc1 K2_LOOP")
    a(f"s_cmp_lg_u32 s{sPh}, 0")
    a("s_cbranch_scc1 K2_DONE")
    a("s_waitcnt vmcnt(0)")
    a("s_barrier")
    ts_mark(a, 26)
    a(f"s_mov_b32 s{sCnt}, 29")
    a(f"s_mov_b32 s{sPh}, 1")
    a("s_branch K2_LOOP")
    a.label("K2_DONE")
    ts_mark(a, 28)
    a("s_waitcnt lgkmcnt(0)")
    a(f"v_mfma_f32_32x32x16_bf16 {r16(O)}, {r4(V1)}, {r4(P1)}, {r16(O)}")
    a(f"s_lshl_b32 s{sT0}, s{sTK}, 5")
    a(f"s_add_u32 s{sT0}, s{sT0}, s{sHD}")
    a(f"s_lshl_b32 s{sT0}, s{sT0}, 10")
    a(f"s_add_u32 s{sT0}, s{sT0}, {WS_OF}")
    a(f"v_lshlrev_b32 v{vT3}, 4, v{vLane}")
    a(f"v_rcp_f32 v{vT2}, v{O+8}")
    a(f"v_mul_f32 v{vT2}, v{vT2}, v{vG}")
    for r in range(8): a(f"v_mul_f32 v{O+r}, v{O+r}, v{vT2}")
    for r in range(4): a(f"v_cvt_pk_bf16_f32 v{P0+r}, v{O+2*r}, v{O+2*r+1}")
    a(f"buffer_store_dwordx4 {r4(P0)}, v{vT3}, {W}, s{sT0} offen")
    ts_end(a, 1, sWS, sW, (24, 26, 28))
    a("s_endpgm")
    a.label("K2_END")
    a("s_endpgm")
    return a

K3_LDS = 65536
def gen_k3(name, DEPTH=8):
    a = Asm()
    a.label(name)
    sWS, sOUT = 8, 12
    sW, sTB, sNB, sT0, sT1 = 16, 17, 18, 19, 20
    sA = [22, 23]; sB = [24, 25]; sA2 = [26, 27]; sB2 = [28, 29]
    vLane, vL16, vG, vT0, vT1, vT2 = 1, 2, [3, 4], 5, 6, 7
    ACC = 16
    BUF = 80
    def acc(ns, ts): return ACC + (ns * 2 + ts) * 16
    def r4(x): return f"v[{x}:{x+3}]"
    def r16(x): return f"v[{x}:{x+15}]"
    a("s_cmp_ge_u32 s2, 256")
    a("s_cbranch_scc1 K3_END")
    ts_begin(a)
    a("s_load_dwordx2 s[4:5], s[0:1], 88")
    a("s_load_dwordx2 s[6:7], s[0:1], 72")
    a(f"v_lshrrev_b32 v{vT0}, 6, v0")
    a(f"v_and_b32 v{vLane}, 63, v0")
    a(f"v_readfirstlane_b32 s{sW}, v{vT0}")
    a(f"s_and_b32 s{sTB}, s2, 31")
    a(f"s_lshr_b32 s{sNB}, s2, 5")
    a(f"v_lshlrev_b32 v{vL16}, 4, v{vLane}")
    a(f"s_mul_i32 s{sT0}, s{sW}, 28")
    a(f"s_mul_i32 s{sT1}, s{sNB}, 224")
    a(f"s_add_u32 s{sT1}, s{sT1}, s{sT0}")
    a(f"s_lshl_b32 s{sT1}, s{sT1}, 10")
    a(f"s_add_u32 s{sA[0]}, s{sT1}, {WS_W2F}")
    a(f"s_add_u32 s{sA[1]}, s{sA[0]}, {112*1024}")
    a(f"s_mul_i32 s{sT1}, s{sTB}, 224")
    a(f"s_add_u32 s{sT1}, s{sT1}, s{sT0}")
    a(f"s_lshl_b32 s{sT1}, s{sT1}, 10")
    a(f"s_add_u32 s{sB[0]}, s{sT1}, {WS_HF}")
    a(f"s_add_u32 s{sB[1]}, s{sB[0]}, {112*1024}")
    a(f"s_lshl_b32 s{sT0}, s{sW}, 3")
    a(f"s_lshl_b32 s{sT1}, s{sNB}, 6")
    a(f"s_add_u32 s{sT1}, s{sT1}, s{sT0}")
    a(f"s_lshl_b32 s{sT1}, s{sT1}, 10")
    a(f"s_add_u32 s{sA2[0]}, s{sT1}, {WS_WOF}")
    a(f"s_add_u32 s{sA2[1]}, s{sA2[0]}, {32*1024}")
    a(f"s_lshl_b32 s{sT1}, s{sTB}, 6")
    a(f"s_add_u32 s{sT1}, s{sT1}, s{sT0}")
    a(f"s_lshl_b32 s{sT1}, s{sT1}, 10")
    a(f"s_add_u32 s{sB2[0]}, s{sT1}, {WS_OF}")
    a(f"s_add_u32 s{sB2[1]}, s{sB2[0]}, {32*1024}")
    a(f"v_and_b32 v{vT0}, 31, v{vLane}")
    a(f"v_lshlrev_b32 v{vT1}, 2, v{vT0}")
    a(f"s_lshl_b32 s{sT1}, s{sTB}, 8")
    a(f"s_add_u32 s{sT1}, s{sT1}, {WS_G}")
    a("s_waitcnt lgkmcnt(0)")
    srd(a, sWS, 4, WS_SIZE)
    srd(a, sOUT, 6, 0x200000)
    W = f"s[{sWS}:{sWS+3}]"
    a(f"buffer_load_dword v{vG[0]}, v{vT1}, {W}, s{sT1} offen")
    a(f"buffer_load_dword v{vG[1]}, v{vT1}, {W}, s{sT1} offen offset:128")
    NST = 36
    def buf(st, k): return BUF + ((st % DEPTH) * 4 + k) * 4
    def issue(st):
        L = []
        if st < 28:
            sa, sb, k = sA, sB, st
        else:
            sa, sb, k = sA2, sB2, st - 28
        off = (k % 4) * 1024
        for i in range(2):
            L.append(f"buffer_load_dwordx4 {r4(buf(st,i))}, v{vL16}, {W}, s{sa[i]} offen offset:{off}")
        for i in range(2):
            L.append(f"buffer_load_dwordx4 {r4(buf(st,2+i))}, v{vL16}, {W}, s{sb[i]} offen offset:{off}")
        if k % 4 == 3:
            for s_ in sa + sb:
                L.append(f"s_add_u32 s{s_}, s{s_}, 4096")
        return L
    for st in range(DEPTH):
        for l in issue(st): a(l)
    for r in range(64): a(f"v_mov_b32 v{ACC+r}, 0")
    ts_mark(a, 30)
    for st in range(NST):
        issued = min(NST, st + DEPTH)
        a(f"s_waitcnt vmcnt({(issued - st - 1) * 4})")
        if st == 28:
            for ts in range(2):
                a(f"v_sub_f32 v{vG[ts]}, 1.0, v{vG[ts]}")
            for ns in range(2):
                for ts in range(2):
                    for r in range(16):
                        a(f"v_mul_f32 v{acc(ns,ts)+r}, v{acc(ns,ts)+r}, v{vG[ts]}")
        for ns in range(2):
            for ts in range(2):
                a(f"v_mfma_f32_32x32x16_bf16 {r16(acc(ns,ts))}, {r4(buf(st,ns))}, {r4(buf(st,2+ts))}, {r16(acc(ns,ts))}")
        if st + DEPTH < NST:
            for l in issue(st + DEPTH): a(l)
    ts_mark(a, 32)
    a(f"s_lshl_b32 s{sT0}, s{sW}, 14")
    a(f"v_add_u32 v{vT0}, s{sT0}, v{vL16}")
    for sub in range(4):
        for rq in range(4):
            r = ACC + sub * 16 + rq * 4
            a(f"ds_write_b128 v{vT0}, {r4(r)} offset:{sub*4096+rq*1024}")
    a("s_waitcnt lgkmcnt(0)")
    a("s_barrier")
    a(f"v_and_b32 v{vT1}, 31, v{vLane}")
    a(f"v_lshrrev_b32 v{vT2}, 5, v{vLane}")
    a(f"v_lshlrev_b32 v{vT0}, 4, v{vT1}")
    a(f"v_lshl_add_u32 v{vT0}, v{vT2}, 10, v{vT0}")
    a(f"s_lshl_b32 s{sT0}, s{sW}, 12")
    a(f"v_add_u32 v{vT0}, s{sT0}, v{vT0}")
    R = BUF
    for p in range(2):
        for src in range(4):
            for half in range(2):
                r = R + ((p * 4 + src) * 2 + half) * 4
                a(f"ds_read_b128 {r4(r)}, v{vT0} offset:{src*16384 + p*2048 + half*512}")
    a(f"s_and_b32 s{sT0}, s{sW}, 1")
    a(f"s_lshl_b32 s{sT1}, s{sTB}, 1")
    a(f"s_add_u32 s{sT0}, s{sT0}, s{sT1}")
    a(f"s_lshl_b32 s{sT0}, s{sT0}, 15")
    a(f"s_lshl_b32 s{sT1}, s{sNB}, 7")
    a(f"s_add_u32 s{sT0}, s{sT0}, s{sT1}")
    a(f"s_lshr_b32 s{sT1}, s{sW}, 1")
    a(f"s_lshl_b32 s{sT1}, s{sT1}, 6")
    a(f"s_add_u32 s{sT0}, s{sT0}, s{sT1}")
    a(f"v_lshlrev_b32 v{vT1}, 10, v{vT1}")
    a(f"v_lshl_add_u32 v{vT1}, v{vT2}, 4, v{vT1}")
    for p in range(2):
        a(f"s_waitcnt lgkmcnt({8 if p == 0 else 0})")
        base = R + p * 32
        for src in range(1, 4):
            for k in range(8):
                a(f"v_add_f32 v{base+k}, v{base+k}, v{base+src*8+k}")
        for k in range(4):
            a(f"v_cvt_pk_bf16_f32 v{base+8+k}, v{base+2*k}, v{base+2*k+1}")
        a(f"buffer_store_dwordx4 {r4(base+8)}, v{vT1}, s[{sOUT}:{sOUT+3}], s{sT0} offen offset:{p*32}")
    ts_end(a, 2, sWS, sW, (30, 32))
    a("s_endpgm")
    a.label("K3_END")
    a("s_endpgm")
    return a

HEADER = """; gated_mix__grouped_kv_mqa__dense_activation_relu__prompt  (gfx950)  -- generated by gen/gen.py
"""
def build(out=OUT):
    ks = [
        ("k1_kernel", gen_k1("k1_kernel"), 256, 256, 163840, 512, 256),
        ("k2_kernel", gen_k2("k2_kernel"), 256, 512, K2_LDS, 128, 128),
        ("k3_kernel", gen_k3("k3_kernel"), 256, 256, K3_LDS, 256, 256),
    ]
    txt = HEADER
    for nm, a, g, b, lds, vg, acc in ks:
        txt += f"; @launch kernel={nm} grid=({g},1,1) block=({b},1,1) lds={lds}\n"
    txt += '.amdgcn_target "amdgcn-amd-amdhsa--gfx950"\n.text\n'
    for nm, a, g, b, lds, vg, acc in ks:
        n = a.fix()
        txt += kernel_header(nm) + a.text()
    txt += '.section .rodata,"a"\n'
    for nm, a, g, b, lds, vg, acc in ks:
        txt += kernel_desc(nm, vg, acc)
    open(out, "w").write(txt)
    return txt

if __name__ == "__main__":
    out = sys.argv[1] if len(sys.argv) > 1 else OUT
    build(out)
```

```python
import sys, os
sys.path.insert(0, os.path.dirname(os.path.abspath(__file__)))
from asmlib import Asm
import gen
from gen import *

def r4(x): return f"v[{x}:{x+3}]"
def r16(x): return f"v[{x}:{x+15}]"

L_K, L_V, L_ONES = 0, 65536, 131072
L_XCH = 137216
L_FLAG = L_XCH + 8 * 2304
K2P_LDS = L_FLAG + 64
L_RED = 0
L_FIN = 98304
CS = 2048 + 32
F2 = 8 * CS

def map_wg(a, sB, sTB, sHG, sT0, mode):
    if mode == 'simple':
        a(f"s_and_b32 s{sTB}, s{sB}, 31")
        a(f"s_lshr_b32 s{sHG}, s{sB}, 5")
    else:
        a(f"s_and_b32 s{sHG}, s{sB}, 1")
        a(f"s_lshl_b32 s{sHG}, s{sHG}, 2")
        a(f"s_bfe_u32 s{sT0}, s{sB}, 0x20003")
        a(f"s_or_b32 s{sHG}, s{sHG}, s{sT0}")
        a(f"s_bfe_u32 s{sTB}, s{sB}, 0x20001")
        a(f"s_lshl_b32 s{sTB}, s{sTB}, 3")
        a(f"s_lshr_b32 s{sT0}, s{sB}, 5")
        a(f"s_or_b32 s{sTB}, s{sTB}, s{sT0}")

def gen_k2p(name, mapmode='simple'):
    a = Asm()
    a.label(name)
    sWS, sOUT = 8, 12
    sW, sTB, sHG, sT0, sT1, sCnt, sKH, sHD = 16, 17, 18, 19, 20, 21, 22, 23
    sA = [24, 25]; sB = [26, 27]
    sW3, sNS, sTS, sKM, sOff, sT2, sPoll = 28, 29, 30, 31, 32, 33, 34
    sWo, sOf = 35, 36
    vLane, vK, vV, vVi, vL16, vGF, vGT = 1, 2, 3, 4, 5, 6, 7
    M = [8, 9]
    T = [10, 11, 12, 13, 14, 15]
    Q = [16, 20]; KF, V0, V1, P0, P1 = 24, 28, 32, 36, 40
    S = [48, 64]; O = [80, 96]; ACC = 112; FB = 176; SP = 208
    def acc(i): return ACC + 16 * i
    W = f"s[{sWS}:{sWS+3}]"

    a("s_cmp_ge_u32 s2, 256")
    a("s_cbranch_scc1 K2_END")
    ts_begin(a)
    a("s_load_dwordx2 s[4:5], s[0:1], 88")
    a("s_load_dwordx2 s[6:7], s[0:1], 72")
    a(f"v_lshrrev_b32 v{T[0]}, 6, v0")
    a(f"v_and_b32 v{vLane}, 63, v0")
    a(f"v_readfirstlane_b32 s{sW}, v{T[0]}")
    map_wg(a, 2, sTB, sHG, sT0, mapmode)
    a(f"v_lshlrev_b32 v{vL16}, 4, v{vLane}")
    a(f"s_lshr_b32 s{sKH}, s{sW}, 2")
    a(f"s_and_b32 s{sW3}, s{sW}, 3")
    a(f"s_and_b32 s{sNS}, s{sW}, 1")
    a(f"s_bfe_u32 s{sTS}, s{sW}, 0x10001")
    a(f"s_lshl_b32 s{sHD}, s{sHG}, 2")
    a(f"s_add_u32 s{sHD}, s{sHD}, s{sW3}")
    a(f"s_lshl_b32 s{sT0}, s{sNS}, 16")
    a(f"s_lshl_b32 s{sT1}, s{sTS}, 15")
    a(f"s_add_u32 s{sT0}, s{sT0}, s{sT1}")
    a(f"s_lshl_b32 s{sT1}, s{sKH}, 10")
    a(f"s_add_u32 s{sT0}, s{sT0}, s{sT1}")
    a(f"s_mov_b32 m0, s{sT0}")
    a(f"s_add_u32 s{sOff}, s{sT0}, {WS_KF}")
    a(f"v_and_b32 v{T[0]}, 31, v{vLane}")
    a(f"v_lshrrev_b32 v{T[1]}, 5, v{vLane}")
    a(f"v_lshlrev_b32 v{T[2]}, 10, v{T[0]}")
    a(f"v_lshl_add_u32 v{T[2]}, v{T[1]}, 4, v{T[2]}")
    a(f"v_xor_b32 v{T[3]}, 0x8000, v{T[2]}")
    a(f"s_lshl_b32 s{sT0}, s{sTB}, 16")
    a(f"s_lshl_b32 s{sT1}, s{sHD}, 5")
    a(f"s_add_u32 s{sT0}, s{sT0}, s{sT1}")
    if WS_Q: a(f"s_add_u32 s{sT0}, s{sT0}, {WS_Q}")
    a(f"s_lshl_b32 s{sT1}, s{sKH}, 15")
    a(f"v_xor_b32 v{T[2]}, s{sT1}, v{T[2]}")
    a(f"v_xor_b32 v{T[3]}, s{sT1}, v{T[3]}")
    a(f"v_lshlrev_b32 v{T[4]}, 2, v{T[0]}")
    a(f"v_lshlrev_b32 v{T[5]}, 3, v{vLane}")
    a(f"s_mov_b32 s{sKM}, {WS_KMAX}")
    a("s_waitcnt lgkmcnt(0)")
    srd(a, sWS, 4, WS_SIZE)
    srd(a, sOUT, 6, 0x200000)
    for r in range(2):
        a(f"buffer_load_dwordx4 v{vL16}, {W}, s{sOff} offen lds")
        a(f"s_add_u32 m0, m0, 2048")
        a(f"s_add_u32 s{sOff}, s{sOff}, 2048")
    a(f"buffer_load_dwordx4 {r4(Q[0])}, v{T[2]}, {W}, s{sT0} offen")
    a(f"buffer_load_dwordx4 {r4(Q[1])}, v{T[3]}, {W}, s{sT0} offen")
    a(f"buffer_load_dwordx2 v[{S[1]}:{S[1]+1}], v{T[5]}, {W}, s{sKM} offen")
    for r in range(2, 16):
        a(f"buffer_load_dwordx4 v{vL16}, {W}, s{sOff} offen lds")
        if r < 15:
            a(f"s_add_u32 m0, m0, 2048")
            a(f"s_add_u32 s{sOff}, s{sOff}, 2048")
    a(f"s_lshl_b32 s{sT0}, s{sTB}, 8")
    a(f"s_add_u32 s{sT0}, s{sT0}, {WS_G}")
    a(f"s_lshl_b32 s{sT1}, s{sKH}, 7")
    a(f"s_add_u32 s{sT1}, s{sT1}, s{sT0}")
    a(f"buffer_load_dword v{vGF}, v{T[4]}, {W}, s{sT1} offen")
    a(f"s_lshl_b32 s{sT1}, s{sTS}, 7")
    a(f"s_add_u32 s{sT1}, s{sT1}, s{sT0}")
    a(f"buffer_load_dword v{vGT}, v{T[4]}, {W}, s{sT1} offen")
    a(f"s_mul_i32 s{sT0}, s{sW}, 14")
    a(f"s_lshl_b32 s{sT1}, s{sHG}, 1")
    a(f"s_add_u32 s{sT1}, s{sT1}, s{sNS}")
    a(f"s_mul_i32 s{sA[0]}, s{sT1}, 112")
    a(f"s_xor_b32 s{sT1}, s{sT1}, 1")
    a(f"s_mul_i32 s{sA[1]}, s{sT1}, 112")
    a(f"s_lshl_b32 s{sT1}, s{sTB}, 1")
    a(f"s_add_u32 s{sT1}, s{sT1}, s{sTS}")
    a(f"s_mul_i32 s{sB[0]}, s{sT1}, 112")
    a(f"s_xor_b32 s{sT1}, s{sT1}, 1")
    a(f"s_mul_i32 s{sB[1]}, s{sT1}, 112")
    for s_, base in ((sA[0], WS_W2F), (sA[1], WS_W2F), (sB[0], WS_HF), (sB[1], WS_HF)):
        a(f"s_add_u32 s{s_}, s{s_}, s{sT0}")
        a(f"s_lshl_b32 s{s_}, s{s_}, 10")
        a(f"s_add_u32 s{s_}, s{s_}, {base}")
    a(f"s_lshl_b32 s{sT1}, s{sHG}, 1")
    a(f"s_add_u32 s{sT1}, s{sT1}, s{sNS}")
    a(f"s_lshl_b32 s{sT1}, s{sT1}, 5")
    a(f"s_lshl_b32 s{sT0}, s{sKH}, 4")
    a(f"s_add_u32 s{sT1}, s{sT1}, s{sT0}")
    a(f"s_lshl_b32 s{sT1}, s{sT1}, 10")
    a(f"s_add_u32 s{sWo}, s{sT1}, {WS_WOF}")
    a(f"s_lshl_b32 s{sT1}, s{sTB}, 1")
    a(f"s_add_u32 s{sT1}, s{sT1}, s{sTS}")
    a(f"s_lshl_b32 s{sT1}, s{sT1}, 5")
    a(f"s_add_u32 s{sT1}, s{sT1}, s{sT0}")
    a(f"s_lshl_b32 s{sT1}, s{sT1}, 10")
    a(f"s_add_u32 s{sOf}, s{sT1}, {WS_OF}")
    a(f"v_mov_b32 v{S[0]}, 0x3f803f80")
    a(f"v_mov_b32 v{S[0]+1}, 0x3f803f80")
    a(f"v_lshlrev_b32 v{T[2]}, 3, v0")
    a(f"v_add_u32 v{T[2]}, {L_ONES}, v{T[2]}")
    a(f"ds_write_b64 v{T[2]}, v[{S[0]}:{S[0]+1}]")
    a(f"v_lshlrev_b32 v{T[2]}, 2, v0")
    a(f"v_add_u32 v{T[2]}, {L_ONES + 4096}, v{T[2]}")
    a(f"ds_write_b32 v{T[2]}, v{S[0]}")
    a(f"s_lshl_b32 s{sT0}, s{sKH}, 15")
    a(f"v_add_u32 v{vK}, s{sT0}, v{vL16}")
    a(f"v_lshlrev_b32 v{T[2]}, 8, v{T[1]}")
    a(f"v_lshl_add_u32 v{T[2]}, v{T[0]}, 4, v{T[2]}")
    a(f"s_add_u32 s{sT0}, s{sT0}, {L_V}")
    a(f"v_add_u32 v{T[2]}, s{sT0}, v{T[2]}")
    a(f"v_subrev_u32 v{T[3]}, 20, v{T[0]}")
    a(f"v_cmp_gt_u32 vcc, 8, v{T[3]}")
    a(f"v_mov_b32 v{T[3]}, {L_ONES}")
    a(f"v_mov_b32 v{T[4]}, {L_ONES + 64}")
    a(f"v_cndmask_b32 v{T[3]}, v{T[3]}, v{T[4]}, vcc")
    a(f"v_cmp_gt_u32 vcc, 16, v{T[0]}")
    a(f"v_cndmask_b32 v{vV}, v{T[3]}, v{T[2]}, vcc")
    a(f"v_mov_b32 v{T[3]}, 4096")
    a(f"v_cndmask_b32 v{vVi}, 0, v{T[3]}, vcc")
    for r in range(16):
        a(f"v_mov_b32 v{O[0]+r}, 0")
        a(f"v_mov_b32 v{O[1]+r}, 0")
    for r in range(4):
        a(f"v_mov_b32 v{P1+r}, 0")
        a(f"v_mov_b32 v{V1+r}, 0")
    for r in range(64):
        a(f"v_mov_b32 v{ACC+r}, 0")
    a("s_waitcnt vmcnt(16)")
    km = S[1]
    a(f"v_max_f32 v{km}, v{km}, v{km+1}")
    for sh in (1, 2, 4, 8):
        a(f"v_max_f32_dpp v{km}, v{km}, v{km} row_shr:{sh} row_mask:0xf bank_mask:0xf")
    a(f"v_max_f32_dpp v{km}, v{km}, v{km} row_bcast:15 row_mask:0xa bank_mask:0xf")
    a(f"v_max_f32_dpp v{km}, v{km}, v{km} row_bcast:31 row_mask:0xc bank_mask:0xf")
    a(f"v_readlane_b32 s{sKM}, v{km}, 63")
    a(f"v_mov_b32 v{T[2]}, 0")
    a(f"v_mov_b32 v{T[3]}, 0")
    for r in range(4):
        a(f"v_dot2_f32_bf16 v{T[2]}, v{Q[0]+r}, v{Q[0]+r}, v{T[2]}")
        a(f"v_dot2_f32_bf16 v{T[3]}, v{Q[1]+r}, v{Q[1]+r}, v{T[3]}")
    a(f"v_max_f32 v{T[2]}, v{T[2]}, v{T[3]}")
    a(f"v_add_f32 v{T[3]}, v{T[2]}, v{T[3]}")
    a(f"v_mul_f32 v{T[2]}, s{sKM}, v{T[2]}")
    a(f"v_mov_b32 v{T[4]}, 0x45000000")
    a(f"v_cmp_nle_f32 vcc, v{T[2]}, v{T[4]}")
    a(f"v_cmp_u_f32 s[40:41], v{T[3]}, v{T[3]}")
    a(f"s_or_b64 vcc, vcc, s[40:41]")
    a(f"s_cmp_lg_u64 vcc, 0")
    a(f"s_cselect_b32 s{sT0}, 1, 0")
    a(f"v_mov_b32 v{T[2]}, s{sT0}")
    a(f"s_lshl_b32 s{sT1}, s{sW}, 2")
    a(f"s_add_u32 s{sT1}, s{sT1}, {L_FLAG}")
    a(f"v_mov_b32 v{T[3]}, s{sT1}")
    a(f"ds_write_b32 v{T[3]}, v{T[2]}")
    a("s_waitcnt lgkmcnt(0)")
    a("s_barrier")
    ts_mark(a, 44)
    a(f"v_and_b32 v{T[3]}, 7, v{vLane}")
    a(f"v_lshlrev_b32 v{T[3]}, 2, v{T[3]}")
    a(f"v_add_u32 v{T[3]}, {L_FLAG}, v{T[3]}")
    a(f"ds_read_b32 v{T[2]}, v{T[3]}")
    a(f"ds_read_b128 {r4(KF)}, v{vK}")
    a(f"ds_read_b128 {r4(V0)}, v{vV}")
    a("s_waitcnt lgkmcnt(2)")
    a(f"v_cmp_ne_u32 vcc, 0, v{T[2]}")
    a("s_cbranch_vccnz K2_SLOW")

    def ffn_load(which, buf, off):
        reg = {0: buf, 3: buf + 4, 1: buf + 8, 2: buf + 12}[which]
        s_ = {0: sA[0], 3: sA[1], 1: sB[0], 2: sB[1]}[which]
        a(f"buffer_load_dwordx4 {r4(reg)}, v{vL16}, {W}, s{s_} offen offset:{off}")

    def unit(x, tl, u, mode, slow):
        y = 1 - x
        Sx, Sy, Ox, Oy = S[x], S[y], O[x], O[y]
        lasttile = (mode == 'last' and tl == 3)
        def E(i):
            if slow: a(f"v_sub_f32 v{Sx+i}, v{Sx+i}, v{M[x]}")
            a(f"v_exp_f32 v{Sx+i}, v{Sx+i}")
        def C(k):
            d = (P0 + k) if k < 4 else (P1 + k - 4)
            a(f"v_cvt_pk_bf16_f32 v{d}, v{Sx+2*k}, v{Sx+2*k+1}")
        E(0); E(1)
        if x == 1: a(f"s_waitcnt lgkmcnt({0 if lasttile else 1})")
        a(f"v_mfma_f32_32x32x16_bf16 {r16(Oy)}, {r4(V1)}, {r4(P1)}, {r16(Oy)}")
        if x == 0: a(f"ds_read_b128 {r4(V1)}, v{vV} offset:{tl*1024+512}")
        for i in range(2, 6): E(i)
        if x == 0:
            a(f"v_mfma_f32_32x32x16_bf16 {r16(Sy)}, {r4(KF)}, {r4(Q[y])}, 0")
            if not lasttile: a(f"ds_read_b128 {r4(KF)}, v{vK} offset:{(tl+1)*1024}")
        elif not lasttile:
            a("s_waitcnt lgkmcnt(0)")
            a(f"v_mfma_f32_32x32x16_bf16 {r16(Sy)}, {r4(KF)}, {r4(Q[y])}, 0")
        E(6); E(7)
        for k in range(4): C(k)
        E(8); E(9)
        if x == 0: a(f"s_waitcnt lgkmcnt({1 if lasttile else 2})")
        a(f"v_mfma_f32_32x32x16_bf16 {r16(Ox)}, {r4(V0)}, {r4(P0)}, {r16(Ox)}")
        if x == 1 and not lasttile: a(f"ds_read_b128 {r4(V0)}, v{vV} offset:{(tl+1)*1024}")
        for i in range(10, 14): E(i)
        ls, m = u >> 2, u & 3
        buf = FB + ls * 16
        A0, A1, B0, B1 = buf, buf + 4, buf + 8, buf + 12
        if mode == 'first':
            if u >= 4:
                for q in range(2):
                    idx = (u - 4) * 2 + q
                    ffn_load(idx & 3, FB + (idx >> 2) * 16, (idx >> 2) * 1024)
        else:
            pre = (mode == 'mid')
            off = (ls + 2) * 1024
            if m == 0:
                a(f"s_waitcnt vmcnt({6 if (pre or ls == 0) else 2})")
                a(f"v_mfma_f32_32x32x16_bf16 {r16(acc(0))}, {r4(A0)}, {r4(B0)}, {r16(acc(0))}")
            elif m == 1:
                a(f"s_waitcnt vmcnt({5 if (pre or ls == 0) else 1})")
                a(f"v_mfma_f32_32x32x16_bf16 {r16(acc(2))}, {r4(A0)}, {r4(B1)}, {r16(acc(2))}")
                if pre: ffn_load(0, buf, off)
            elif m == 2:
                a(f"s_waitcnt vmcnt({5 if pre else (4 if ls == 0 else 0)})")
                a(f"v_mfma_f32_32x32x16_bf16 {r16(acc(1))}, {r4(A1)}, {r4(B0)}, {r16(acc(1))}")
                if pre: ffn_load(1, buf, off)
            else:
                a(f"v_mfma_f32_32x32x16_bf16 {r16(acc(3))}, {r4(A1)}, {r4(B1)}, {r16(acc(3))}")
                if pre:
                    ffn_load(2, buf, off); ffn_load(3, buf, off)
        E(14); E(15)
        for k in range(4, 8): C(k)

    def body(mode, slow):
        for tl in range(4):
            for x in range(2):
                unit(x, tl, tl * 2 + x, mode, slow)
        if mode != 'last':
            a(f"v_add_u32 v{vK}, 4096, v{vK}")
            a(f"v_add_u32 v{vV}, v{vVi}, v{vV}")

    def main(slow):
        sfx = "S" if slow else "F"
        a("s_waitcnt lgkmcnt(1)")
        a(f"v_mfma_f32_32x32x16_bf16 {r16(S[0])}, {r4(KF)}, {r4(Q[0])}, 0")
        body('first', slow)
        a("s_waitcnt vmcnt(8)")
        if not slow: a("s_barrier")
        if not slow: ts_mark(a, 46)
        a(f"s_mov_b32 s{sCnt}, 6")
        a.label(f"K2_LOOP{sfx}")
        body('mid', slow)
        for s_ in sA + sB: a(f"s_add_u32 s{s_}, s{s_}, 2048")
        a(f"s_sub_u32 s{sCnt}, s{sCnt}, 1")
        a(f"s_cmp_lg_u32 s{sCnt}, 0")
        a(f"s_cbranch_scc1 K2_LOOP{sfx}")
        body('last', slow)

    main(False)
    a("s_branch K2_TAIL")
    a.label("K2_SLOW")
    a("s_waitcnt vmcnt(0) lgkmcnt(0)")
    a("s_barrier")
    a(f"v_mov_b32 v{M[0]}, 0xff800000")
    a(f"v_mov_b32 v{M[1]}, 0xff800000")
    a(f"v_mov_b32 v{T[3]}, v{vL16}")
    a(f"s_mov_b32 s{sCnt}, 64")
    a.label("K2_MAXLOOP")
    a(f"ds_read_b128 {r4(P0)}, v{T[3]}")
    a(f"v_add_u32 v{T[3]}, 1024, v{T[3]}")
    a("s_waitcnt lgkmcnt(0)")
    for x in range(2):
        a(f"v_mfma_f32_32x32x16_bf16 {r16(S[x])}, {r4(P0)}, {r4(Q[x])}, 0")
    for x in range(2):
        for r in range(0, 16, 2):
            a(f"v_max3_f32 v{M[x]}, v{S[x]+r}, v{S[x]+r+1}, v{M[x]}")
    a(f"s_sub_u32 s{sCnt}, s{sCnt}, 1")
    a(f"s_cmp_lg_u32 s{sCnt}, 0")
    a("s_cbranch_scc1 K2_MAXLOOP")
    a(f"v_lshlrev_b32 v{T[3]}, 2, v{vLane}")
    a(f"v_xor_b32 v{T[3]}, 128, v{T[3]}")
    for x in range(2):
        a(f"ds_bpermute_b32 v{T[4+x]}, v{T[3]}, v{M[x]}")
    a("s_waitcnt lgkmcnt(0)")
    for x in range(2):
        a(f"v_max_f32 v{M[x]}, v{M[x]}, v{T[4+x]}")
    main(True)
    a.label("K2_TAIL")
    ts_mark(a, 48)
    a(f"v_mfma_f32_32x32x16_bf16 {r16(O[1])}, {r4(V1)}, {r4(P1)}, {r16(O[1])}")
    a(f"s_mul_i32 s{sT0}, s{sW}, 2304")
    a(f"s_add_u32 s{sT0}, s{sT0}, {L_XCH}")
    a(f"v_add_u32 v{T[0]}, s{sT0}, v{vL16}")
    a(f"v_lshlrev_b32 v{T[1]}, 2, v{vLane}")
    a(f"v_add_u32 v{T[1]}, s{sT0}, v{T[1]}")
    a(f"s_xor_b32 s{sT1}, s{sW}, 4")
    a(f"s_mul_i32 s{sT1}, s{sT1}, 2304")
    a(f"s_add_u32 s{sT1}, s{sT1}, {L_XCH}")
    a(f"v_add_u32 v{T[2]}, s{sT1}, v{vL16}")
    a(f"v_lshlrev_b32 v{T[3]}, 2, v{vLane}")
    a(f"v_add_u32 v{T[3]}, s{sT1}, v{T[3]}")
    a(f"ds_write_b128 v{T[0]}, {r4(O[1])}")
    a(f"ds_write_b128 v{T[0]}, {r4(O[1]+4)} offset:1024")
    a(f"ds_write_b32 v{T[1]}, v{O[1]+8} offset:2048")
    a("s_waitcnt lgkmcnt(0)")
    a("s_barrier")
    a(f"ds_read_b128 {r4(KF)}, v{T[2]}")
    a(f"ds_read_b128 {r4(V0)}, v{T[2]} offset:1024")
    a(f"ds_read_b32 v{V1}, v{T[3]} offset:2048")
    a(f"s_lshl_b32 s{sT0}, s{sTB}, 1")
    a(f"s_add_u32 s{sT0}, s{sT0}, s{sKH}")
    a(f"s_lshl_b32 s{sT0}, s{sT0}, 5")
    a(f"s_add_u32 s{sT0}, s{sT0}, s{sHD}")
    a(f"s_lshl_b32 s{sT0}, s{sT0}, 10")
    a(f"s_add_u32 s{sT0}, s{sT0}, {WS_OF}")
    a("s_waitcnt lgkmcnt(0)")
    a(f"v_add_f32 v{V1}, v{V1}, v{O[0]+8}")
    a(f"v_rcp_f32 v{V1}, v{V1}")
    for r in range(4):
        a(f"v_add_f32 v{O[0]+r}, v{O[0]+r}, v{KF+r}")
        a(f"v_add_f32 v{O[0]+4+r}, v{O[0]+4+r}, v{V0+r}")
    a(f"v_mul_f32 v{V1}, v{V1}, v{vGF}")
    for r in range(8): a(f"v_mul_f32 v{O[0]+r}, v{O[0]+r}, v{V1}")
    for r in range(4): a(f"v_cvt_pk_bf16_f32 v{P0+r}, v{O[0]+2*r}, v{O[0]+2*r+1}")
    a(f"buffer_store_dwordx4 {r4(P0)}, v{vL16}, {W}, s{sT0} offen sc1")
    ts_mark(a, 50)
    WOR = [FB + 4 * i for i in range(8)] + [S[0] + 4 * i for i in range(8)]
    for i in range(16):
        a(f"buffer_load_dwordx4 {r4(WOR[i])}, v{vL16}, {W}, s{sWo} offen offset:{(i%4)*1024}")
        if i % 4 == 3 and i < 15: a(f"s_add_u32 s{sWo}, s{sWo}, 4096")
    a(f"s_mul_i32 s{sT0}, s{sW}, 12288")
    a(f"v_add_u32 v{T[0]}, s{sT0}, v{vL16}")
    a(f"v_add_u32 v{T[1]}, 8192, v{T[0]}")
    for i in range(1, 4):
        for rq in range(4):
            base, off = (T[0], (i - 1) * 4096 + rq * 1024) if i < 3 else (T[1], rq * 1024)
            a(f"ds_write_b128 v{base}, {r4(acc(i)+4*rq)} offset:{off}")
    a("s_waitcnt lgkmcnt(0)")
    a("s_barrier")
    for i in range(1, 4):
        a(f"s_xor_b32 s{sT0}, s{sW}, {i}")
        a(f"s_mul_i32 s{sT0}, s{sT0}, 12288")
        a(f"s_add_u32 s{sT0}, s{sT0}, {(i-1)*4096}")
        a(f"v_add_u32 v{T[i]}, s{sT0}, v{vL16}")
        for rq in range(4):
            a(f"ds_read_b128 {r4(acc(i)+4*rq)}, v{T[i]} offset:{rq*1024}")
    OFR = [SP + 4 * i for i in range(12)] + [O[1] + 4 * i for i in range(4)]
    def of_loads(g):
        for i in range(4 * g, 4 * g + 4):
            a(f"buffer_load_dwordx4 {r4(OFR[i])}, v{vL16}, {W}, s{sT2} offen offset:{(i%4)*1024} sc1")
    for g in range(4):
        a(f"s_add_u32 s{sT2}, s{sOf}, {g*4096}")
        of_loads(g)
    a(f"v_sub_f32 v{vGT}, 1.0, v{vGT}")
    for i in range(1, 4):
        a(f"s_waitcnt lgkmcnt({(3-i)*4})")
        for r in range(16):
            a(f"v_add_f32 v{acc(0)+r}, v{acc(0)+r}, v{acc(i)+r}")
    for r in range(16):
        a(f"v_mul_f32 v{acc(0)+r}, v{acc(0)+r}, v{vGT}")
    ts_mark(a, 52)
    for g in range(4):
        a(f"s_mov_b32 s{sPoll}, 4096")
        a(f"s_waitcnt vmcnt({12 - 4*g})")
        a.label(f"K2_POLL{g}")
        rr = [OFR[i] + k for i in range(4 * g, 4 * g + 4) for k in range(4)]
        a(f"v_max_u32 v{T[0]}, v{rr[0]}, v{rr[1]}")
        for k in range(2, 16, 2):
            a(f"v_max3_u32 v{T[0]}, v{rr[k]}, v{rr[k+1]}, v{T[0]}")
        a(f"v_cmp_eq_u32 vcc, -1, v{T[0]}")
        a(f"s_cbranch_vccz K2_GO{g}")
        a(f"s_sub_u32 s{sPoll}, s{sPoll}, 1")
        a(f"s_cmp_eq_u32 s{sPoll}, 0")
        a(f"s_cbranch_scc1 K2_GO{g}")
        a(f"s_add_u32 s{sT2}, s{sOf}, {g*4096}")
        of_loads(g)
        a("s_waitcnt vmcnt(0)")
        a(f"s_branch K2_POLL{g}")
        a.label(f"K2_GO{g}")
        for i in range(4 * g, 4 * g + 4):
            a(f"v_mfma_f32_32x32x16_bf16 {r16(acc(0))}, {r4(WOR[i])}, {r4(OFR[i])}, {r16(acc(0))}")
    ts_mark(a, 54)
    a(f"s_mul_i32 s{sT0}, s{sKH}, {F2}")
    a(f"s_mul_i32 s{sT1}, s{sNS}, {4*CS}")
    a(f"s_add_u32 s{sT0}, s{sT0}, s{sT1}")
    a(f"s_lshl_b32 s{sT1}, s{sTS}, 10")
    a(f"s_add_u32 s{sT0}, s{sT0}, s{sT1}")
    a(f"s_add_u32 s{sT0}, s{sT0}, {L_FIN}")
    a(f"v_add_u32 v{T[0]}, s{sT0}, v{vL16}")
    a(f"v_and_b32 v{T[1]}, 7, v{vLane}")
    a(f"v_lshrrev_b32 v{T[2]}, 3, v{vLane}")
    a(f"v_mul_u32_u24 v{T[3]}, {CS}, v{T[1]}")
    a(f"v_lshl_add_u32 v{T[3]}, v{T[2]}, 4, v{T[3]}")
    a(f"s_lshl_b32 s{sT0}, s{sKH}, 10")
    a(f"s_lshl_b32 s{sT1}, s{sW3}, 7")
    a(f"s_add_u32 s{sT0}, s{sT0}, s{sT1}")
    a(f"s_add_u32 s{sT0}, s{sT0}, {L_FIN}")
    a(f"v_add_u32 v{T[3]}, s{sT0}, v{T[3]}")
    a(f"v_add_u32 v{T[4]}, {F2}, v{T[3]}")
    a(f"v_lshlrev_b32 v{T[2]}, 10, v{T[2]}")
    a(f"v_lshl_add_u32 v{T[2]}, v{T[1]}, 4, v{T[2]}")
    a(f"s_lshl_b32 s{sT0}, s{sTB}, 16")
    a(f"s_lshl_b32 s{sT1}, s{sW}, 13")
    a(f"s_add_u32 s{sT0}, s{sT0}, s{sT1}")
    a(f"s_lshl_b32 s{sT1}, s{sHG}, 7")
    a(f"s_add_u32 s{sT0}, s{sT0}, s{sT1}")
    for rq in range(4):
        a(f"ds_write_b128 v{T[0]}, {r4(acc(0)+4*rq)} offset:{rq*CS}")
    a("s_waitcnt lgkmcnt(0)")
    a("s_barrier")
    R = SP
    a(f"ds_read_b128 {r4(R)}, v{T[3]}")
    a(f"ds_read_b128 {r4(R+4)}, v{T[3]} offset:512")
    a(f"ds_read_b128 {r4(R+8)}, v{T[4]}")
    a(f"ds_read_b128 {r4(R+12)}, v{T[4]} offset:512")
    a("s_waitcnt lgkmcnt(0)")
    for k in range(8): a(f"v_add_f32 v{R+k}, v{R+k}, v{R+8+k}")
    for k in range(4): a(f"v_cvt_pk_bf16_f32 v{R+16+k}, v{R+2*k}, v{R+2*k+1}")
    a(f"buffer_store_dwordx4 {r4(R+16)}, v{T[2]}, s[{sOUT}:{sOUT+3}], s{sT0} offen")
    if TS:
        a("s_waitcnt lgkmcnt(0)")
    ts_end(a, 1, sWS, sW, (44, 46, 48, 50))
    if TS:
        a("s_mov_b64 exec, -1")
        a("v_mov_b32 v0, s52"); a("v_mov_b32 v1, s54"); a("v_mov_b32 v2, 0"); a("v_mov_b32 v3, 0")
        a(f"s_add_u32 s4, s4, 0x20000")
        a("s_mov_b64 exec, 1")
        a(f"buffer_store_dwordx4 v[0:3], v8, s[{sWS}:{sWS+3}], s4 offen offset:16")
    a("s_endpgm")
    a.label("K2_END")
    a("s_endpgm")
    return a

def build2(out):
    mm = os.environ.get("MAP", "simple")
    ks = [
        ("k1_kernel", gen_k1("k1_kernel", sentinel=True), 256, 256, 163840, 512, 256),
        ("k2_kernel", gen_k2p("k2_kernel", mm), 256, 512, K2P_LDS, 256, 256),
    ]
    txt = HEADER
    for nm, a, g, b, lds, vg, acc in ks:
        txt += f"; @launch kernel={nm} grid=({g},1,1) block=({b},1,1) lds={lds}\n"
    txt += '.amdgcn_target "amdgcn-amd-amdhsa--gfx950"\n.text\n'
    for nm, a, g, b, lds, vg, acc in ks:
        n = a.fix()
        txt += kernel_header(nm) + a.text()
    txt += '.section .rodata,"a"\n'
    for nm, a, g, b, lds, vg, acc in ks:
        txt += kernel_desc(nm, vg, acc)
    open(out, "w").write(txt)

if __name__ == "__main__":
    out = sys.argv[1] if len(sys.argv) > 1 else "v2.s"
    build2(out)
```

```python
import re

REG_RE = re.compile(r'\b([vas])(?:(\d+)|\[(\d+):(\d+)\])')

def regs_of(tok):
    out = set()
    for m in REG_RE.finditer(tok):
        k = m.group(1)
        if m.group(2) is not None:
            out.add((k, int(m.group(2))))
        else:
            for i in range(int(m.group(3)), int(m.group(4)) + 1):
                out.add((k, i))
    if re.search(r'\bvcc\b', tok):
        out.add(('s', 106)); out.add(('s', 107))
    if re.search(r'\bvcc_lo\b', tok): out.add(('s', 106))
    if re.search(r'\bvcc_hi\b', tok): out.add(('s', 107))
    if re.search(r'\bm0\b', tok): out.add(('m', 0))
    if re.search(r'\bexec\b', tok): out.add(('e', 0))
    return out

TRANS = ('v_exp_', 'v_log_', 'v_rcp_', 'v_rsq_', 'v_sqrt_', 'v_sin_', 'v_cos_')

class Ins:
    __slots__ = ('text', 'op', 'ops', 'kind', 'wr', 'rd', 'passes', 'cregs', 'ab', 'label', 'target', 'mods', 'nop')
    def __init__(self, text):
        self.text = text
        self.label = None
        self.target = None
        self.wr = set(); self.rd = set(); self.cregs = set(); self.ab = set()
        self.passes = 0
        self.nop = 1
        t = text.split(';')[0].strip()
        if t.endswith(':'):
            self.kind = 'label'; self.label = t[:-1]; self.op = ''; self.ops = []; self.mods = ''; self.nop = 0
            return
        if t == '' or t.startswith('.'):
            self.kind = 'dir'; self.op = ''; self.ops = []; self.mods = ''; self.nop = 0
            return
        parts = t.split(None, 1)
        self.op = op = parts[0]
        rest = parts[1] if len(parts) > 1 else ''
        ops = []; cur = ''; depth = 0
        for ch in rest:
            if ch == '[': depth += 1
            if ch == ']': depth -= 1
            if ch == ',' and depth == 0:
                ops.append(cur.strip()); cur = ''
            else:
                cur += ch
        if cur.strip(): ops.append(cur.strip())
        self.mods = ''
        if ops:
            sp = ops[-1].split(None, 1)
            if len(sp) > 1:
                ops[-1] = sp[0]; self.mods = sp[1]
        self.ops = ops
        R = [regs_of(o) for o in ops]
        if op.startswith('v_mfma'):
            self.kind = 'mfma'
            self.passes = 8 if '32x32' in op else 4
            self.wr = R[0]; self.ab = R[1] | R[2]; self.cregs = R[3]; self.rd = self.ab | self.cregs
        elif op.startswith('v_'):
            self.kind = 'valu'
            if op.startswith('v_cmp'):
                self.wr = R[0]; self.rd = set().union(*R[1:])
                if not ops[0].startswith(('vcc', 's')):
                    raise ValueError(text)
            elif op.startswith(('v_permlane32_swap', 'v_permlane16_swap', 'v_swap')):
                self.wr = R[0] | R[1]; self.rd = R[0] | R[1]
            elif op.startswith(('v_add_co', 'v_sub_co', 'v_subrev_co')):
                self.wr = R[0] | R[1]; self.rd = set().union(*R[2:])
            elif op.startswith(('v_addc_co', 'v_subb_co')):
                self.wr = R[0] | R[1]; self.rd = set().union(*R[2:])
            else:
                self.wr = R[0]; self.rd = set().union(*R[1:]) if len(R) > 1 else set()
                if op.startswith(('v_fmac', 'v_dot2c', 'v_pk_fmac', 'v_mac', 'v_writelane', 'v_dot4c')) or 'UNUSED_PRESERVE' in self.mods:
                    self.rd |= R[0]
                if op.startswith('v_cndmask') and len(ops) == 3:
                    self.rd |= {('s', 106), ('s', 107)}
        elif op.startswith('ds_'):
            self.kind = 'ds'
            if op.startswith(('ds_read', 'ds_bpermute', 'ds_permute', 'ds_swizzle')) or '_rtn' in op:
                self.wr = R[0]; self.rd = set().union(*R[1:])
            else:
                self.rd = set().union(*R)
        elif op.startswith(('buffer_', 'global_', 'flat_')):
            self.kind = 'vmem'
            isl = re.search(r'\blds\b', self.mods) is not None or '_lds_' in op
            if isl:
                self.rd = set().union(*R) | {('m', 0)}
                self.kind = 'dma'
            elif '_load' in op:
                self.wr = R[0]; self.rd = set().union(*R[1:])
                if 'd16' in op: self.rd |= R[0]
            elif 'atomic' in op:
                if re.search(r'\b(glc|sc0)\b', self.mods):
                    self.wr = R[0]; self.rd = set().union(*R[1:])
                else:
                    self.rd = set().union(*R)
            else:
                self.rd = set().union(*R)
        elif op.startswith('s_'):
            self.kind = 'salu'
            if op == 's_nop':
                self.nop = int(ops[0], 0) + 1
            elif op.startswith(('s_cbranch', 's_branch')):
                self.target = ops[0]
            elif op.startswith(('s_waitcnt', 's_barrier', 's_endpgm', 's_setprio', 's_sleep', 's_sethalt')):
                pass
            elif op.startswith('s_cmp') or op.startswith('s_bitcmp'):
                self.rd = set().union(*R)
            elif op.startswith(('s_load', 's_memtime', 's_memrealtime', 's_getpc', 's_getreg')):
                self.wr = R[0]; self.rd = set().union(*R[1:]) if len(R) > 1 else set()
            else:
                self.wr = R[0]; self.rd = set().union(*R[1:]) if len(R) > 1 else set()
                if 'saveexec' in op:
                    self.wr |= {('e', 0)}
        else:
            raise ValueError("unknown instruction: " + text)

def vg(s):
    return {r for r in s if r[0] in 'va'}
def sg(s):
    return {r for r in s if r[0] == 's'}

def required(prod, cons):
    need = 0
    pk, ck = prod.kind, cons.kind
    if pk == 'valu':
        w = vg(prod.wr)
        if ck == 'mfma' and (w & cons.rd): need = max(need, 2)
        if ck == 'valu':
            if w & cons.rd:
                if prod.op.startswith(TRANS) and not cons.op.startswith(TRANS): need = max(need, 1)
                if prod.op.startswith(TRANS): need = max(need, 1)
                if 'dpp' in cons.op or re.search(r'\b(row_|quad_perm|wave_)', cons.mods): need = max(need, 2)
                if cons.op.startswith('v_permlane'): need = max(need, 2)
                if cons.op.startswith(('v_readlane', 'v_readfirstlane')): need = max(need, 1)
                if 'op_sel' in prod.mods or 'sdwa' in prod.op or 'dst_sel' in prod.mods: need = max(need, 1)
            if (w & cons.wr) and ('op_sel' in prod.mods or 'dst_sel' in prod.mods): need = max(need, 1)
        if prod.op.startswith('v_dot') and (w & (cons.rd | cons.wr)):
            same_c = False
            if cons.op == prod.op:
                ab = set()
                for o in cons.ops[1:3]: ab |= regs_of(o)
                same_c = not (w & ab)
            if not same_c: need = max(need, 3)
        ws = sg(prod.wr)
        if ws:
            if ck == 'valu' and (ws & cons.rd): need = max(need, 4 if cons.op.startswith(('v_readlane', 'v_writelane')) else 2)
            if ck in ('vmem', 'dma') and (ws & cons.rd): need = max(need, 5)
            if ck == 'mfma' and (ws & cons.rd): need = max(need, 2)
        if ('e', 0) in prod.wr:
            need = max(need, 5)
        if prod.op.startswith(TRANS) and ck in ('ds', 'vmem', 'dma') and (w & cons.rd): need = max(need, 1)
    if pk == 'mfma':
        d = prod.wr
        p8 = prod.passes == 8
        if ck == 'mfma':
            if d & cons.cregs:
                if cons.cregs == d and cons.passes == prod.passes: pass
                else: need = max(need, 10 if p8 else 6)
            if d & cons.ab: need = max(need, 12 if p8 else 8)
            if (d & cons.wr) and not (cons.cregs == d and cons.wr == d):
                need = max(need, 12 if p8 else 8)
        elif ck in ('valu', 'ds', 'vmem', 'dma'):
            if d & (cons.rd | cons.wr): need = max(need, 12 if p8 else 8)
            if ck == 'valu' and (prod.cregs & cons.wr): need = max(need, 7 if p8 else 3)
            if ck in ('ds', 'vmem') and (prod.cregs & cons.wr): need = max(need, 7 if p8 else 3)
    if pk == 'salu':
        if ('m', 0) in prod.wr and (ck == 'dma' or ('m', 0) in cons.rd): need = max(need, 1)
    if pk == 'vmem' and ('store' in prod.op or 'atomic' in prod.op) and re.search(r'x[34]\b', prod.op):
        if vg(prod.rd) & cons.wr:
            need = max(need, 2)
    if pk == 'ds' and prod.op.startswith('ds_write') and re.search(r'b(96|128)\b', prod.op):
        if vg(prod.rd) & cons.wr: need = max(need, 2)
    return need

MAXD = 20

class Asm:
    def __init__(self):
        self.ins = []
    def __call__(self, s, *a):
        for line in s.split('\n'):
            if line.strip():
                self.ins.append(Ins(line.strip()))
    def label(self, l):
        self.ins.append(Ins(l + ':'))
    def comment(self, c):
        self.ins.append(Ins('; ' + c)) if False else None
    def fix(self):
        ins = self.ins
        total = 0
        TERM = ('s_branch', 's_endpgm', 's_setpc_b64')
        i = 0
        def build():
            jumps = {}
            for k, x in enumerate(ins):
                if x.target is not None:
                    jumps.setdefault(x.target, []).append(k)
            return jumps
        jumps = build()
        while i < len(ins):
            c = ins[i]
            if c.kind in ('label', 'dir') or (c.kind == 'salu'):
                i += 1
                continue
            need = 0
            stack = []
            if i > 0 and ins[i - 1].op not in TERM:
                stack.append((i - 1, 0))
            seen = {}
            while stack:
                j, dist = stack.pop()
                while j >= 0 and dist < MAXD:
                    if seen.get(j, 99) <= dist: break
                    seen[j] = dist
                    p = ins[j]
                    if p.kind == 'label':
                        for b in jumps.get(p.label, []):
                            stack.append((b, dist))
                    elif p.kind != 'dir':
                        r = required(p, c)
                        if r > dist: need = max(need, r - dist)
                        dist += p.nop
                    j -= 1
                    if j >= 0 and ins[j].op in TERM:
                        break
            if need > 0:
                k = need
                while k > 0:
                    q = min(k, 16)
                    ins.insert(i, Ins(f's_nop {q-1}'))
                    k -= q
                    total += 1
                    i += 1
                jumps = build()
            i += 1
        return total
    def text(self):
        out = []
        for x in self.ins:
            if x.kind == 'label': out.append(x.text)
            else: out.append('  ' + x.text)
        return '\n'.join(out) + '\n'
```

```python
import sys, os
sys.path.insert(0, os.path.dirname(os.path.abspath(__file__)))
from asmlib import Asm

NAME = "gated_mix__grouped_kv_mqa__dense_activation_relu__prompt"
OUT = f"cdna_kernels/{NAME}.s"

WS_Q    = 0x000000
WS_KF   = 0x200000
WS_VF   = 0x210000
WS_G    = 0x220000
WS_KMAX = 0x222000
WS_CNT  = 0x223000
WS_HF   = 0x300000
WS_W2F  = 0xA00000
WS_WOF  = 0xC00000
WS_OF   = 0xD00000
WS_SIZE = 0x1000000

QSCALE = 0.25 * 1.4426950408889634
QS2 = 0.25 * 1.4426950408889634 * 1024.0 / 65535.0
WS_VB = 0x230000
WS_VMAX = 0x222200

def f32hex(x):
    import struct
    return "0x%08x" % struct.unpack('<I', struct.pack('<f', x))[0]

def srd(a, base, ptr, size):
    a(f"s_mov_b32 s{base}, s{ptr}")
    a(f"s_mov_b32 s{base+1}, s{ptr+1}")
    a(f"s_mov_b32 s{base+2}, {size}")
    a(f"s_mov_b32 s{base+3}, 0x00020000")

def kernel_header(name):
    return (f".globl {name}\n.p2align 8\n.type {name},@function\n")

def kernel_desc(name, vgpr, accum, sgpr=102):
    return f""".p2align 6
.amdhsa_kernel {name}
  .amdhsa_next_free_vgpr {vgpr}
  .amdhsa_next_free_sgpr {sgpr}
  .amdhsa_accum_offset {accum}
  .amdhsa_group_segment_fixed_size 0
  .amdhsa_kernarg_size 96
  .amdhsa_user_sgpr_count 2
  .amdhsa_user_sgpr_kernarg_segment_ptr 1
  .amdhsa_system_sgpr_workgroup_id_x 1
.end_amdhsa_kernel
"""


TS = int(os.environ.get("TS", "0"))
WS_TS = 0xF00000
def ts_begin(a):
    if not TS: return
    a("s_memrealtime s[96:97]")
    a("s_memtime s[98:99]")
def ts_mark(a, sreg):
    if not TS: return
    a(f"s_mem{'real' if os.environ.get('RT') else ''}time s[{sreg}:{sreg+1}]")
def ts_end(a, kidx, sWS, sW, extra=()):
    if not TS: return
    a("s_mov_b64 exec, -1")
    a("s_memrealtime s[4:5]")
    a("s_memtime s[6:7]")
    a("s_waitcnt lgkmcnt(0)")
    a("v_mov_b32 v0, s96"); a("v_mov_b32 v1, s98"); a("v_mov_b32 v2, s4"); a("v_mov_b32 v3, s6")
    ex = list(extra) + [None] * (4 - len(extra))
    for i, e in enumerate(ex):
        a(f"v_mov_b32 v{4+i}, " + (f"s{e}" if e is not None else "0"))
    a("s_lshl_b32 s4, s2, 4")
    a(f"s_add_u32 s4, s4, s{sW}")
    a("s_lshl_b32 s4, s4, 5")
    a(f"s_add_u32 s4, s4, {WS_TS + kidx * 0x20000}")
    a("v_mov_b32 v8, 0")
    a("s_mov_b64 exec, 1")
    a(f"buffer_store_dwordx4 v[0:3], v8, s[{sWS}:{sWS+3}], s4 offen")
    a(f"buffer_store_dwordx4 v[4:7], v8, s[{sWS}:{sWS+3}], s4 offen offset:16")
def gen_k1(name, sentinel=False, newv=False):
    QSC = QS2 if newv else QSCALE
    a = Asm()
    a.label(name)
    HIMG, QIMG, EIMG = 0, 114688, 147456
    sX, sW1, sWQ, sKV, sWS, sTR = 36, 40, 44, 48, 52, 56
    sTB, sNB, sW, sM0H, sM0Q, sT0, sT1, sTYPE, sSEL = 60, 61, 62, 63, 64, 65, 69, 68, 70
    sMASK = 66
    vLane, vTok, vG4 = 1, 2, 3
    vXo0, vXo1, vHsrc, vQsrc, vHa0, vHa1, vQa0, vQa1, vEa = 4, 5, 6, 7, 8, 9, 10, 11, 12
    vT = [13, 14, 15, 16, 17, 18, 19, 20]
    ACC = 32
    def acc(ct, tt): return ACC + (ct * 2 + tt) * 4
    ACCE = ACC + 72
    WF = 108
    def wf(buf, ct): return WF + (buf * 10 + ct) * 4
    TRV = 188
    def xr(tt, ks): return (tt * 16 + ks) * 4

    a("s_cmp_ge_u32 s2, 256")
    a("s_cbranch_scc1 K1_END")
    ts_begin(a)
    a("s_load_dwordx16 s[16:31], s[0:1], 0")
    a("s_load_dwordx2 s[32:33], s[0:1], 64")
    a("s_load_dwordx2 s[34:35], s[0:1], 88")
    a(f"s_and_b32 s{sTB}, s2, 3")
    a(f"s_lshr_b32 s{sT0}, s2, 3")
    a(f"s_and_b32 s{sT0}, s{sT0}, 3")
    a(f"s_lshl_b32 s{sT0}, s{sT0}, 2")
    a(f"s_or_b32 s{sTB}, s{sTB}, s{sT0}")
    a(f"s_lshr_b32 s{sNB}, s2, 2")
    a(f"s_and_b32 s{sNB}, s{sNB}, 1")
    a(f"s_lshr_b32 s{sT0}, s2, 5")
    a(f"s_lshl_b32 s{sT0}, s{sT0}, 1")
    a(f"s_or_b32 s{sNB}, s{sNB}, s{sT0}")
    a(f"s_lshr_b32 s{sTYPE}, s{sNB}, 1")
    a(f"s_and_b32 s{sSEL}, s{sNB}, 1")
    a(f"v_lshrrev_b32 v{vT[0]}, 6, v0")
    a(f"v_and_b32 v{vLane}, 63, v0")
    a(f"v_readfirstlane_b32 s{sW}, v{vT[0]}")
    a(f"v_and_b32 v{vTok}, 15, v{vLane}")
    a(f"v_lshrrev_b32 v{vG4}, 4, v{vLane}")
    a(f"s_mov_b32 s{sMASK}, -1")
    a(f"s_mov_b32 s{sMASK+1}, 0x00ffffff")
    a(f"s_lshl_b32 s{sT0}, s{sTB}, 7")
    a(f"s_lshl_b32 s{sT1}, s{sW}, 5")
    a(f"s_add_u32 s{sT0}, s{sT0}, s{sT1}")
    a(f"s_lshl_b32 s{sT1}, s{sSEL}, 4")
    a(f"s_add_u32 s{sT0}, s{sT0}, s{sT1}")
    a(f"v_add_u32 v{vT[0]}, s{sT0}, v{vTok}")
    a(f"v_lshlrev_b32 v{vT[0]}, 10, v{vT[0]}")
    a(f"v_lshl_add_u32 v{vXo0}, v{vG4}, 4, v{vT[0]}")
    a(f"v_xor_b32 v{vXo1}, 0x4000, v{vXo0}")
    XM = os.environ.get("K1X", "")
    if XM == "lin":
        a(f"s_lshl_b32 s{sT0}, s{sTB}, 2")
        a(f"s_add_u32 s{sT0}, s{sT0}, s{sW}")
        a(f"s_lshl_b32 s{sT0}, s{sT0}, 15")
        a(f"v_lshlrev_b32 v25, 4, v{vLane}")
        a(f"v_add_u32 v25, s{sT0}, v25")
        a(f"v_add_u32 v26, 16384, v25")
    if XM == "pair":
        a(f"v_lshl_add_u32 v25, v{vG4}, 4, v{vXo0}")
        a(f"v_lshl_add_u32 v26, v{vG4}, 4, v{vXo1}")
    a(f"v_mul_u32_u24 v{vT[0]}, 4682, v{vLane}")
    a(f"v_lshrrev_b32 v{vT[0]}, 16, v{vT[0]}")
    a(f"v_mul_u32_u24 v{vT[1]}, 14, v{vT[0]}")
    a(f"v_sub_u32 v{vT[1]}, v{vLane}, v{vT[1]}")
    a(f"s_and_b32 s{sT0}, s{sW}, 1")
    a(f"s_lshl_b32 s{sT0}, s{sT0}, 1")
    a(f"s_lshr_b32 s{sT1}, s{sW}, 1")
    a(f"s_or_b32 s{sT0}, s{sT0}, s{sT1}")
    a(f"s_lshl_b32 s{sT0}, s{sT0}, 2")
    a(f"v_add_u32 v{vT[0]}, s{sT0}, v{vT[0]}")
    a(f"v_mul_u32_u24 v{vT[0]}, 3584, v{vT[0]}")
    a(f"v_lshl_add_u32 v{vT[0]}, v{vT[1]}, 4, v{vT[0]}")
    a(f"s_mul_i32 s{sT0}, s{sNB}, 224")
    a(f"v_add_u32 v{vHsrc}, s{sT0}, v{vT[0]}")
    a(f"s_mul_i32 s{sM0H}, s{sW}, 896")
    a(f"v_lshrrev_b32 v{vT[0]}, 2, v{vLane}")
    a(f"v_and_b32 v{vT[1]}, 3, v{vT[0]}")
    a(f"v_bfe_u32 v{vT[2]}, v{vT[0]}, 2, 1")
    a(f"v_bfe_u32 v{vT[3]}, v{vT[0]}, 3, 1")
    a(f"v_lshl_add_u32 v{vT[1]}, v{vT[2]}, 3, v{vT[1]}")
    a(f"v_lshl_add_u32 v{vT[1]}, v{vT[3]}, 2, v{vT[1]}")
    a(f"s_lshl_b32 s{sT0}, s{sW}, 4")
    a(f"v_add_u32 v{vT[1]}, s{sT0}, v{vT[1]}")
    a(f"v_lshlrev_b32 v{vT[1]}, 10, v{vT[1]}")
    a(f"v_and_b32 v{vT[3]}, 3, v{vLane}")
    a(f"v_lshlrev_b32 v{vT[2]}, 1, v{vT[2]}")
    a(f"v_xor_b32 v{vT[3]}, v{vT[3]}, v{vT[2]}")
    a(f"v_lshl_add_u32 v{vT[1]}, v{vT[3]}, 4, v{vT[1]}")
    a(f"s_lshl_b32 s{sT0}, s{sNB}, 6")
    a(f"v_add_u32 v{vQsrc}, s{sT0}, v{vT[1]}")
    a(f"s_lshl_b32 s{sM0Q}, s{sW}, 10")
    a(f"s_add_u32 s{sM0Q}, s{sM0Q}, {QIMG}")
    a(f"v_lshrrev_b32 v{vT[0]}, 1, v{vG4}")
    a(f"v_lshlrev_b32 v{vT[0]}, 4, v{vT[0]}")
    a(f"v_and_b32 v{vT[1]}, 1, v{vG4}")
    a(f"v_lshl_add_u32 v{vT[0]}, v{vT[1]}, 2, v{vT[0]}")
    a(f"v_lshrrev_b32 v{vT[2]}, 2, v{vTok}")
    a(f"v_add_u32 v{vT[0]}, v{vT[0]}, v{vT[2]}")
    a(f"v_and_b32 v{vT[2]}, 3, v{vTok}")
    a(f"v_lshlrev_b32 v{vT[2]}, 3, v{vT[2]}")
    a(f"v_mul_u32_u24 v{vT[3]}, 224, v{vT[0]}")
    a(f"v_add_u32 v{vHa0}, v{vT[3]}, v{vT[2]}")
    a(f"v_add_u32 v{vHa1}, 57344, v{vHa0}")
    a(f"v_lshl_add_u32 v{vT[3]}, v{vT[0]}, 6, v{vT[2]}")
    a(f"v_add_u32 v{vT[3]}, {QIMG}, v{vT[3]}")
    a(f"v_lshl_add_u32 v{vQa0}, v{vT[1]}, 5, v{vT[3]}")
    a(f"v_xor_b32 v{vQa1}, 32, v{vQa0}")
    a(f"v_lshl_add_u32 v{vT[3]}, v{vT[0]}, 5, v{vT[2]}")
    a(f"v_add_u32 v{vEa}, {EIMG}, v{vT[3]}")
    a("s_waitcnt lgkmcnt(0)")
    ts_mark(a, 8)
    srd(a, sX, 16, 0x200000)
    srd(a, sW1, 28, 512 * 3584)
    srd(a, sWQ, 18, 0x80000)
    srd(a, sWS, 34, WS_SIZE)
    if sentinel:
        for r in range(4): a(f"v_mov_b32 v{200+r}, -1")
        a(f"v_lshlrev_b32 v204, 4, v0")
        a(f"s_lshl_b32 s{sT0}, s2, 13")
        a(f"s_add_u32 s{sT0}, s{sT0}, {WS_OF}")
        a(f"buffer_store_dwordx4 v[200:203], v204, s[{sWS}:{sWS+3}], s{sT0} offen")
        a(f"s_add_u32 s{sT0}, s{sT0}, 4096")
        a(f"buffer_store_dwordx4 v[200:203], v204, s[{sWS}:{sWS+3}], s{sT0} offen")
    a(f"s_cmp_eq_u32 s{sTYPE}, 0")
    a(f"s_cselect_b32 s{sKV}, s20, s22")
    a(f"s_cselect_b32 s{sKV+1}, s21, s23")
    a(f"s_mov_b32 s{sKV+2}, 16384")
    a(f"s_mov_b32 s{sKV+3}, 0x00020000")

    vm = [0]
    a(f"s_cmp_gt_u32 s{sTYPE}, 1")
    a("s_cbranch_scc1 K1_NOKV")
    a(f"v_lshrrev_b32 v{vT[0]}, 1, v{vLane}")
    a(f"v_and_b32 v{vT[1]}, 0x13, v{vT[0]}")
    a(f"v_bfe_u32 v{vT[2]}, v{vT[0]}, 2, 1")
    a(f"v_bfe_u32 v{vT[3]}, v{vT[0]}, 3, 1")
    a(f"v_lshl_add_u32 v{vT[1]}, v{vT[2]}, 3, v{vT[1]}")
    a(f"v_lshl_add_u32 v{vT[1]}, v{vT[3]}, 2, v{vT[1]}")
    a(f"v_lshlrev_b32 v{vT[1]}, 5, v{vT[1]}")
    a(f"v_and_b32 v{vT[2]}, 1, v{vLane}")
    a(f"v_lshl_add_u32 v{vT[1]}, v{vT[2]}, 4, v{vT[1]}")
    a(f"s_lshl_b32 s{sT0}, s{sW}, 12")
    a(f"v_add_u32 v{vT[1]}, s{sT0}, v{vT[1]}")
    a(f"s_add_u32 m0, s{sT0}, {EIMG}")
    for il in range(4):
        a(f"buffer_load_dwordx4 v{vT[1]}, s[{sKV}:{sKV+3}], 0 offen offset:{il*1024} lds")
    a("s_branch K1_EDONE")
    a.label("K1_NOKV")
    a(f"s_cmp_eq_u32 s{sTYPE}, 2")
    a("s_cbranch_scc0 K1_EDONE")
    a(f"s_lshl_b32 s{sT0}, s{sW}, 7")
    a(f"v_add_u32 v{vT[4]}, s{sT0}, v{vLane}")
    a(f"v_lshlrev_b32 v{vT[5]}, 1, v{vT[4]}")
    a(f"global_load_ushort v{vT[6]}, v{vT[5]}, s[32:33]")
    a(f"global_load_ushort v{vT[7]}, v{vT[5]}, s[32:33] offset:128")
    a(f"v_and_b32 v{vT[1]}, 0xfffffff3, v{vT[4]}")
    a(f"v_bfe_u32 v{vT[2]}, v{vT[4]}, 2, 1")
    a(f"v_bfe_u32 v{vT[3]}, v{vT[4]}, 3, 1")
    a(f"v_lshl_add_u32 v{vT[1]}, v{vT[2]}, 3, v{vT[1]}")
    a(f"v_lshl_add_u32 v{vT[1]}, v{vT[3]}, 2, v{vT[1]}")
    a(f"v_lshlrev_b32 v{vT[1]}, 5, v{vT[1]}")
    a(f"v_add_u32 v{vT[1]}, {EIMG}, v{vT[1]}")
    a.label("K1_EDONE")

    def issue_chunk_ops(c):
        g = []
        for q in range(4):
            ks = 2 * c + (q >> 1)
            g.append([f"s_add_u32 m0, s{sM0H}, {(16*c+4*q)*896}",
                      f"s_mov_b32 s{sT0}, {(64*c+16*q)*3584}",
                      f"s_mov_b64 exec, s[{sMASK}:{sMASK+1}]",
                      f"buffer_load_dwordx4 v{vHsrc}, s[{sW1}:{sW1+3}], s{sT0} offen lds",
                      f"s_mov_b64 exec, -1"])
            tt = q & 1
            XM = os.environ.get("K1X", "")
            if XM == "lin":
                g.append([f"s_mov_b32 s{sT1}, {ks*1024}",
                          f"buffer_load_dwordx4 a[{xr(tt,ks)}:{xr(tt,ks)+3}], v{25 if tt==0 else 26}, s[{sX}:{sX+3}], s{sT1} offen"])
            elif XM == "pair":
                g.append([f"buffer_load_dwordx4 a[{xr(tt,ks)}:{xr(tt,ks)+3}], v{25 if tt==0 else 26}, s[{sX}:{sX+3}], 0 offen offset:{(ks>>1)*128+(ks&1)*16}"])
            elif XM == "rot":
                g.append([f"s_add_u32 s{sT1}, s2, {c}",
                          f"s_lshr_b32 s87, s2, 3",
                          f"s_add_u32 s{sT1}, s{sT1}, s87",
                          f"s_and_b32 s{sT1}, s{sT1}, 7",
                          f"s_lshl_b32 s{sT1}, s{sT1}, 7",
                          f"buffer_load_dwordx4 a[{xr(tt,ks)}:{xr(tt,ks)+3}], v{vXo0 if tt==0 else vXo1}, s[{sX}:{sX+3}], s{sT1} offen offset:{(ks&1)*64}"])
            else:
                g.append([f"buffer_load_dwordx4 a[{xr(tt,ks)}:{xr(tt,ks)+3}], v{vXo0 if tt==0 else vXo1}, s[{sX}:{sX+3}], 0 offen offset:{ks*64}"])
            if q == 0:
                g.append([f"s_add_u32 m0, s{sM0Q}, {4*c*1024}",
                          f"s_mov_b32 s{sT1}, {64*c*1024}",
                          f"buffer_load_dwordx4 v{vQsrc}, s[{sWQ}:{sWQ+3}], s{sT1} offen lds"])
        return g

    chunk_end = {}
    SKIP = os.environ.get("K1SKIP", "")
    def issue_group(grp):
        txt = ' '.join(grp)
        kind = 'x' if ' a[' in txt else ('h' if f"v{vHsrc}," in txt else ('q' if f"v{vQsrc}," in txt else 't'))
        if kind in SKIP: return
        for l in grp: a(l)
        vm[0] += 1

    PRE = 3
    for c in range(PRE):
        for grp in issue_chunk_ops(c): issue_group(grp)
        chunk_end[c] = vm[0]
    a(f"s_cmp_eq_u32 s{sTYPE}, 2")
    a("s_cbranch_scc0 K1_NOGATE")
    a(f"s_waitcnt vmcnt({vm[0]})")
    a(f"ds_write_b16 v{vT[1]}, v{vT[6]}")
    a(f"ds_write_b16 v{vT[1]}, v{vT[7]} offset:2048")
    a.label("K1_NOGATE")
    sSrc = [72, 74, 76]
    sDst = [78, 79, 80]
    sSh1 = 81
    vN2, vTA, vTB, vL16 = 21, 22, 23, 24
    a(f"v_and_b32 v{vN2}, 31, v{vLane}")
    a(f"v_lshlrev_b32 v{vN2}, 1, v{vN2}")
    a(f"v_lshrrev_b32 v{vT[0]}, 5, v{vLane}")
    a(f"v_lshl_add_u32 v{vTA}, v{vT[0]}, 12, v{vN2}")
    a(f"v_lshlrev_b32 v{vL16}, 4, v{vLane}")
    a(f"s_mul_i32 s{sT0}, s{sNB}, 112")
    a(f"s_lshr_b32 s{sT1}, s{sW}, 1")
    a(f"s_lshl_b32 s{sT1}, s{sT1}, 5")
    a(f"s_add_u32 s{sT0}, s{sT0}, s{sT1}")
    a(f"s_and_b32 s{sT1}, s{sW}, 1")
    a(f"s_lshl_b32 s{sT1}, s{sT1}, 3")
    a(f"s_add_u32 s{sT0}, s{sT0}, s{sT1}")
    a(f"s_lshl_b32 s{sT0}, s{sT0}, 10")
    a(f"s_lshl_b32 s{sT1}, s{sTB}, 6")
    a(f"s_add_u32 s{sSrc[0]}, s{sT0}, s{sT1}")
    a(f"s_add_u32 s{sSrc[0]+1}, s{sSrc[0]}, {16*1024}")
    a(f"s_mul_i32 s{sT0}, s{sTB}, 112")
    a(f"s_mul_i32 s{sT1}, s{sNB}, 7")
    a(f"s_add_u32 s{sT0}, s{sT0}, s{sT1}")
    a(f"s_add_u32 s{sT0}, s{sT0}, s{sW}")
    a(f"s_lshl_b32 s{sT0}, s{sT0}, 10")
    a(f"s_add_u32 s{sDst[0]}, s{sT0}, {WS_W2F}")
    a(f"s_lshl_b32 s{sT0}, s{sNB}, 15")
    a(f"s_lshl_b32 s{sT1}, s{sTB}, 6")
    a(f"s_add_u32 s{sT0}, s{sT0}, s{sT1}")
    a(f"s_add_u32 s{sSrc[2]}, s{sT0}, {16*1024}")
    a(f"s_add_u32 s{sSrc[2]+1}, s{sSrc[2]}, {8*1024}")
    a(f"s_lshl_b32 s82, s{sTB}, 5")
    a(f"s_lshl_b32 s83, s{sNB}, 1")
    a(f"s_add_u32 s82, s82, s83")
    a(f"s_lshl_b32 s82, s82, 10")
    a(f"s_add_u32 s82, s82, {WS_WOF}")
    a(f"s_add_u32 s{sDst[2]}, s82, 1024")
    a(f"s_mul_i32 s84, s{sNB}, 112")
    a(f"s_lshl_b32 s85, s{sW}, 3")
    a(f"s_add_u32 s85, s85, 64")
    a(f"s_cmp_eq_u32 s{sW}, 2")
    a(f"s_cselect_b32 s85, 96, s85")
    a(f"s_mov_b32 s86, {16*1024}")
    a(f"s_cselect_b32 s86, {4*1024}, s86")
    a(f"s_cselect_b32 s{sSh1}, 13, 12")
    a(f"s_add_u32 s84, s84, s85")
    a(f"s_lshl_b32 s84, s84, 10")
    a(f"s_add_u32 s84, s84, s{sT1}")
    a(f"s_add_u32 s85, s{sDst[0]}, {4*1024}")
    a(f"s_cmp_eq_u32 s{sW}, 3")
    a(f"s_cselect_b32 s{sSrc[1]}, s{sT0}, s84")
    a(f"s_cselect_b32 s86, {8*1024}, s86")
    a(f"s_cselect_b32 s{sDst[1]}, s82, s85")
    a(f"s_cselect_b32 s{sTR}, s24, s30")
    a(f"s_cselect_b32 s{sTR+1}, s25, s31")
    a(f"s_mov_b32 s{sTR+2}, {1792*1024}")
    a(f"s_cselect_b32 s{sTR+2}, 0x80000, s{sTR+2}")
    a(f"s_mov_b32 s{sTR+3}, 0x00020000")
    a(f"s_add_u32 s{sSrc[1]+1}, s{sSrc[1]}, s86")
    a(f"v_lshlrev_b32 v{vTB}, s{sSh1}, v{vT[0]}")
    a(f"v_add_u32 v{vTB}, v{vTB}, v{vN2}")
    sW2, sWO = 88, 92
    srd(a, sW2, 30, 1792 * 1024)
    srd(a, sWO, 24, 0x80000)
    TRL = 200
    def tr_groups():
        g = []
        for slot, (sr, vo) in enumerate([(sW2, vTA), (sTR, vTB), (sWO, vTA)]):
            for j in range(8):
                g.append([f"buffer_load_ushort v{TRL+slot*8+j}, v{vo}, s[{sr}:{sr+3}], s{sSrc[slot]+(j>>2)} offen offset:{(j&3)*1024}"])
        return g
    for r in range(ACC, ACC + 76):
        a(f"v_mov_b32 v{r}, 0")

    def frag_reads(ks, buf):
        rd = []
        for ct in range(7):
            base = vHa0 if ks < 8 else vHa1
            off = (ks % 8) * 7168 + ct * 32
            for t in range(2):
                rd.append(f"ds_read_b64_tr_b16 v[{wf(buf,ct)+2*t}:{wf(buf,ct)+2*t+1}], v{base} offset:{off+t*1792}")
        for q in range(2):
            for t in range(2):
                rd.append(f"ds_read_b64_tr_b16 v[{wf(buf,7+q)+2*t}:{wf(buf,7+q)+2*t+1}], v{vQa0 if q==0 else vQa1} offset:{ks*2048+t*512}")
        for t in range(2):
            rd.append(f"ds_read_b64_tr_b16 v[{wf(buf,9)+2*t}:{wf(buf,9)+2*t+1}], v{vEa} offset:{ks*1024+t*256}")
        return rd

    def wait_chunk(c):
        n = vm[0] - chunk_end[c]
        assert n <= 63
        a(f"s_waitcnt vmcnt({n}) lgkmcnt(0)")
        a("s_barrier")

    wait_chunk(0)
    ts_mark(a, 10)
    for l in frag_reads(0, 0): a(l)
    pending = []
    for ks in range(16):
        buf = ks & 1
        c = ks >> 1
        if ks % 2 == 0 and c + PRE < 8:
            pending = issue_chunk_ops(c + PRE)
            pend_chunk = c + PRE
        if ks == 10:
            pending = tr_groups()
            pend_chunk = 'tr'
        nxt = []
        if ks + 1 < 16:
            if (ks + 1) % 2 == 0:
                wait_chunk((ks + 1) // 2)
                if ks + 1 == 8: ts_mark(a, 12)
            else:
                a("s_waitcnt lgkmcnt(0)")
            nxt = frag_reads(ks + 1, buf ^ 1)
        else:
            a("s_waitcnt lgkmcnt(0)")
        mf = []
        for ct in range(9):
            for tt in range(2):
                mf.append(f"v_mfma_f32_16x16x32_bf16 v[{acc(ct,tt)}:{acc(ct,tt)+3}], v[{wf(buf,ct)}:{wf(buf,ct)+3}], a[{xr(tt,ks)}:{xr(tt,ks)+3}], v[{acc(ct,tt)}:{acc(ct,tt)+3}]")
        mf.append(f"v_mfma_f32_16x16x32_bf16 v[{ACCE}:{ACCE+3}], v[{wf(buf,9)}:{wf(buf,9)+3}], a[{xr(0,ks)}:{xr(0,ks)+3}], v[{ACCE}:{ACCE+3}]")
        for i, m in enumerate(mf):
            a(m)
            if i < 10:
                for l in nxt[2*i:2*i+2]: a(l)
            else:
                if pending and ((i - 10) % 2 == 0 or pend_chunk == 'tr'):
                    issue_group(pending.pop(0))
                    if not pending: chunk_end[pend_chunk] = vm[0]
        if ks % 2 == 1 and pend_chunk != 'tr':
            while pending:
                issue_group(pending.pop(0))
                if not pending: chunk_end[pend_chunk] = vm[0]
    assert not pending
    ts_mark(a, 84)
    E = 108
    vT32 = [E, E + 1]; vHp = [E + 2, E + 3]; vHl = [E + 4, E + 5]; vQo = [E + 6, E + 7]
    D = E + 8
    a(f"s_lshl_b32 s{sT0}, s{sSEL}, 4")
    a(f"v_add_u32 v{vT32[0]}, s{sT0}, v{vTok}")
    a(f"v_xor_b32 v{vT32[1]}, 16, v{vT32[0]}")
    a(f"v_lshrrev_b32 v{D}, 1, v{vG4}")
    a(f"v_and_b32 v{D+1}, 1, v{vG4}")
    for tt in range(2):
        a(f"v_lshlrev_b32 v{D+2}, 4, v{vT32[tt]}")
        a(f"v_lshl_add_u32 v{D+3}, v{D}, 10, v{D+2}")
        a(f"v_lshl_add_u32 v{vHp[tt]}, v{D+1}, 9, v{D+3}")
        a(f"v_lshl_add_u32 v{D+3}, v{D}, 9, v{D+2}")
        a(f"v_lshl_add_u32 v{vHl[tt]}, v{D+1}, 3, v{D+3}")
        a(f"v_lshlrev_b32 v{D+3}, 3, v{vG4}")
        a(f"v_sub_u32 v{vQo[tt]}, v{vXo0 if tt==0 else vXo1}, v{D+3}")
    sH, sH2, sQd, sTK = 72, 73, 74, 75
    a(f"s_lshl_b32 s{sTK}, s{sTB}, 2")
    a(f"s_add_u32 s{sTK}, s{sTK}, s{sW}")
    a(f"s_mul_i32 s{sT0}, s{sTK}, 112")
    a(f"s_mul_i32 s{sT1}, s{sNB}, 7")
    a(f"s_add_u32 s{sT0}, s{sT0}, s{sT1}")
    a(f"s_lshl_b32 s{sT0}, s{sT0}, 10")
    a(f"s_add_u32 s{sH}, s{sT0}, {WS_HF}")
    a(f"s_add_u32 s{sH2}, s{sH}, 4096")
    a(f"s_lshl_b32 s{sQd}, s{sNB}, 6")
    if WS_Q: a(f"s_add_u32 s{sQd}, s{sQd}, {WS_Q}")
    d = D + 4
    for tt in range(2):
        for p in range(3):
            for h in range(2):
                r = acc(2*p + h, tt)
                a(f"v_cvt_pk_bf16_f32 v{d+2*h}, v{r}, v{r+1}")
                a(f"v_cvt_pk_bf16_f32 v{d+2*h+1}, v{r+2}, v{r+3}")
            for k in range(4):
                a(f"v_pk_max_i16 v{d+k}, v{d+k}, 0")
            so, off = (sH, p * 2048) if p < 2 else (sH2, 0)
            a(f"buffer_store_dwordx4 v[{d}:{d+3}], v{vHp[tt]}, s[{sWS}:{sWS+3}], s{so} offen offset:{off}")
            d = D + 4 + ((d - (D + 4) + 4) % 32)
        r = acc(6, tt)
        a(f"v_cvt_pk_bf16_f32 v{d}, v{r}, v{r+1}")
        a(f"v_cvt_pk_bf16_f32 v{d+1}, v{r+2}, v{r+3}")
        a(f"v_pk_max_i16 v{d}, v{d}, 0")
        a(f"v_pk_max_i16 v{d+1}, v{d+1}, 0")
        a(f"buffer_store_dwordx2 v[{d}:{d+1}], v{vHl[tt]}, s[{sWS}:{sWS+3}], s{sH2} offen offset:2048")
        d = D + 4 + ((d - (D + 4) + 4) % 32)
        for q in range(2):
            r = acc(7 + q, tt)
            for k in range(4):
                a(f"v_mul_f32 v{r+k}, {f32hex(QSC)}, v{r+k}")
            a(f"v_cvt_pk_bf16_f32 v{d}, v{r}, v{r+1}")
            a(f"v_cvt_pk_bf16_f32 v{d+1}, v{r+2}, v{r+3}")
            a(f"buffer_store_dwordx2 v[{d}:{d+1}], v{vQo[tt]}, s[{sWS}:{sWS+3}], s{sQd} offen offset:{q*32}")
            d = D + 4 + ((d - (D + 4) + 4) % 32)
    a("s_waitcnt vmcnt(20)")
    for slot in range(3):
        for q in range(4):
            a(f"v_lshl_or_b32 v{TRV+slot*4+q}, v{TRL+slot*8+2*q+1}, 16, v{TRL+slot*8+2*q}")
        a(f"buffer_store_dwordx4 v[{TRV+slot*4}:{TRV+slot*4+3}], v{vL16}, s[{sWS}:{sWS+3}], s{sDst[slot]} offen")
    T = D + 40
    a(f"s_cmp_gt_u32 s{sTYPE}, 2")
    a("s_cbranch_scc1 K1_FIN")
    a(f"s_cmp_eq_u32 s{sTYPE}, 1")
    a("s_cbranch_scc1 K1_VST")
    a(f"s_cmp_eq_u32 s{sTYPE}, 2")
    a("s_cbranch_scc1 K1_GST")
    a(f"v_cvt_pk_bf16_f32 v{T}, v{ACCE}, v{ACCE+1}")
    a(f"v_cvt_pk_bf16_f32 v{T+1}, v{ACCE+2}, v{ACCE+3}")
    a(f"s_lshl_b32 s{sT0}, s{sTK}, 10")
    a(f"s_add_u32 s{sT0}, s{sT0}, {WS_KF}")
    a(f"buffer_store_dwordx2 v[{T}:{T+1}], v{vHl[0]}, s[{sWS}:{sWS+3}], s{sT0} offen")
    a(f"v_mul_f32 v{T+2}, v{ACCE}, v{ACCE}")
    for k in range(1, 4):
        a(f"v_fmac_f32 v{T+2}, v{ACCE+k}, v{ACCE+k}")
    a(f"v_lshlrev_b32 v{T+3}, 2, v{vLane}")
    for mask in (16, 32):
        a(f"v_xor_b32 v{T+4}, {mask*4}, v{T+3}")
        a(f"ds_bpermute_b32 v{T+5}, v{T+4}, v{T+2}")
        a("s_waitcnt lgkmcnt(0)")
        a(f"v_add_f32 v{T+2}, v{T+2}, v{T+5}")
    for mask in (1, 2, 4, 8):
        a(f"v_xor_b32 v{T+4}, {mask*4}, v{T+3}")
        a(f"ds_bpermute_b32 v{T+5}, v{T+4}, v{T+2}")
        a("s_waitcnt lgkmcnt(0)")
        a(f"v_max_u32 v{T+2}, v{T+2}, v{T+5}" if newv else f"v_max_f32 v{T+2}, v{T+2}, v{T+5}")
    a(f"s_lshl_b32 s{sT0}, s{sTK}, 1")
    a(f"s_add_u32 s{sT0}, s{sT0}, s{sSEL}")
    a(f"s_lshl_b32 s{sT0}, s{sT0}, 2")
    a(f"s_add_u32 s{sT0}, s{sT0}, {WS_KMAX}")
    a(f"v_mov_b32 v{T+4}, 0")
    a("s_mov_b64 exec, 1")
    a(f"buffer_store_dword v{T+2}, v{T+4}, s[{sWS}:{sWS+3}], s{sT0} offen")
    a("s_branch K1_FIN")
    a.label("K1_VST")
    a(f"v_cvt_pk_bf16_f32 v{T}, v{ACCE}, v{ACCE+1}")
    a(f"v_cvt_pk_bf16_f32 v{T+1}, v{ACCE+2}, v{ACCE+3}")
    a(f"v_bfe_u32 v{T+2}, v{vTok}, 2, 1")
    a(f"v_lshlrev_b32 v{T+2}, 8, v{T+2}")
    a(f"v_lshl_add_u32 v{T+2}, v{vG4}, 6, v{T+2}")
    a(f"v_lshrrev_b32 v{T+3}, 3, v{vTok}")
    a(f"v_lshl_add_u32 v{T+2}, v{T+3}, 3, v{T+2}")
    a(f"v_and_b32 v{T+3}, 3, v{vTok}")
    a(f"v_lshl_add_u32 v{T+2}, v{T+3}, 1, v{T+2}")
    a(f"s_lshl_b32 s{sT0}, s{sTK}, 10")
    a(f"s_lshl_b32 s{sT1}, s{sSEL}, 9")
    a(f"s_add_u32 s{sT0}, s{sT0}, s{sT1}")
    a(f"s_add_u32 s{sT0}, s{sT0}, {WS_VF}")
    def vst(r0, r1, so):
        a(f"buffer_store_short v{r0}, v{T+2}, s[{sWS}:{sWS+3}], s{so} offen")
        a(f"buffer_store_short_d16_hi v{r0}, v{T+2}, s[{sWS}:{sWS+3}], s{so} offen offset:16")
        a(f"buffer_store_short v{r1}, v{T+2}, s[{sWS}:{sWS+3}], s{so} offen offset:32")
        a(f"buffer_store_short_d16_hi v{r1}, v{T+2}, s[{sWS}:{sWS+3}], s{so} offen offset:48")
    if not newv:
        vst(T, T + 1, sT0)
    else:
        a(f"s_add_u32 s{sT1}, s{sT0}, {WS_VB - WS_VF}")
        vst(T, T + 1, sT1)
        for q in range(2):
            a(f"v_lshlrev_b32 v{T+4+2*q}, 16, v{T+q}")
            a(f"v_and_b32 v{T+5+2*q}, 0xffff0000, v{T+q}")
        for q in range(2):
            a(f"v_cvt_pkrtz_f16_f32 v{T+8+q}, v{T+4+2*q}, v{T+5+2*q}")
        vst(T + 8, T + 9, sT0)
        for q in range(4):
            a(f"v_and_b32 v{T+4+q}, 0x7fffffff, v{T+4+q}")
        a(f"v_max_u32 v{T+4}, v{T+4}, v{T+5}")
        a(f"v_max3_u32 v{T+4}, v{T+4}, v{T+6}, v{T+7}")
        a(f"v_lshlrev_b32 v{T+3}, 2, v{vLane}")
        for mask in (1, 2, 4, 8, 16, 32):
            a(f"v_xor_b32 v{T+6}, {mask*4}, v{T+3}")
            a(f"ds_bpermute_b32 v{T+5}, v{T+6}, v{T+4}")
            a("s_waitcnt lgkmcnt(0)")
            a(f"v_max_u32 v{T+4}, v{T+4}, v{T+5}")
        a(f"s_lshl_b32 s{sT0}, s{sTK}, 1")
        a(f"s_add_u32 s{sT0}, s{sT0}, s{sSEL}")
        a(f"s_lshl_b32 s{sT0}, s{sT0}, 2")
        a(f"s_add_u32 s{sT0}, s{sT0}, {WS_VMAX}")
        a(f"v_mov_b32 v{T+6}, 0")
        a("s_mov_b64 exec, 1")
        a(f"buffer_store_dword v{T+4}, v{T+6}, s[{sWS}:{sWS+3}], s{sT0} offen")
    a("s_branch K1_FIN")
    a.label("K1_GST")
    a(f"v_mul_f32 v{T}, {f32hex(-1.4426950408889634)}, v{ACCE}")
    a(f"v_exp_f32 v{T}, v{T}")
    a(f"v_add_f32 v{T}, 1.0, v{T}")
    a(f"v_rcp_f32 v{T}, v{T}")
    a(f"v_lshlrev_b32 v{T+1}, 2, v{vT32[0]}")
    a(f"s_lshl_b32 s{sT0}, s{sTK}, 7")
    a(f"s_add_u32 s{sT0}, s{sT0}, {WS_G}")
    a("s_mov_b64 exec, 0xffff")
    a(f"buffer_store_dword v{T}, v{T+1}, s[{sWS}:{sWS+3}], s{sT0} offen")
    a.label("K1_FIN")
    ts_end(a, 0, sWS, sW, (8, 10, 12, 84))
    a("s_endpgm")
    a.label("K1_END")
    a("s_endpgm")
    return a


K2_LDS = 131072 + 4096
def gen_k2(name):
    a = Asm()
    a.label(name)
    sWS = 8
    sW, sTB, sHG, sT0, sT1, sCnt, sPh, sOff, sTK, sHD = 12, 13, 14, 15, 16, 17, 18, 19, 20, 21
    sKM = 22
    vLane, vK, vV, vVi, vG, vT0, vT1, vT2, vT3 = 1, 2, 3, 4, 5, 6, 7, 96, 97
    Q, KF, V0, V1, P0, P1 = 8, 12, 16, 20, 24, 28
    S = [32, 48]
    O, C = 64, 80
    def r4(x): return f"v[{x}:{x+3}]"
    def r16(x): return f"v[{x}:{x+15}]"
    a("s_cmp_ge_u32 s2, 256")
    a("s_cbranch_scc1 K2_END")
    ts_begin(a)
    a("s_load_dwordx2 s[4:5], s[0:1], 88")
    a(f"v_lshrrev_b32 v{vT0}, 6, v0")
    a(f"v_and_b32 v{vLane}, 63, v0")
    a(f"v_readfirstlane_b32 s{sW}, v{vT0}")
    a(f"s_and_b32 s{sTB}, s2, 31")
    a(f"s_lshr_b32 s{sHG}, s2, 5")
    a(f"s_and_b32 s{sT0}, s{sW}, 1")
    a(f"s_lshl_b32 s{sTK}, s{sTB}, 1")
    a(f"s_add_u32 s{sTK}, s{sTK}, s{sT0}")
    a(f"s_lshr_b32 s{sT1}, s{sW}, 1")
    a(f"s_lshl_b32 s{sHD}, s{sHG}, 2")
    a(f"s_add_u32 s{sHD}, s{sHD}, s{sT1}")
    a(f"s_lshl_b32 s{sT0}, s{sT0}, 16")
    a(f"s_lshl_b32 s{sT1}, s{sT1}, 10")
    a(f"s_add_u32 s{sT0}, s{sT0}, s{sT1}")
    a(f"v_lshlrev_b32 v{vK}, 4, v{vLane}")
    a(f"s_mov_b32 m0, s{sT0}")
    a(f"s_add_u32 s{sOff}, s{sT0}, {WS_KF}")
    a(f"v_and_b32 v{vT0}, 31, v{vLane}")
    a(f"v_lshrrev_b32 v{vT1}, 5, v{vLane}")
    a(f"v_lshlrev_b32 v{vT2}, 10, v{vT0}")
    a(f"v_lshl_add_u32 v{vT2}, v{vT1}, 4, v{vT2}")
    a(f"s_lshl_b32 s{sT0}, s{sTK}, 15")
    a(f"s_lshl_b32 s{sT1}, s{sHD}, 5")
    a(f"s_add_u32 s{sT0}, s{sT0}, s{sT1}")
    if WS_Q: a(f"s_add_u32 s{sT0}, s{sT0}, {WS_Q}")
    a(f"v_lshlrev_b32 v{vT3}, 2, v{vT0}")
    a(f"s_lshl_b32 s{sT1}, s{sTK}, 7")
    a(f"s_add_u32 s{sT1}, s{sT1}, {WS_G}")
    a(f"v_lshlrev_b32 v{vG}, 3, v{vLane}")
    a(f"s_mov_b32 s{sKM}, {WS_KMAX}")
    a("s_waitcnt lgkmcnt(0)")
    srd(a, sWS, 4, WS_SIZE)
    W = f"s[{sWS}:{sWS+3}]"
    a(f"buffer_load_dwordx4 {r4(Q)}, v{vT2}, {W}, s{sT0} offen")
    a(f"buffer_load_dwordx2 v[{S[1]}:{S[1]+1}], v{vG}, {W}, s{sKM} offen")
    a(f"buffer_load_dword v{vG}, v{vT3}, {W}, s{sT1} offen")
    for r in range(16):
        a(f"buffer_load_dwordx4 v{vK}, {W}, s{sOff} offen lds")
        if r < 15:
            a(f"s_add_u32 m0, m0, 4096")
            a(f"s_add_u32 s{sOff}, s{sOff}, 4096")
    a(f"v_mov_b32 v{S[0]}, 0x3f803f80")
    a(f"v_mov_b32 v{S[0]+1}, 0x3f803f80")
    a(f"v_lshlrev_b32 v{vT2}, 3, v0")
    a(f"v_add_u32 v{vT2}, 131072, v{vT2}")
    a(f"ds_write_b64 v{vT2}, v[{S[0]}:{S[0]+1}]")
    a(f"v_lshlrev_b32 v{vT2}, 8, v{vT1}")
    a(f"v_lshl_add_u32 v{vT2}, v{vT0}, 4, v{vT2}")
    a(f"v_add_u32 v{vT2}, 65536, v{vT2}")
    a(f"v_mov_b32 v{vT3}, 131072")
    a(f"v_cmp_gt_u32 vcc, 16, v{vT0}")
    a(f"v_cndmask_b32 v{vV}, v{vT3}, v{vT2}, vcc")
    a(f"v_mov_b32 v{vT3}, 2048")
    a(f"v_cndmask_b32 v{vVi}, 0, v{vT3}, vcc")
    for r in range(16):
        a(f"v_mov_b32 v{O+r}, 0")
        a(f"v_mov_b32 v{C+r}, 0")
    for r in range(4):
        a(f"v_mov_b32 v{P1+r}, 0")
    a("s_waitcnt vmcnt(17)")
    km = S[1]
    a(f"v_max_f32 v{km}, v{km}, v{km+1}")
    for sh in (1, 2, 4, 8):
        a(f"v_max_f32_dpp v{km}, v{km}, v{km} row_shr:{sh} row_mask:0xf bank_mask:0xf")
    a(f"v_max_f32_dpp v{km}, v{km}, v{km} row_bcast:15 row_mask:0xa bank_mask:0xf")
    a(f"v_max_f32_dpp v{km}, v{km}, v{km} row_bcast:31 row_mask:0xc bank_mask:0xf")
    a(f"v_readlane_b32 s{sKM}, v{km}, 63")
    a(f"v_mov_b32 v{vT2}, 0")
    for r in range(4):
        a(f"v_dot2_f32_bf16 v{vT2}, v{Q+r}, v{Q+r}, v{vT2}")
    a(f"v_mul_f32 v{vT2}, s{sKM}, v{vT2}")
    a(f"v_cmp_nle_f32 vcc, v{vT2}, 0x45000000" if False else f"v_mov_b32 v{vT3}, 0x45000000")
    a(f"v_cmp_nle_f32 vcc, v{vT2}, v{vT3}")
    a("s_waitcnt vmcnt(14) lgkmcnt(0)")
    a("s_barrier")
    a(f"s_mov_b32 s{sCnt}, 3")
    a(f"s_mov_b32 s{sPh}, 0")
    ts_mark(a, 24)
    a("s_cbranch_vccz K2_FAST")
    a("s_waitcnt vmcnt(0)")
    a("s_barrier")
    a(f"v_mov_b32 v{vT2}, 0xff800000")
    a(f"v_mov_b32 v{vT3}, v{vK}")
    a(f"s_mov_b32 s{sCnt}, 64")
    a.label("K2_MAXLOOP")
    a(f"ds_read_b128 {r4(KF)}, v{vT3}")
    a(f"v_add_u32 v{vT3}, 1024, v{vT3}")
    a("s_waitcnt lgkmcnt(0)")
    a(f"v_mfma_f32_32x32x16_bf16 {r16(S[0])}, {r4(KF)}, {r4(Q)}, {r16(C)}")
    for r in range(0, 16, 2):
        a(f"v_max3_f32 v{vT2}, v{S[0]+r}, v{S[0]+r+1}, v{vT2}")
    a(f"s_sub_u32 s{sCnt}, s{sCnt}, 1")
    a(f"s_cmp_lg_u32 s{sCnt}, 0")
    a("s_cbranch_scc1 K2_MAXLOOP")
    a(f"v_lshlrev_b32 v{vT3}, 2, v{vLane}")
    a(f"v_xor_b32 v{vT3}, 128, v{vT3}")
    a(f"ds_bpermute_b32 v{vT3}, v{vT3}, v{vT2}")
    a("s_waitcnt lgkmcnt(0)")
    a(f"v_max_f32 v{vT2}, v{vT2}, v{vT3}")
    for r in range(16):
        a(f"v_sub_f32 v{C+r}, 0, v{vT2}")
    a(f"s_mov_b32 s{sCnt}, 32")
    a(f"s_mov_b32 s{sPh}, 1")
    a.label("K2_FAST")
    a(f"ds_read_b128 {r4(KF)}, v{vK}")
    a("s_waitcnt lgkmcnt(0)")
    a(f"v_mfma_f32_32x32x16_bf16 {r16(S[0])}, {r4(KF)}, {r4(Q)}, {r16(C)}")
    a(f"ds_read_b128 {r4(KF)}, v{vK} offset:1024")
    a(f"ds_read_b128 {r4(V1)}, v{vV} offset:512")
    a(f"ds_read_b128 {r4(V0)}, v{vV}")
    a.label("K2_LOOP")
    for u in range(2):
        cur, nxt = S[u], S[u ^ 1]
        a("s_waitcnt lgkmcnt(2)")
        a(f"v_mfma_f32_32x32x16_bf16 {r16(nxt)}, {r4(KF)}, {r4(Q)}, {r16(C)}")
        a(f"ds_read_b128 {r4(KF)}, v{vK} offset:{(u+2)*1024}")
        for r in range(0, 4): a(f"v_exp_f32 v{cur+r}, v{cur+r}")
        a("s_waitcnt lgkmcnt(2)")
        a(f"v_mfma_f32_32x32x16_bf16 {r16(O)}, {r4(V1)}, {r4(P1)}, {r16(O)}")
        a(f"ds_read_b128 {r4(V1)}, v{vV} offset:{u*1024+512}")
        for r in range(4, 8): a(f"v_exp_f32 v{cur+r}, v{cur+r}")
        for r in range(4): a(f"v_cvt_pk_bf16_f32 v{P0+r}, v{cur+2*r}, v{cur+2*r+1}")
        for r in range(8, 10): a(f"v_exp_f32 v{cur+r}, v{cur+r}")
        a("s_waitcnt lgkmcnt(2)")
        a(f"v_mfma_f32_32x32x16_bf16 {r16(O)}, {r4(V0)}, {r4(P0)}, {r16(O)}")
        a(f"ds_read_b128 {r4(V0)}, v{vV} offset:{(u+1)*1024}")
        for r in range(10, 16): a(f"v_exp_f32 v{cur+r}, v{cur+r}")
        if u == 1:
            a(f"v_add_u32 v{vK}, 2048, v{vK}")
            a(f"v_add_u32 v{vV}, v{vVi}, v{vV}")
        for r in range(4): a(f"v_cvt_pk_bf16_f32 v{P1+r}, v{cur+8+2*r}, v{cur+8+2*r+1}")
    a(f"s_sub_u32 s{sCnt}, s{sCnt}, 1")
    a(f"s_cmp_lg_u32 s{sCnt}, 0")
    a("s_cbranch_scc1 K2_LOOP")
    a(f"s_cmp_lg_u32 s{sPh}, 0")
    a("s_cbranch_scc1 K2_DONE")
    a("s_waitcnt vmcnt(0)")
    a("s_barrier")
    ts_mark(a, 26)
    a(f"s_mov_b32 s{sCnt}, 29")
    a(f"s_mov_b32 s{sPh}, 1")
    a("s_branch K2_LOOP")
    a.label("K2_DONE")
    ts_mark(a, 28)
    a("s_waitcnt lgkmcnt(0)")
    a(f"v_mfma_f32_32x32x16_bf16 {r16(O)}, {r4(V1)}, {r4(P1)}, {r16(O)}")
    a(f"s_lshl_b32 s{sT0}, s{sTK}, 5")
    a(f"s_add_u32 s{sT0}, s{sT0}, s{sHD}")
    a(f"s_lshl_b32 s{sT0}, s{sT0}, 10")
    a(f"s_add_u32 s{sT0}, s{sT0}, {WS_OF}")
    a(f"v_lshlrev_b32 v{vT3}, 4, v{vLane}")
    a(f"v_rcp_f32 v{vT2}, v{O+8}")
    a(f"v_mul_f32 v{vT2}, v{vT2}, v{vG}")
    for r in range(8): a(f"v_mul_f32 v{O+r}, v{O+r}, v{vT2}")
    for r in range(4): a(f"v_cvt_pk_bf16_f32 v{P0+r}, v{O+2*r}, v{O+2*r+1}")
    a(f"buffer_store_dwordx4 {r4(P0)}, v{vT3}, {W}, s{sT0} offen")
    ts_end(a, 1, sWS, sW, (24, 26, 28))
    a("s_endpgm")
    a.label("K2_END")
    a("s_endpgm")
    return a

K3_LDS = 65536
def gen_k3(name, DEPTH=8):
    a = Asm()
    a.label(name)
    sWS, sOUT = 8, 12
    sW, sTB, sNB, sT0, sT1 = 16, 17, 18, 19, 20
    sA = [22, 23]; sB = [24, 25]; sA2 = [26, 27]; sB2 = [28, 29]
    vLane, vL16, vG, vT0, vT1, vT2 = 1, 2, [3, 4], 5, 6, 7
    ACC = 16
    BUF = 80
    def acc(ns, ts): return ACC + (ns * 2 + ts) * 16
    def r4(x): return f"v[{x}:{x+3}]"
    def r16(x): return f"v[{x}:{x+15}]"
    a("s_cmp_ge_u32 s2, 256")
    a("s_cbranch_scc1 K3_END")
    ts_begin(a)
    a("s_load_dwordx2 s[4:5], s[0:1], 88")
    a("s_load_dwordx2 s[6:7], s[0:1], 72")
    a(f"v_lshrrev_b32 v{vT0}, 6, v0")
    a(f"v_and_b32 v{vLane}, 63, v0")
    a(f"v_readfirstlane_b32 s{sW}, v{vT0}")
    a(f"s_and_b32 s{sTB}, s2, 31")
    a(f"s_lshr_b32 s{sNB}, s2, 5")
    a(f"v_lshlrev_b32 v{vL16}, 4, v{vLane}")
    a(f"s_mul_i32 s{sT0}, s{sW}, 28")
    a(f"s_mul_i32 s{sT1}, s{sNB}, 224")
    a(f"s_add_u32 s{sT1}, s{sT1}, s{sT0}")
    a(f"s_lshl_b32 s{sT1}, s{sT1}, 10")
    a(f"s_add_u32 s{sA[0]}, s{sT1}, {WS_W2F}")
    a(f"s_add_u32 s{sA[1]}, s{sA[0]}, {112*1024}")
    a(f"s_mul_i32 s{sT1}, s{sTB}, 224")
    a(f"s_add_u32 s{sT1}, s{sT1}, s{sT0}")
    a(f"s_lshl_b32 s{sT1}, s{sT1}, 10")
    a(f"s_add_u32 s{sB[0]}, s{sT1}, {WS_HF}")
    a(f"s_add_u32 s{sB[1]}, s{sB[0]}, {112*1024}")
    a(f"s_lshl_b32 s{sT0}, s{sW}, 3")
    a(f"s_lshl_b32 s{sT1}, s{sNB}, 6")
    a(f"s_add_u32 s{sT1}, s{sT1}, s{sT0}")
    a(f"s_lshl_b32 s{sT1}, s{sT1}, 10")
    a(f"s_add_u32 s{sA2[0]}, s{sT1}, {WS_WOF}")
    a(f"s_add_u32 s{sA2[1]}, s{sA2[0]}, {32*1024}")
    a(f"s_lshl_b32 s{sT1}, s{sTB}, 6")
    a(f"s_add_u32 s{sT1}, s{sT1}, s{sT0}")
    a(f"s_lshl_b32 s{sT1}, s{sT1}, 10")
    a(f"s_add_u32 s{sB2[0]}, s{sT1}, {WS_OF}")
    a(f"s_add_u32 s{sB2[1]}, s{sB2[0]}, {32*1024}")
    a(f"v_and_b32 v{vT0}, 31, v{vLane}")
    a(f"v_lshlrev_b32 v{vT1}, 2, v{vT0}")
    a(f"s_lshl_b32 s{sT1}, s{sTB}, 8")
    a(f"s_add_u32 s{sT1}, s{sT1}, {WS_G}")
    a("s_waitcnt lgkmcnt(0)")
    srd(a, sWS, 4, WS_SIZE)
    srd(a, sOUT, 6, 0x200000)
    W = f"s[{sWS}:{sWS+3}]"
    a(f"buffer_load_dword v{vG[0]}, v{vT1}, {W}, s{sT1} offen")
    a(f"buffer_load_dword v{vG[1]}, v{vT1}, {W}, s{sT1} offen offset:128")
    NST = 36
    def buf(st, k): return BUF + ((st % DEPTH) * 4 + k) * 4
    def issue(st):
        L = []
        if st < 28:
            sa, sb, k = sA, sB, st
        else:
            sa, sb, k = sA2, sB2, st - 28
        off = (k % 4) * 1024
        for i in range(2):
            L.append(f"buffer_load_dwordx4 {r4(buf(st,i))}, v{vL16}, {W}, s{sa[i]} offen offset:{off}")
        for i in range(2):
            L.append(f"buffer_load_dwordx4 {r4(buf(st,2+i))}, v{vL16}, {W}, s{sb[i]} offen offset:{off}")
        if k % 4 == 3:
            for s_ in sa + sb:
                L.append(f"s_add_u32 s{s_}, s{s_}, 4096")
        return L
    for st in range(DEPTH):
        for l in issue(st): a(l)
    for r in range(64): a(f"v_mov_b32 v{ACC+r}, 0")
    ts_mark(a, 30)
    for st in range(NST):
        issued = min(NST, st + DEPTH)
        a(f"s_waitcnt vmcnt({(issued - st - 1) * 4})")
        if st == 28:
            for ts in range(2):
                a(f"v_sub_f32 v{vG[ts]}, 1.0, v{vG[ts]}")
            for ns in range(2):
                for ts in range(2):
                    for r in range(16):
                        a(f"v_mul_f32 v{acc(ns,ts)+r}, v{acc(ns,ts)+r}, v{vG[ts]}")
        for ns in range(2):
            for ts in range(2):
                a(f"v_mfma_f32_32x32x16_bf16 {r16(acc(ns,ts))}, {r4(buf(st,ns))}, {r4(buf(st,2+ts))}, {r16(acc(ns,ts))}")
        if st + DEPTH < NST:
            for l in issue(st + DEPTH): a(l)
    ts_mark(a, 32)
    a(f"s_lshl_b32 s{sT0}, s{sW}, 14")
    a(f"v_add_u32 v{vT0}, s{sT0}, v{vL16}")
    for sub in range(4):
        for rq in range(4):
            r = ACC + sub * 16 + rq * 4
            a(f"ds_write_b128 v{vT0}, {r4(r)} offset:{sub*4096+rq*1024}")
    a("s_waitcnt lgkmcnt(0)")
    a("s_barrier")
    a(f"v_and_b32 v{vT1}, 31, v{vLane}")
    a(f"v_lshrrev_b32 v{vT2}, 5, v{vLane}")
    a(f"v_lshlrev_b32 v{vT0}, 4, v{vT1}")
    a(f"v_lshl_add_u32 v{vT0}, v{vT2}, 10, v{vT0}")
    a(f"s_lshl_b32 s{sT0}, s{sW}, 12")
    a(f"v_add_u32 v{vT0}, s{sT0}, v{vT0}")
    R = BUF
    for p in range(2):
        for src in range(4):
            for half in range(2):
                r = R + ((p * 4 + src) * 2 + half) * 4
                a(f"ds_read_b128 {r4(r)}, v{vT0} offset:{src*16384 + p*2048 + half*512}")
    a(f"s_and_b32 s{sT0}, s{sW}, 1")
    a(f"s_lshl_b32 s{sT1}, s{sTB}, 1")
    a(f"s_add_u32 s{sT0}, s{sT0}, s{sT1}")
    a(f"s_lshl_b32 s{sT0}, s{sT0}, 15")
    a(f"s_lshl_b32 s{sT1}, s{sNB}, 7")
    a(f"s_add_u32 s{sT0}, s{sT0}, s{sT1}")
    a(f"s_lshr_b32 s{sT1}, s{sW}, 1")
    a(f"s_lshl_b32 s{sT1}, s{sT1}, 6")
    a(f"s_add_u32 s{sT0}, s{sT0}, s{sT1}")
    a(f"v_lshlrev_b32 v{vT1}, 10, v{vT1}")
    a(f"v_lshl_add_u32 v{vT1}, v{vT2}, 4, v{vT1}")
    for p in range(2):
        a(f"s_waitcnt lgkmcnt({8 if p == 0 else 0})")
        base = R + p * 32
        for src in range(1, 4):
            for k in range(8):
                a(f"v_add_f32 v{base+k}, v{base+k}, v{base+src*8+k}")
        for k in range(4):
            a(f"v_cvt_pk_bf16_f32 v{base+8+k}, v{base+2*k}, v{base+2*k+1}")
        a(f"buffer_store_dwordx4 {r4(base+8)}, v{vT1}, s[{sOUT}:{sOUT+3}], s{sT0} offen offset:{p*32}")
    ts_end(a, 2, sWS, sW, (30, 32))
    a("s_endpgm")
    a.label("K3_END")
    a("s_endpgm")
    return a

HEADER = """; gated_mix__grouped_kv_mqa__dense_activation_relu__prompt  (gfx950)  -- generated by gen/gen.py
"""
def build(out=OUT):
    ks = [
        ("k1_kernel", gen_k1("k1_kernel"), 256, 256, 163840, 512, 256),
        ("k2_kernel", gen_k2("k2_kernel"), 256, 512, K2_LDS, 128, 128),
        ("k3_kernel", gen_k3("k3_kernel"), 256, 256, K3_LDS, 256, 256),
    ]
    txt = HEADER
    for nm, a, g, b, lds, vg, acc in ks:
        txt += f"; @launch kernel={nm} grid=({g},1,1) block=({b},1,1) lds={lds}\n"
    txt += '.amdgcn_target "amdgcn-amd-amdhsa--gfx950"\n.text\n'
    for nm, a, g, b, lds, vg, acc in ks:
        n = a.fix()
        txt += kernel_header(nm) + a.text()
    txt += '.section .rodata,"a"\n'
    for nm, a, g, b, lds, vg, acc in ks:
        txt += kernel_desc(nm, vg, acc)
    open(out, "w").write(txt)
    return txt

if __name__ == "__main__":
    out = sys.argv[1] if len(sys.argv) > 1 else OUT
    build(out)
```

```python
import sys, os, struct
sys.path.insert(0, os.path.dirname(os.path.abspath(__file__)))
from asmlib import Asm
import gen
from gen import *

def r4(x): return f"v[{x}:{x+3}]"
def r2(x): return f"v[{x}:{x+1}]"
def r16(x): return f"v[{x}:{x+15}]"

class VQ:
    def __init__(self, a):
        self.a = a; self.q = []; self.done = 0
    def issue(self, tag, text):
        self.a(text); self.q.append(tag)
    def wait(self, tag, extra=""):
        idx = max(i for i, t in enumerate(self.q) if t == tag)
        if idx < self.done:
            if extra: self.a(f"s_waitcnt {extra}")
            return
        n = len(self.q) - 1 - idx
        assert n <= 63, n
        self.a(f"s_waitcnt vmcnt({n}) {extra}".strip())
        self.done = idx + 1
    def wait_all(self, extra=""):
        self.a(f"s_waitcnt vmcnt(0) {extra}".strip())
        self.done = len(self.q)

L_K, L_V, L_ONES = 0, 65536, 131072
L_XCH = 137216
K2_LDS3 = L_XCH + 8 * 2304
CS = 2048 + 64
F2 = 8 * CS
EXPV = int(os.environ.get("EXPV", "3"))
POS = [int(x) for x in os.environ.get("POS", "2,8,14,20").split(",")]
TBITS = 29.75 * 1024 if EXPV == 3 else 30.0 * 1024
LMIN_BITS = 0x43000000

def map_wg(a, sB, sTB, sHG, sT0, mode):
    if mode == 'simple':
        a(f"s_and_b32 s{sTB}, s{sB}, 31")
        a(f"s_lshr_b32 s{sHG}, s{sB}, 5")
    else:
        a(f"s_and_b32 s{sHG}, s{sB}, 1")
        a(f"s_lshl_b32 s{sHG}, s{sHG}, 2")
        a(f"s_bfe_u32 s{sT0}, s{sB}, 0x20003")
        a(f"s_or_b32 s{sHG}, s{sHG}, s{sT0}")
        a(f"s_bfe_u32 s{sTB}, s{sB}, 0x20001")
        a(f"s_lshl_b32 s{sTB}, s{sTB}, 3")
        a(f"s_lshr_b32 s{sT0}, s{sB}, 5")
        a(f"s_or_b32 s{sTB}, s{sTB}, s{sT0}")

def gen_k2q(name, mapmode='simple'):
    a = Asm()
    vq = VQ(a)
    a.label(name)
    sWS, sOUT, sWO = 8, 12, 60
    sW, sTB, sHG, sT0, sT1, sCnt, sKH, sHD = 16, 17, 18, 19, 20, 21, 22, 23
    sA = [24, 25]; sB = [26, 27]
    sW3, sNS, sTS, sKM, sOff, sT2, sPoll, sKQ, sOf, sT3, sWoS, sVM = 28, 29, 30, 31, 32, 33, 34, 35, 36, 37, 38, 39
    vLane, vK, vV, vVi, vL16, vGF, vGT = 1, 2, 3, 4, 5, 6, 7
    T = list(range(8, 16))
    Q = [16, 20]; KF, V0, V1 = 24, 28, 32
    Y = 36; Y2 = 44; cA, cM, cE = 48, 49, 50
    CB = 52; S = [68, 84]; O = [100, 116]; ACC = 132; FB = 196; SP = 228
    if EXPV == 4: Y2, E4 = 228, 236
    def acc(i): return ACC + 16 * i
    W = f"s[{sWS}:{sWS+3}]"
    MK = [64, 66, 68, 70, 72, 74, 76, 78]

    a("s_cmp_ge_u32 s2, 256")
    a("s_cbranch_scc1 K2_END")
    ts_begin(a)
    a("s_load_dwordx2 s[4:5], s[0:1], 88")
    a("s_load_dwordx2 s[6:7], s[0:1], 72")
    a("s_load_dwordx2 s[44:45], s[0:1], 32")
    a(f"v_lshrrev_b32 v{T[0]}, 6, v0")
    a(f"v_and_b32 v{vLane}, 63, v0")
    a(f"v_readfirstlane_b32 s{sW}, v{T[0]}")
    map_wg(a, 2, sTB, sHG, sT0, mapmode)
    a(f"v_lshlrev_b32 v{vL16}, 4, v{vLane}")
    a(f"s_lshr_b32 s{sKH}, s{sW}, 2")
    a(f"s_and_b32 s{sW3}, s{sW}, 3")
    a(f"s_and_b32 s{sTS}, s{sW}, 1")
    a(f"s_bfe_u32 s{sNS}, s{sW}, 0x10001")
    a(f"s_lshr_b32 s{sKQ}, s{sW}, 1")
    a(f"s_lshl_b32 s{sHD}, s{sHG}, 2")
    a(f"s_add_u32 s{sHD}, s{sHD}, s{sW3}")
    a(f"s_lshl_b32 s{sT0}, s{sTS}, 16")
    a(f"s_lshl_b32 s{sT1}, s{sNS}, 15")
    a(f"s_add_u32 s{sT0}, s{sT0}, s{sT1}")
    a(f"s_lshl_b32 s{sT1}, s{sKH}, 10")
    a(f"s_add_u32 s{sT0}, s{sT0}, s{sT1}")
    a(f"s_mov_b32 m0, s{sT0}")
    a(f"s_add_u32 s{sOff}, s{sT0}, {WS_KF}")
    a(f"v_and_b32 v{T[0]}, 31, v{vLane}")
    a(f"v_lshrrev_b32 v{T[1]}, 5, v{vLane}")
    a(f"v_lshlrev_b32 v{T[2]}, 10, v{T[0]}")
    a(f"v_lshl_add_u32 v{T[2]}, v{T[1]}, 4, v{T[2]}")
    a(f"v_xor_b32 v{T[3]}, 0x8000, v{T[2]}")
    a(f"s_lshl_b32 s{sT0}, s{sTB}, 16")
    a(f"s_lshl_b32 s{sT1}, s{sHD}, 5")
    a(f"s_add_u32 s{sT0}, s{sT0}, s{sT1}")
    if WS_Q: a(f"s_add_u32 s{sT0}, s{sT0}, {WS_Q}")
    a(f"s_lshl_b32 s{sT1}, s{sKH}, 15")
    a(f"v_xor_b32 v{T[2]}, s{sT1}, v{T[2]}")
    a(f"v_xor_b32 v{T[3]}, s{sT1}, v{T[3]}")
    a(f"v_lshlrev_b32 v{T[4]}, 2, v{T[0]}")
    a(f"s_mov_b32 s{sKM}, {WS_KMAX}")
    a("s_waitcnt lgkmcnt(0)")
    srd(a, sWS, 4, WS_SIZE)
    def kv_dma(r):
        vq.issue(f"D{r}", f"buffer_load_dwordx4 v{vL16}, {W}, s{sOff} offen lds")
        if r < 15:
            a(f"s_add_u32 m0, m0, 2048")
            a(f"s_add_u32 s{sOff}, s{sOff}, 2048")
    for r in range(2): kv_dma(r)
    vq.issue("Q", f"buffer_load_dwordx4 {r4(Q[0])}, v{T[2]}, {W}, s{sT0} offen")
    vq.issue("Q", f"buffer_load_dwordx4 {r4(Q[1])}, v{T[3]}, {W}, s{sT0} offen")
    vq.issue("KM", f"buffer_load_dwordx4 {r4(S[1])}, v{vL16}, {W}, s{sKM} offen")
    a("s_barrier")
    for r in range(2, 4): kv_dma(r)
    srd(a, sOUT, 6, 0x200000)
    srd(a, sWO, 44, 0x80000)
    a(f"s_mul_i32 s{sT0}, s{sW}, 14")
    a(f"s_lshl_b32 s{sT1}, s{sHG}, 1")
    a(f"s_add_u32 s{sT1}, s{sT1}, s{sNS}")
    a(f"s_mul_i32 s{sA[0]}, s{sT1}, 112")
    a(f"s_xor_b32 s{sT1}, s{sT1}, 1")
    a(f"s_mul_i32 s{sA[1]}, s{sT1}, 112")
    a(f"s_lshl_b32 s{sT1}, s{sTB}, 1")
    a(f"s_add_u32 s{sT1}, s{sT1}, s{sTS}")
    a(f"s_mul_i32 s{sB[0]}, s{sT1}, 112")
    a(f"s_xor_b32 s{sT1}, s{sT1}, 1")
    a(f"s_mul_i32 s{sB[1]}, s{sT1}, 112")
    for s_, base in ((sA[0], WS_W2F), (sA[1], WS_W2F), (sB[0], WS_HF), (sB[1], WS_HF)):
        a(f"s_add_u32 s{s_}, s{s_}, s{sT0}")
        a(f"s_lshl_b32 s{s_}, s{s_}, 10")
        a(f"s_add_u32 s{s_}, s{s_}, {base}")

    def ffn_load(which, buf, off, step):
        reg = {0: buf, 3: buf + 4, 1: buf + 8, 2: buf + 12}[which]
        s_ = {0: sA[0], 3: sA[1], 1: sB[0], 2: sB[1]}[which]
        vq.issue(f"F{step}.{which}", f"buffer_load_dwordx4 {r4(reg)}, v{vL16}, {W}, s{s_} offen offset:{off}")
    for st in range(2):
        for wh in (0, 1, 2, 3): ffn_load(wh, FB + 16 * st, st * 1024, st)
    a(f"s_lshl_b32 s{sT0}, s{sTB}, 8")
    a(f"s_add_u32 s{sT0}, s{sT0}, {WS_G}")
    a(f"s_lshl_b32 s{sT1}, s{sKH}, 7")
    a(f"s_add_u32 s{sT1}, s{sT1}, s{sT0}")
    vq.issue("G", f"buffer_load_dword v{vGF}, v{T[4]}, {W}, s{sT1} offen")
    a(f"s_lshl_b32 s{sT1}, s{sTS}, 7")
    a(f"s_add_u32 s{sT1}, s{sT1}, s{sT0}")
    vq.issue("G", f"buffer_load_dword v{vGT}, v{T[4]}, {W}, s{sT1} offen")
    for r in range(4, 16): kv_dma(r)
    a(f"s_lshl_b32 s{sT1}, s{sTB}, 1")
    a(f"s_add_u32 s{sT1}, s{sT1}, s{sTS}")
    a(f"s_lshl_b32 s{sT1}, s{sT1}, 5")
    a(f"s_lshl_b32 s{sT0}, s{sKQ}, 3")
    a(f"s_add_u32 s{sT1}, s{sT1}, s{sT0}")
    a(f"s_lshl_b32 s{sT1}, s{sT1}, 10")
    a(f"s_add_u32 s{sOf}, s{sT1}, {WS_OF}")
    a(f"s_lshl_b32 s{sT0}, s{sW}, 16")
    a(f"s_lshl_b32 s{sT1}, s{sHG}, 7")
    a(f"s_add_u32 s{sWoS}, s{sT0}, s{sT1}")
    a(f"v_mov_b32 v{S[0]}, 0x3c003c00")
    a(f"v_mov_b32 v{S[0]+1}, 0x3c003c00")
    a(f"v_lshlrev_b32 v{T[2]}, 3, v0")
    a(f"v_add_u32 v{T[2]}, {L_ONES}, v{T[2]}")
    a(f"ds_write_b64 v{T[2]}, {r2(S[0])}")
    a(f"v_lshlrev_b32 v{T[2]}, 2, v0")
    a(f"v_add_u32 v{T[2]}, {L_ONES + 4096}, v{T[2]}")
    a(f"ds_write_b32 v{T[2]}, v{S[0]}")
    a(f"s_lshl_b32 s{sT0}, s{sKH}, 15")
    a(f"v_add_u32 v{vK}, s{sT0}, v{vL16}")
    a(f"v_lshlrev_b32 v{T[2]}, 8, v{T[1]}")
    a(f"v_lshl_add_u32 v{T[2]}, v{T[0]}, 4, v{T[2]}")
    a(f"s_add_u32 s{sT0}, s{sT0}, {L_V}")
    a(f"v_add_u32 v{T[2]}, s{sT0}, v{T[2]}")
    a(f"v_subrev_u32 v{T[3]}, 20, v{T[0]}")
    a(f"v_cmp_gt_u32 vcc, 8, v{T[3]}")
    a(f"v_mov_b32 v{T[3]}, {L_ONES}")
    a(f"v_mov_b32 v{T[4]}, {L_ONES + 64}")
    a(f"v_cndmask_b32 v{T[3]}, v{T[3]}, v{T[4]}, vcc")
    a(f"v_cmp_gt_u32 vcc, 16, v{T[0]}")
    a(f"v_cndmask_b32 v{vV}, v{T[3]}, v{T[2]}, vcc")
    a(f"v_mov_b32 v{T[3]}, 4096")
    a(f"v_cndmask_b32 v{vVi}, 0, v{T[3]}, vcc")
    for r in range(16):
        a(f"v_mov_b32 v{O[0]+r}, 0")
        a(f"v_mov_b32 v{O[1]+r}, 0")
    for r in range(4):
        a(f"v_mov_b32 v{Y+4+r}, 0")
        a(f"v_mov_b32 v{V1+r}, 0")
    for r in range(64):
        a(f"v_mov_b32 v{ACC+r}, 0")
    if EXPV == 3:
        a(f"v_mov_b32 v{cA}, 0x02000200")
        a(f"v_mov_b32 v{cM}, 0x39a839a8")
    else:
        a(f"v_mov_b32 v{cA}, 0x03ff03ff")
        a(f"v_mov_b32 v{cM}, 0x38003800")
        a(f"v_mov_b32 v{cE}, 0xfc00fc00")
    vq.wait("KM")
    km = S[1]
    a(f"v_max_u32 v{km}, v{km}, v{km+1}")
    a(f"v_max3_u32 v{km}, v{km}, v{km+2}, v{km+3}")
    for sh in (1, 2, 4, 8):
        a(f"v_max_u32_dpp v{km}, v{km}, v{km} row_shr:{sh} row_mask:0xf bank_mask:0xf")
    a(f"v_max_u32_dpp v{km}, v{km}, v{km} row_bcast:15 row_mask:0xa bank_mask:0xf")
    a(f"v_readlane_b32 s{sKM}, v{km}, 31")
    a(f"v_readlane_b32 s{sVM}, v{km}, 63")
    a(f"v_mov_b32 v{T[2]}, 0")
    a(f"v_mov_b32 v{T[3]}, 0")
    for r in range(4):
        a(f"v_dot2_f32_bf16 v{T[2]}, v{Q[0]+r}, v{Q[0]+r}, v{T[2]}")
        a(f"v_dot2_f32_bf16 v{T[3]}, v{Q[1]+r}, v{Q[1]+r}, v{T[3]}")
    a(f"v_mov_b32 v{T[5]}, v{T[2]}")
    a(f"v_mov_b32 v{T[6]}, v{T[3]}")
    a(f"v_permlane32_swap_b32 v{T[2]}, v{T[5]}")
    a(f"v_permlane32_swap_b32 v{T[3]}, v{T[6]}")
    a(f"v_add_f32 v{T[2]}, v{T[2]}, v{T[5]}")
    a(f"v_add_f32 v{T[3]}, v{T[3]}, v{T[6]}")
    a(f"v_max_u32 v{T[2]}, v{T[2]}, v{T[3]}")
    a(f"v_mul_f32 v{T[2]}, s{sKM}, v{T[2]}")
    a(f"v_sqrt_f32 v{T[2]}, v{T[2]}")
    a(f"s_sub_u32 s{sT0}, s{sVM}, 0x3c800000")
    a(f"s_cmp_le_u32 s{sT0}, {0x47000000 - 0x3c800000}")
    a(f"s_cselect_b32 s{sT0}, 0, 0x7f800000")
    a(f"v_add_f32 v{T[2]}, s{sT0}, v{T[2]}")
    a(f"v_sub_f32 v{CB}, {f32hex(TBITS / 65535.0)}, v{T[2]}")
    for r in range(1, 16): a(f"v_mov_b32 v{CB+r}, v{CB}")
    vq.wait("D1", "lgkmcnt(0)")
    a("s_barrier")
    ts_mark(a, MK[0])
    a(f"ds_read_b128 {r4(KF)}, v{vK}")
    a(f"ds_read_b128 {r4(V0)}, v{vV}")

    def valu3(Sx):
        seq = []
        for k in range(10):
            if k < 8: seq.append(f"v_cvt_pknorm_u16_f32 v{Y+k}, v{Sx+2*k}, v{Sx+2*k+1}")
            if 0 <= k - 1 < 8: seq.append(f"v_add_u32 v{Y2+(k-1)%4}, v{cA}, v{Y+k-1}")
            if 0 <= k - 2 < 8: seq.append(f"v_pk_fma_f16 v{Y+k-2}, v{Y2+(k-2)%4}, v{cM}, v{Y+k-2}")
        return seq
    def valu4(Sx):
        seq = []
        for k in range(10):
            if k < 8: seq.append(f"v_cvt_pknorm_u16_f32 v{Y+k}, v{Sx+2*k}, v{Sx+2*k+1}")
            if 0 <= k - 1 < 8:
                seq.append(f"v_bitop3_b32 v{Y2+(k-1)%4}, v{Y+k-1}, v{cA}, v{cM} bitop3:0xea")
                seq.append(f"v_and_b32 v{E4+(k-1)%4}, v{cE}, v{Y+k-1}")
            if 0 <= k - 2 < 8: seq.append(f"v_pk_fma_f16 v{Y+k-2}, v{Y+k-2}, v{Y2+(k-2)%4}, v{E4+(k-2)%4}")
        return seq

    wodma = [0]
    def unit(x, tl, u, mode, body):
        y = 1 - x
        Sx, Sy, Ox, Oy = S[x], S[y], O[x], O[y]
        lasttile = (mode == 'last' and tl == 3)
        seq = valu3(Sx) if EXPV == 3 else valu4(Sx)
        pos = POS if EXPV == 3 else [0, 8, 20, 28]
        def slot0():
            if x == 1: a(f"s_waitcnt lgkmcnt({0 if lasttile else 1})")
            a(f"v_mfma_f32_32x32x16_f16 {r16(Oy)}, {r4(V1)}, {r4(Y+4)}, {r16(Oy)}")
            if x == 0: a(f"ds_read_b128 {r4(V1)}, v{vV} offset:{tl*1024+512}")
        def slot1():
            if x == 0:
                a(f"v_mfma_f32_32x32x16_bf16 {r16(Sy)}, {r4(KF)}, {r4(Q[y])}, {r16(CB)}")
                if not lasttile: a(f"ds_read_b128 {r4(KF)}, v{vK} offset:{(tl+1)*1024}")
            elif not lasttile:
                a("s_waitcnt lgkmcnt(0)")
                a(f"v_mfma_f32_32x32x16_bf16 {r16(Sy)}, {r4(KF)}, {r4(Q[y])}, {r16(CB)}")
        def slot2():
            ls, m = u >> 2, u & 3
            buf = FB + ls * 16
            A0, A1, B0, B1 = buf, buf + 4, buf + 8, buf + 12
            if mode == 'last' and u < 8:
                vq.issue("WO", f"buffer_load_dwordx4 v{T[7]}, s[{sWO}:{sWO+3}], s{sWoS} offen lds")
                if u < 7:
                    a(f"s_add_u32 m0, m0, 1024")
                    a(f"s_add_u32 s{sWoS}, s{sWoS}, 8192")
            if mode == 'first': return
            pre = (mode == 'mid')
            st = 2 * (body - 1) + ls
            off = (ls + 2) * 1024
            if m == 0:
                vq.wait(f"F{st}.1")
                a(f"v_mfma_f32_32x32x16_bf16 {r16(acc(0))}, {r4(A0)}, {r4(B0)}, {r16(acc(0))}")
            elif m == 1:
                vq.wait(f"F{st}.2")
                a(f"v_mfma_f32_32x32x16_bf16 {r16(acc(2))}, {r4(A0)}, {r4(B1)}, {r16(acc(2))}")
                if pre: ffn_load(0, buf, off, st + 2)
            elif m == 2:
                vq.wait(f"F{st}.3")
                a(f"v_mfma_f32_32x32x16_bf16 {r16(acc(1))}, {r4(A1)}, {r4(B0)}, {r16(acc(1))}")
                if pre: ffn_load(1, buf, off, st + 2)
            else:
                a(f"v_mfma_f32_32x32x16_bf16 {r16(acc(3))}, {r4(A1)}, {r4(B1)}, {r16(acc(3))}")
                if pre:
                    ffn_load(2, buf, off, st + 2); ffn_load(3, buf, off, st + 2)
        def slot3():
            if x == 0: a(f"s_waitcnt lgkmcnt({1 if lasttile else 2})")
            a(f"v_mfma_f32_32x32x16_f16 {r16(Ox)}, {r4(V0)}, {r4(Y)}, {r16(Ox)}")
            if x == 1 and not lasttile: a(f"ds_read_b128 {r4(V0)}, v{vV} offset:{(tl+1)*1024}")
        slots = [slot0, slot1, slot2, slot3]
        mi = 0
        for i, s_ in enumerate(seq):
            while mi < 4 and pos[mi] == i:
                slots[mi](); mi += 1
            a(s_)
        while mi < 4:
            slots[mi](); mi += 1

    def body(mode, b, bar=None):
        for tl in range(4):
            if tl == 3 and bar is not None:
                vq.wait(bar)
                a("s_barrier")
            for x in range(2):
                unit(x, tl, tl * 2 + x, mode, b)
                if os.environ.get("DUMP") and mode == 'first' and tl == 0 and x == 0:
                    a("s_cmp_lg_u32 s2, 0")
                    a("s_cbranch_scc1 K2_NODUMP")
                    a(f"s_cmp_lg_u32 s{sW}, 0")
                    a("s_cbranch_scc1 K2_NODUMP")
                    a("s_mov_b32 s50, 0xF00000")
                    for r in range(4): a(f"buffer_store_dwordx4 {r4(S[0]+4*r)}, v{vL16}, {W}, s50 offen offset:{r*1024}")
                    a("s_mov_b32 s50, 0xF01000")
                    for r in range(2): a(f"buffer_store_dwordx4 {r4(Y+4*r)}, v{vL16}, {W}, s50 offen offset:{r*1024}")
                    a(f"buffer_store_dwordx4 {r4(CB)}, v{vL16}, {W}, s50 offen offset:2048")
                    a(f"buffer_store_dwordx4 {r4(Q[0])}, v{vL16}, {W}, s50 offen offset:3072")
                    a("s_waitcnt vmcnt(0)")
                    a.label("K2_NODUMP")
        if mode != 'last':
            a(f"v_add_u32 v{vK}, 4096, v{vK}")
            a(f"v_add_u32 v{vV}, v{vVi}, v{vV}")
        if mode == 'mid':
            for s_ in sA + sB: a(f"s_add_u32 s{s_}, s{s_}, 2048")

    a("s_waitcnt lgkmcnt(1)")
    a(f"v_mfma_f32_32x32x16_bf16 {r16(S[0])}, {r4(KF)}, {r4(Q[0])}, {r16(CB)}")
    body('first', 0, "D3")
    ts_mark(a, MK[1])
    body('mid', 1, "D5")
    vq.wait("D15")
    a("s_barrier")
    a(f"s_mov_b32 s{sCnt}, 5")
    a.label("K2_LOOP")
    n0 = len(a.ins)
    body('mid', 2)
    t1 = [i.text for i in a.ins[n0:]]
    save = a.ins; a.ins = []
    body('mid', 3)
    t2 = [i.text for i in a.ins]
    a.ins = save
    assert t1 == t2, "loop body not in steady state"
    for b in (4, 5, 6):
        a.ins = []
        body('mid', b)
    a.ins = save
    a(f"s_sub_u32 s{sCnt}, s{sCnt}, 1")
    a(f"s_cmp_lg_u32 s{sCnt}, 0")
    a(f"s_cbranch_scc1 K2_LOOP")
    ts_mark(a, MK[2])
    a(f"v_lshrrev_b32 v{T[6]}, 3, v{vLane}")
    a(f"v_and_b32 v{T[7]}, 7, v{vLane}")
    a(f"v_bfe_u32 v{T[5]}, v{T[6]}, 1, 1")
    a(f"v_lshlrev_b32 v{T[5]}, 2, v{T[5]}")
    a(f"v_xor_b32 v{T[7]}, v{T[7]}, v{T[5]}")
    a(f"v_lshlrev_b32 v{T[7]}, 4, v{T[7]}")
    a(f"v_lshl_add_u32 v{T[7]}, v{T[6]}, 10, v{T[7]}")
    a(f"s_lshl_b32 s{sT0}, s{sKQ}, 15")
    a(f"s_lshl_b32 s{sT1}, s{sTS}, 13")
    a(f"s_add_u32 m0, s{sT0}, s{sT1}")
    a("s_barrier")
    body('last', 7)
    ts_mark(a, MK[3])
    a(f"v_mfma_f32_32x32x16_f16 {r16(O[1])}, {r4(V1)}, {r4(Y+4)}, {r16(O[1])}")
    a(f"s_mul_i32 s{sT0}, s{sW}, 2304")
    a(f"s_add_u32 s{sT0}, s{sT0}, {L_XCH}")
    a(f"v_add_u32 v{T[0]}, s{sT0}, v{vL16}")
    a(f"v_lshlrev_b32 v{T[1]}, 2, v{vLane}")
    a(f"v_add_u32 v{T[1]}, s{sT0}, v{T[1]}")
    a(f"s_xor_b32 s{sT1}, s{sW}, 4")
    a(f"s_mul_i32 s{sT1}, s{sT1}, 2304")
    a(f"s_add_u32 s{sT1}, s{sT1}, {L_XCH}")
    a(f"v_add_u32 v{T[2]}, s{sT1}, v{vL16}")
    a(f"v_lshlrev_b32 v{T[3]}, 2, v{vLane}")
    a(f"v_add_u32 v{T[3]}, s{sT1}, v{T[3]}")
    a(f"s_lshl_b32 s{sT0}, s{sKQ}, 15")
    a(f"s_lshl_b32 s{sT1}, s{sTS}, 13")
    a(f"s_add_u32 s{sT0}, s{sT0}, s{sT1}")
    a(f"s_add_u32 s{sT0}, s{sT0}, 16384")
    a(f"v_add_u32 v{T[4]}, s{sT0}, v{vL16}")
    a(f"v_xor_b32 v{T[5]}, 8192, v{T[4]}")
    a(f"s_lshl_b32 s{sT0}, s{sTB}, 1")
    a(f"s_add_u32 s{sT0}, s{sT0}, s{sKH}")
    a(f"s_lshl_b32 s{sT0}, s{sT0}, 5")
    a(f"s_add_u32 s{sT0}, s{sT0}, s{sHD}")
    a(f"s_lshl_b32 s{sT0}, s{sT0}, 10")
    a(f"s_add_u32 s{sT3}, s{sT0}, {WS_OF}")
    a(f"ds_write_b128 v{T[0]}, {r4(O[1])}")
    a(f"ds_write_b128 v{T[0]}, {r4(O[1]+4)} offset:1024")
    a(f"ds_write_b32 v{T[1]}, v{O[1]+8} offset:2048")
    a("s_waitcnt lgkmcnt(0)")
    a("s_barrier")
    a(f"ds_read_b128 {r4(KF)}, v{T[2]}")
    a(f"ds_read_b128 {r4(V0)}, v{T[2]} offset:1024")
    a(f"ds_read_b32 v{V1}, v{T[3]} offset:2048")
    for i in range(2):
        for rq in range(4):
            a(f"ds_write_b128 v{T[4]}, {r4(acc(2+i)+4*rq)} offset:{i*4096+rq*1024}")
    a("s_waitcnt lgkmcnt(8)")
    a(f"v_add_f32 v{V1}, v{V1}, v{O[0]+8}")
    for r in range(4):
        a(f"v_add_f32 v{O[0]+r}, v{O[0]+r}, v{KF+r}")
        a(f"v_add_f32 v{O[0]+4+r}, v{O[0]+4+r}, v{V0+r}")
    a(f"v_subrev_u32 v{T[0]}, {LMIN_BITS}, v{V1}")
    a(f"v_cmp_gt_u32 vcc, {0x7f800000 - LMIN_BITS}, v{T[0]}")
    a("s_cmp_eq_u64 vcc, -1")
    a("s_cbranch_scc0 K2_SLOW")
    a.label("K2_NORM")
    a(f"v_rcp_f32 v{V1}, v{V1}")
    a(f"v_mul_f32 v{V1}, v{V1}, v{vGF}")
    for r in range(8): a(f"v_mul_f32 v{O[0]+r}, v{O[0]+r}, v{V1}")
    for r in range(4): a(f"v_cvt_pk_bf16_f32 v{Y+r}, v{O[0]+2*r}, v{O[0]+2*r+1}")
    a(f"buffer_store_dwordx4 {r4(Y)}, v{vL16}, {W}, s{sT3} offen sc1")
    ts_mark(a, MK[4])
    OFR = [FB + 4 * i for i in range(8)]
    def of_loads(lo, hi):
        for i in range(lo, hi):
            a(f"buffer_load_dwordx4 {r4(OFR[i])}, v{vL16}, {W}, s{sOf if i < 4 else sT2} offen offset:{(i%4)*1024} sc1")
    a(f"s_add_u32 s{sT2}, s{sOf}, 4096")
    of_loads(0, 8)
    a(f"v_lshrrev_b32 v{T[0]}, 5, v{vLane}")
    a(f"v_bfe_u32 v{T[1]}, v{vLane}, 2, 2")
    a(f"v_lshl_add_u32 v{T[0]}, v{T[0]}, 2, v{T[1]}")
    a(f"v_lshlrev_b32 v{T[0]}, 7, v{T[0]}")
    a(f"v_bfe_u32 v{T[1]}, v{vLane}, 3, 1")
    a(f"v_lshl_add_u32 v{T[0]}, v{T[1]}, 6, v{T[0]}")
    a(f"v_bfe_u32 v{T[1]}, v{vLane}, 4, 1")
    a(f"v_lshl_add_u32 v{T[0]}, v{T[1]}, 5, v{T[0]}")
    a(f"v_and_b32 v{T[1]}, 3, v{vLane}")
    a(f"v_lshl_add_u32 v{T[0]}, v{T[1]}, 3, v{T[0]}")
    a(f"s_lshl_b32 s{sT0}, s{sKQ}, 15")
    a(f"s_lshl_b32 s{sT1}, s{sNS}, 6")
    a(f"v_add_u32 v{T[0]}, s{sT0}, v{T[0]}")
    a(f"v_xor_b32 v{T[0]}, s{sT1}, v{T[0]}")
    a(f"v_xor_b32 v{T[1]}, 64, v{T[0]}")
    a("s_waitcnt vmcnt(9) lgkmcnt(0)")
    a("s_barrier")
    for i in range(2):
        for rq in range(4):
            a(f"ds_read_b128 {r4(S[0]+16*i+4*rq)}, v{T[5]} offset:{i*4096+rq*1024}")
    WOA = [acc(2) + 4 * i for i in range(8)]
    WOB = [SP + 4 * i for i in range(7)] + [O[1]]
    a(f"v_sub_f32 v{vGT}, 1.0, v{vGT}")
    for h in range(8):
        for t in range(2):
            a(f"ds_read_b64_tr_b16 {r2(WOA[h]+2*t)}, v{T[0]} offset:{h*2048+t*1024}")
        if h == 3:
            a("s_waitcnt lgkmcnt(8)")
            for r in range(32):
                a(f"v_add_f32 v{ACC+r}, v{ACC+r}, v{S[0]+r}")
    for h in range(8):
        for t in range(2):
            a(f"ds_read_b64_tr_b16 {r2(WOB[h]+2*t)}, v{T[1]} offset:{h*2048+t*1024}")
    for r in range(32):
        a(f"v_mul_f32 v{ACC+r}, v{ACC+r}, v{vGT}")
    a(f"s_mul_i32 s{sT0}, s{sKQ}, {F2}")
    a(f"s_lshl_b32 s{sT1}, s{sTS}, 10")
    a(f"s_add_u32 s{sT0}, s{sT0}, s{sT1}")
    a(f"s_mul_i32 s{sT1}, s{sNS}, {4*CS}")
    a(f"s_add_u32 s{sT1}, s{sT1}, s{sT0}")
    a(f"v_add_u32 v{T[2]}, s{sT1}, v{vL16}")
    a(f"s_xor_b32 s{sT1}, s{sNS}, 1")
    a(f"s_mul_i32 s{sT1}, s{sT1}, {4*CS}")
    a(f"s_add_u32 s{sT1}, s{sT1}, s{sT0}")
    a(f"v_add_u32 v{T[3]}, s{sT1}, v{vL16}")
    a(f"v_and_b32 v{T[4]}, 7, v{vLane}")
    a(f"v_lshrrev_b32 v{T[5]}, 3, v{vLane}")
    a(f"v_mul_u32_u24 v{T[6]}, {CS}, v{T[4]}")
    a(f"v_lshl_add_u32 v{T[6]}, v{T[5]}, 4, v{T[6]}")
    a(f"s_lshl_b32 s{sT0}, s{sKH}, 10")
    a(f"s_lshl_b32 s{sT1}, s{sW3}, 7")
    a(f"s_add_u32 s{sT0}, s{sT0}, s{sT1}")
    a(f"v_add_u32 v{T[6]}, s{sT0}, v{T[6]}")
    a(f"v_add_u32 v{T[7]}, {2*F2}, v{T[6]}")
    a(f"v_lshlrev_b32 v{T[5]}, 10, v{T[5]}")
    a(f"v_lshl_add_u32 v{T[5]}, v{T[4]}, 4, v{T[5]}")
    a(f"s_lshl_b32 s{sT0}, s{sTB}, 16")
    a(f"s_lshl_b32 s{sT1}, s{sW}, 13")
    a(f"s_add_u32 s{sT0}, s{sT0}, s{sT1}")
    a(f"s_lshl_b32 s{sT1}, s{sHG}, 7")
    a(f"s_add_u32 s{sT3}, s{sT0}, s{sT1}")
    a("s_waitcnt lgkmcnt(0)")
    a("s_barrier")
    ts_mark(a, MK[5])
    for g in range(4):
        a(f"s_mov_b32 s{sPoll}, 4096")
        a(f"s_waitcnt vmcnt({6 - 2*g})")
        a.label(f"K2_POLL{g}")
        rr = [OFR[i] + k for i in (2 * g, 2 * g + 1) for k in range(4)]
        a(f"v_max_u32 v{T[0]}, v{rr[0]}, v{rr[1]}")
        for k in range(2, 8, 2):
            a(f"v_max3_u32 v{T[0]}, v{rr[k]}, v{rr[k+1]}, v{T[0]}")
        a(f"v_cmp_eq_u32 vcc, -1, v{T[0]}")
        a(f"s_cbranch_vccz K2_GO{g}")
        a(f"s_sub_u32 s{sPoll}, s{sPoll}, 1")
        a(f"s_cmp_eq_u32 s{sPoll}, 0")
        a(f"s_cbranch_scc1 K2_GO{g}")
        of_loads(2 * g, 2 * g + 2)
        a("s_waitcnt vmcnt(0)")
        a(f"s_branch K2_POLL{g}")
        a.label(f"K2_GO{g}")
        for i in (2 * g, 2 * g + 1):
            a(f"v_mfma_f32_32x32x16_bf16 {r16(acc(0))}, {r4(WOA[i])}, {r4(OFR[i])}, {r16(acc(0))}")
            a(f"v_mfma_f32_32x32x16_bf16 {r16(acc(1))}, {r4(WOB[i])}, {r4(OFR[i])}, {r16(acc(1))}")
    ts_mark(a, MK[6])
    for i in range(2):
        for rq in range(4):
            a(f"ds_write_b128 v{T[2+i]}, {r4(acc(i)+4*rq)} offset:{rq*CS}")
    a("s_waitcnt lgkmcnt(0)")
    a("s_barrier")
    R = S[0]
    for kq in range(4):
        base = T[6] if kq < 2 else T[7]
        for h in range(2):
            a(f"ds_read_b128 {r4(R+(kq*2+h)*4)}, v{base} offset:{(kq&1)*F2+h*512}")
    a("s_waitcnt lgkmcnt(4)")
    for k in range(8): a(f"v_add_f32 v{R+k}, v{R+k}, v{R+8+k}")
    a("s_waitcnt lgkmcnt(0)")
    for k in range(8): a(f"v_add_f32 v{R+16+k}, v{R+16+k}, v{R+24+k}")
    for k in range(8): a(f"v_add_f32 v{R+k}, v{R+k}, v{R+16+k}")
    for k in range(4): a(f"v_cvt_pk_bf16_f32 v{Y+k}, v{R+2*k}, v{R+2*k+1}")
    a(f"buffer_store_dwordx4 {r4(Y)}, v{T[5]}, s[{sOUT}:{sOUT+3}], s{sT3} offen")
    ts_mark(a, MK[7])
    if TS: a("s_waitcnt lgkmcnt(0)")
    ts_end(a, 1, sWS, sW, MK[:4])
    if TS:
        a("s_mov_b64 exec, -1")
        for i in range(4): a(f"v_mov_b32 v{i}, s{MK[4+i]}")
        a(f"s_add_u32 s4, s4, 0x20000")
        a("s_mov_b64 exec, 1")
        a(f"buffer_store_dwordx4 v[0:3], v8, s[{sWS}:{sWS+3}], s4 offen offset:16")
    a("s_endpgm")

    a.label("K2_SLOW")
    M = T[0]
    CI = 65535.0 / 1024.0
    a(f"v_mov_b32 v{M}, 0xff800000")
    a(f"s_mov_b32 s{sT0}, {WS_KF}")
    a(f"s_mov_b32 s{sCnt}, 64")
    a.label("K2_SL1")
    a(f"buffer_load_dwordx4 {r4(KF)}, v{vL16}, {W}, s{sT0} offen")
    a(f"s_add_u32 s{sT0}, s{sT0}, 1024")
    a("s_waitcnt vmcnt(0)")
    a(f"v_mfma_f32_32x32x16_bf16 {r16(S[0])}, {r4(KF)}, {r4(Q[0])}, 0")
    for r in range(0, 16, 2):
        a(f"v_max3_f32 v{M}, v{S[0]+r}, v{S[0]+r+1}, v{M}")
    a(f"s_sub_u32 s{sCnt}, s{sCnt}, 1")
    a(f"s_cmp_lg_u32 s{sCnt}, 0")
    a("s_cbranch_scc1 K2_SL1")
    a(f"v_mov_b32 v{T[1]}, v{M}")
    a(f"v_permlane32_swap_b32 v{M}, v{T[1]}")
    a(f"v_max_f32 v{M}, v{M}, v{T[1]}")
    a(f"v_mul_f32 v{M}, {f32hex(-CI)}, v{M}")
    a(f"v_mov_b32 v{T[1]}, {f32hex(CI)}")
    a(f"v_and_b32 v{T[2]}, 15, v{vLane}")
    a(f"v_lshlrev_b32 v{T[2]}, 4, v{T[2]}")
    a(f"v_lshrrev_b32 v{T[3]}, 5, v{vLane}")
    a(f"v_lshl_add_u32 v{T[2]}, v{T[3]}, 8, v{T[2]}")
    a(f"v_and_b32 v{T[3]}, 16, v{vLane}")
    a(f"v_cmp_eq_u32 s[40:41], 0, v{T[3]}")
    a(f"v_mov_b32 v{T[3]}, 0x3f803f80")
    for r in range(16): a(f"v_mov_b32 v{O[0]+r}, 0")
    a(f"s_mov_b32 s{sT0}, {WS_KF}")
    a(f"s_mov_b32 s{sT1}, {WS_VB}")
    a(f"s_mov_b32 s{sCnt}, 64")
    a.label("K2_SL2")
    a(f"buffer_load_dwordx4 {r4(KF)}, v{vL16}, {W}, s{sT0} offen")
    a(f"buffer_load_dwordx4 {r4(V0)}, v{T[2]}, {W}, s{sT1} offen")
    a(f"buffer_load_dwordx4 {r4(S[1])}, v{T[2]}, {W}, s{sT1} offen offset:512")
    a(f"s_add_u32 s{sT0}, s{sT0}, 1024")
    a(f"s_add_u32 s{sT1}, s{sT1}, 1024")
    a("s_waitcnt vmcnt(0)")
    a(f"v_mfma_f32_32x32x16_bf16 {r16(S[0])}, {r4(KF)}, {r4(Q[0])}, 0")
    for r in range(4):
        a(f"v_cndmask_b32 v{V0+r}, v{T[3]}, v{V0+r}, s[40:41]")
        a(f"v_cndmask_b32 v{S[1]+r}, v{T[3]}, v{S[1]+r}, s[40:41]")
    for r in range(16):
        a(f"v_fma_f32 v{S[0]+r}, v{S[0]+r}, v{T[1]}, v{M}")
        a(f"v_exp_f32 v{S[0]+r}, v{S[0]+r}")
    for k in range(8):
        a(f"v_cvt_pk_bf16_f32 v{Y+k}, v{S[0]+2*k}, v{S[0]+2*k+1}")
    a(f"v_mfma_f32_32x32x16_bf16 {r16(O[0])}, {r4(V0)}, {r4(Y)}, {r16(O[0])}")
    a(f"v_mfma_f32_32x32x16_bf16 {r16(O[0])}, {r4(S[1])}, {r4(Y+4)}, {r16(O[0])}")
    a(f"s_sub_u32 s{sCnt}, s{sCnt}, 1")
    a(f"s_cmp_lg_u32 s{sCnt}, 0")
    a("s_cbranch_scc1 K2_SL2")
    a(f"v_mov_b32 v{V1}, v{O[0]+8}")
    a("s_branch K2_NORM")
    a.label("K2_END")
    a("s_endpgm")
    return a

def build3(out):
    mm = os.environ.get("MAP", "simple")
    ks = [
        ("k1_kernel", gen_k1("k1_kernel", sentinel=True, newv=True), 256, 256, 163840, 512, 256),
        ("k2_kernel", gen_k2q("k2_kernel", mm), 256, 512, K2_LDS3, 256, 256),
    ]
    txt = HEADER
    for nm, a, g, b, lds, vg, acc in ks:
        txt += f"; @launch kernel={nm} grid=({g},1,1) block=({b},1,1) lds={lds}\n"
    txt += '.amdgcn_target "amdgcn-amd-amdhsa--gfx950"\n.text\n'
    for nm, a, g, b, lds, vg, acc in ks:
        n = a.fix()
        txt += kernel_header(nm) + a.text()
    txt += '.section .rodata,"a"\n'
    for nm, a, g, b, lds, vg, acc in ks:
        txt += kernel_desc(nm, vg, acc)
    open(out, "w").write(txt)

if __name__ == "__main__":
    out = sys.argv[1] if len(sys.argv) > 1 else "v3.s"
    build3(out)
```

```python
import sys, os, struct
sys.path.insert(0, os.path.dirname(os.path.abspath(__file__)))
from asmlib import Asm
import gen
from gen import *

def r4(x): return f"v[{x}:{x+3}]"
def r2(x): return f"v[{x}:{x+1}]"
def r16(x): return f"v[{x}:{x+15}]"

class VQ:
    def __init__(self, a):
        self.a = a; self.q = []; self.done = 0
    def issue(self, tag, text):
        self.a(text); self.q.append(tag)
    def wait(self, tag, extra=""):
        idx = max(i for i, t in enumerate(self.q) if t == tag)
        if idx < self.done:
            if extra: self.a(f"s_waitcnt {extra}")
            return
        n = len(self.q) - 1 - idx
        assert n <= 63, n
        self.a(f"s_waitcnt vmcnt({n}) {extra}".strip())
        self.done = idx + 1
    def wait_all(self, extra=""):
        self.a(f"s_waitcnt vmcnt(0) {extra}".strip())
        self.done = len(self.q)

L_K, L_V, L_ONES = 0, 65536, 131072
L_XCH = 137216
K2_LDS3 = L_XCH + 8 * 2304
CS = 2048 + 64
F2 = 8 * CS
EXPV = int(os.environ.get("EXPV", "3"))
POS = [int(x) for x in os.environ.get("POS", "2,8,14,20").split(",")]
TBITS = 29.75 * 1024 if EXPV == 3 else 30.0 * 1024
PM = int(os.environ.get("PM", "0"))
LMIN_BITS = 0x43000000

def map_wg(a, sB, sTB, sHG, sT0, mode):
    if mode == 'simple':
        a(f"s_and_b32 s{sTB}, s{sB}, 31")
        a(f"s_lshr_b32 s{sHG}, s{sB}, 5")
    else:
        a(f"s_and_b32 s{sHG}, s{sB}, 1")
        a(f"s_lshl_b32 s{sHG}, s{sHG}, 2")
        a(f"s_bfe_u32 s{sT0}, s{sB}, 0x20003")
        a(f"s_or_b32 s{sHG}, s{sHG}, s{sT0}")
        a(f"s_bfe_u32 s{sTB}, s{sB}, 0x20001")
        a(f"s_lshl_b32 s{sTB}, s{sTB}, 3")
        a(f"s_lshr_b32 s{sT0}, s{sB}, 5")
        a(f"s_or_b32 s{sTB}, s{sTB}, s{sT0}")

def gen_k2q(name, mapmode='simple', qf=False):
    a = Asm()
    vq = VQ(a)
    a.label(name)
    sWS, sOUT, sWO = 8, 12, 60
    sW, sTB, sHG, sT0, sT1, sCnt, sKH, sHD = 16, 17, 18, 19, 20, 21, 22, 23
    sA = [24, 25]; sB = [26, 27]
    sW3, sNS, sTS, sKM, sOff, sT2, sPoll, sKQ, sOf, sT3, sWoS, sVM = 28, 29, 30, 31, 32, 33, 34, 35, 36, 37, 38, 39
    vLane, vK, vV, vVi, vL16, vGF, vGT = 1, 2, 3, 4, 5, 6, 7
    T = list(range(8, 16))
    Q = [16, 20]; KF, V0, V1 = 24, 28, 32
    Y = 36; Y2 = 44; cA, cM, cE = 48, 49, 50
    CB = 52; S = [68, 84]; O = [100, 116]; ACC = 132; FB = 196; SP = 228
    if EXPV == 4: Y2, E4 = 228, 236
    def acc(i): return ACC + 16 * i
    W = f"s[{sWS}:{sWS+3}]"
    MK = [64, 66, 68, 70, 72, 74, 76, 78]

    a("s_cmp_ge_u32 s2, 256")
    a("s_cbranch_scc1 K2_END")
    ts_begin(a)
    a("s_load_dwordx2 s[4:5], s[0:1], 88")
    a("s_load_dwordx2 s[6:7], s[0:1], 72")
    a("s_load_dwordx2 s[44:45], s[0:1], 32")
    a(f"v_lshrrev_b32 v{T[0]}, 6, v0")
    a(f"v_and_b32 v{vLane}, 63, v0")
    a(f"v_readfirstlane_b32 s{sW}, v{T[0]}")
    map_wg(a, 2, sTB, sHG, sT0, mapmode)
    a(f"v_lshlrev_b32 v{vL16}, 4, v{vLane}")
    a(f"s_lshr_b32 s{sKH}, s{sW}, 2")
    a(f"s_and_b32 s{sW3}, s{sW}, 3")
    a(f"s_and_b32 s{sTS}, s{sW}, 1")
    a(f"s_bfe_u32 s{sNS}, s{sW}, 0x10001")
    a(f"s_lshr_b32 s{sKQ}, s{sW}, 1")
    a(f"s_lshl_b32 s{sHD}, s{sHG}, 2")
    a(f"s_add_u32 s{sHD}, s{sHD}, s{sW3}")
    a(f"s_lshl_b32 s{sT0}, s{sTS}, 16")
    a(f"s_lshl_b32 s{sT1}, s{sNS}, 15")
    a(f"s_add_u32 s{sT0}, s{sT0}, s{sT1}")
    a(f"s_lshl_b32 s{sT1}, s{sKH}, 10")
    a(f"s_add_u32 s{sT0}, s{sT0}, s{sT1}")
    a(f"s_mov_b32 m0, s{sT0}")
    a(f"s_add_u32 s{sOff}, s{sT0}, {WS_KF}")
    a(f"v_and_b32 v{T[0]}, 31, v{vLane}")
    a(f"v_lshrrev_b32 v{T[1]}, 5, v{vLane}")
    if qf:
        a(f"s_lshl_b32 s{sT0}, s{sTB}, 16")
        a(f"s_lshl_b32 s{sT1}, s{sHD}, 10")
        a(f"s_add_u32 s{sT0}, s{sT0}, s{sT1}")
        a(f"s_lshl_b32 s{sT1}, s{sKH}, 15")
        a(f"v_add_u32 v{T[2]}, s{sT1}, v{vL16}")
        a(f"v_xor_b32 v{T[3]}, 0x8000, v{T[2]}")
    else:
        a(f"v_lshlrev_b32 v{T[2]}, 10, v{T[0]}")
        a(f"v_lshl_add_u32 v{T[2]}, v{T[1]}, 4, v{T[2]}")
        a(f"v_xor_b32 v{T[3]}, 0x8000, v{T[2]}")
        a(f"s_lshl_b32 s{sT0}, s{sTB}, 16")
        a(f"s_lshl_b32 s{sT1}, s{sHD}, 5")
        a(f"s_add_u32 s{sT0}, s{sT0}, s{sT1}")
        if WS_Q: a(f"s_add_u32 s{sT0}, s{sT0}, {WS_Q}")
        a(f"s_lshl_b32 s{sT1}, s{sKH}, 15")
        a(f"v_xor_b32 v{T[2]}, s{sT1}, v{T[2]}")
        a(f"v_xor_b32 v{T[3]}, s{sT1}, v{T[3]}")
    a(f"v_lshlrev_b32 v{T[4]}, 2, v{T[0]}")
    a(f"s_mov_b32 s{sKM}, {WS_KMAX}")
    a("s_waitcnt lgkmcnt(0)")
    if PM: ts_mark(a, MK[0])
    srd(a, sWS, 4, WS_SIZE)
    def kv_dma(r):
        vq.issue(f"D{r}", f"buffer_load_dwordx4 v{vL16}, {W}, s{sOff} offen lds")
        if r < 15:
            a(f"s_add_u32 m0, m0, 2048")
            a(f"s_add_u32 s{sOff}, s{sOff}, 2048")
    for r in range(2): kv_dma(r)
    vq.issue("Q", f"buffer_load_dwordx4 {r4(Q[0])}, v{T[2]}, {W}, s{sT0} offen")
    vq.issue("Q", f"buffer_load_dwordx4 {r4(Q[1])}, v{T[3]}, {W}, s{sT0} offen")
    vq.issue("KM", f"buffer_load_dwordx4 {r4(S[1])}, v{vL16}, {W}, s{sKM} offen")
    a("s_barrier")
    for r in range(2, 4): kv_dma(r)
    srd(a, sOUT, 6, 0x200000)
    srd(a, sWO, 44, 0x80000)
    a(f"s_mul_i32 s{sT0}, s{sW}, 14")
    a(f"s_lshl_b32 s{sT1}, s{sHG}, 1")
    a(f"s_add_u32 s{sT1}, s{sT1}, s{sNS}")
    a(f"s_mul_i32 s{sA[0]}, s{sT1}, 112")
    a(f"s_xor_b32 s{sT1}, s{sT1}, 1")
    a(f"s_mul_i32 s{sA[1]}, s{sT1}, 112")
    a(f"s_lshl_b32 s{sT1}, s{sTB}, 1")
    a(f"s_add_u32 s{sT1}, s{sT1}, s{sTS}")
    a(f"s_mul_i32 s{sB[0]}, s{sT1}, 112")
    a(f"s_xor_b32 s{sT1}, s{sT1}, 1")
    a(f"s_mul_i32 s{sB[1]}, s{sT1}, 112")
    for s_, base in ((sA[0], WS_W2F), (sA[1], WS_W2F), (sB[0], WS_HF), (sB[1], WS_HF)):
        a(f"s_add_u32 s{s_}, s{s_}, s{sT0}")
        a(f"s_lshl_b32 s{s_}, s{s_}, 10")
        a(f"s_add_u32 s{s_}, s{s_}, {base}")

    def ffn_load(which, buf, off, step):
        reg = {0: buf, 3: buf + 4, 1: buf + 8, 2: buf + 12}[which]
        s_ = {0: sA[0], 3: sA[1], 1: sB[0], 2: sB[1]}[which]
        vq.issue(f"F{step}.{which}", f"buffer_load_dwordx4 {r4(reg)}, v{vL16}, {W}, s{s_} offen offset:{off}")
    for st in range(2):
        for wh in (0, 1, 2, 3): ffn_load(wh, FB + 16 * st, st * 1024, st)
    a(f"s_lshl_b32 s{sT0}, s{sTB}, 8")
    a(f"s_add_u32 s{sT0}, s{sT0}, {WS_G}")
    a(f"s_lshl_b32 s{sT1}, s{sKH}, 7")
    a(f"s_add_u32 s{sT1}, s{sT1}, s{sT0}")
    vq.issue("G", f"buffer_load_dword v{vGF}, v{T[4]}, {W}, s{sT1} offen")
    a(f"s_lshl_b32 s{sT1}, s{sTS}, 7")
    a(f"s_add_u32 s{sT1}, s{sT1}, s{sT0}")
    vq.issue("G", f"buffer_load_dword v{vGT}, v{T[4]}, {W}, s{sT1} offen")
    for r in range(4, 16): kv_dma(r)
    a(f"s_lshl_b32 s{sT1}, s{sTB}, 1")
    a(f"s_add_u32 s{sT1}, s{sT1}, s{sTS}")
    a(f"s_lshl_b32 s{sT1}, s{sT1}, 5")
    a(f"s_lshl_b32 s{sT0}, s{sKQ}, 3")
    a(f"s_add_u32 s{sT1}, s{sT1}, s{sT0}")
    a(f"s_lshl_b32 s{sT1}, s{sT1}, 10")
    a(f"s_add_u32 s{sOf}, s{sT1}, {WS_OF}")
    a(f"s_lshl_b32 s{sT0}, s{sW}, 16")
    a(f"s_lshl_b32 s{sT1}, s{sHG}, 7")
    a(f"s_add_u32 s{sWoS}, s{sT0}, s{sT1}")
    a(f"v_mov_b32 v{S[0]}, 0x3c003c00")
    a(f"v_mov_b32 v{S[0]+1}, 0x3c003c00")
    a(f"v_lshlrev_b32 v{T[2]}, 3, v0")
    a(f"v_add_u32 v{T[2]}, {L_ONES}, v{T[2]}")
    a(f"ds_write_b64 v{T[2]}, {r2(S[0])}")
    a(f"v_lshlrev_b32 v{T[2]}, 2, v0")
    a(f"v_add_u32 v{T[2]}, {L_ONES + 4096}, v{T[2]}")
    a(f"ds_write_b32 v{T[2]}, v{S[0]}")
    a(f"s_lshl_b32 s{sT0}, s{sKH}, 15")
    a(f"v_add_u32 v{vK}, s{sT0}, v{vL16}")
    a(f"v_lshlrev_b32 v{T[2]}, 8, v{T[1]}")
    a(f"v_lshl_add_u32 v{T[2]}, v{T[0]}, 4, v{T[2]}")
    a(f"s_add_u32 s{sT0}, s{sT0}, {L_V}")
    a(f"v_add_u32 v{T[2]}, s{sT0}, v{T[2]}")
    a(f"v_subrev_u32 v{T[3]}, 20, v{T[0]}")
    a(f"v_cmp_gt_u32 vcc, 8, v{T[3]}")
    a(f"v_mov_b32 v{T[3]}, {L_ONES}")
    a(f"v_mov_b32 v{T[4]}, {L_ONES + 64}")
    a(f"v_cndmask_b32 v{T[3]}, v{T[3]}, v{T[4]}, vcc")
    a(f"v_cmp_gt_u32 vcc, 16, v{T[0]}")
    a(f"v_cndmask_b32 v{vV}, v{T[3]}, v{T[2]}, vcc")
    a(f"v_mov_b32 v{T[3]}, 4096")
    a(f"v_cndmask_b32 v{vVi}, 0, v{T[3]}, vcc")
    for r in range(16):
        a(f"v_mov_b32 v{O[0]+r}, 0")
        a(f"v_mov_b32 v{O[1]+r}, 0")
    for r in range(4):
        a(f"v_mov_b32 v{Y+4+r}, 0")
        a(f"v_mov_b32 v{V1+r}, 0")
    for r in range(64):
        a(f"v_mov_b32 v{ACC+r}, 0")
    if EXPV == 3:
        a(f"v_mov_b32 v{cA}, 0x02000200")
        a(f"v_mov_b32 v{cM}, 0x39a839a8")
    else:
        a(f"v_mov_b32 v{cA}, 0x03ff03ff")
        a(f"v_mov_b32 v{cM}, 0x38003800")
        a(f"v_mov_b32 v{cE}, 0xfc00fc00")
    if PM: ts_mark(a, MK[1])
    vq.wait("KM")
    if PM: ts_mark(a, MK[2])
    km = S[1]
    a(f"v_max_u32 v{km}, v{km}, v{km+1}")
    a(f"v_max3_u32 v{km}, v{km}, v{km+2}, v{km+3}")
    for sh in (1, 2, 4, 8):
        a(f"v_max_u32_dpp v{km}, v{km}, v{km} row_shr:{sh} row_mask:0xf bank_mask:0xf")
    a(f"v_max_u32_dpp v{km}, v{km}, v{km} row_bcast:15 row_mask:0xa bank_mask:0xf")
    a(f"v_readlane_b32 s{sKM}, v{km}, 31")
    a(f"v_readlane_b32 s{sVM}, v{km}, 63")
    a(f"v_mov_b32 v{T[2]}, 0")
    a(f"v_mov_b32 v{T[3]}, 0")
    for r in range(4):
        a(f"v_dot2_f32_bf16 v{T[2]}, v{Q[0]+r}, v{Q[0]+r}, v{T[2]}")
        a(f"v_dot2_f32_bf16 v{T[3]}, v{Q[1]+r}, v{Q[1]+r}, v{T[3]}")
    a(f"v_mov_b32 v{T[5]}, v{T[2]}")
    a(f"v_mov_b32 v{T[6]}, v{T[3]}")
    a(f"v_permlane32_swap_b32 v{T[2]}, v{T[5]}")
    a(f"v_permlane32_swap_b32 v{T[3]}, v{T[6]}")
    a(f"v_add_f32 v{T[2]}, v{T[2]}, v{T[5]}")
    a(f"v_add_f32 v{T[3]}, v{T[3]}, v{T[6]}")
    a(f"v_max_u32 v{T[2]}, v{T[2]}, v{T[3]}")
    a(f"v_mul_f32 v{T[2]}, s{sKM}, v{T[2]}")
    a(f"v_sqrt_f32 v{T[2]}, v{T[2]}")
    a(f"s_sub_u32 s{sT0}, s{sVM}, 0x3c800000")
    a(f"s_cmp_le_u32 s{sT0}, {0x47000000 - 0x3c800000}")
    a(f"s_cselect_b32 s{sT0}, 0, 0x7f800000")
    a(f"v_add_f32 v{T[2]}, s{sT0}, v{T[2]}")
    a(f"v_sub_f32 v{CB}, {f32hex(TBITS / 65535.0)}, v{T[2]}")
    for r in range(1, 16): a(f"v_mov_b32 v{CB+r}, v{CB}")
    vq.wait("D1", "lgkmcnt(0)")
    if PM: ts_mark(a, MK[3])
    a("s_barrier")
    ts_mark(a, MK[4] if PM else MK[0])
    a(f"ds_read_b128 {r4(KF)}, v{vK}")
    a(f"ds_read_b128 {r4(V0)}, v{vV}")

    def valu3(Sx):
        seq = []
        for k in range(10):
            if k < 8: seq.append(f"v_cvt_pknorm_u16_f32 v{Y+k}, v{Sx+2*k}, v{Sx+2*k+1}")
            if 0 <= k - 1 < 8: seq.append(f"v_add_u32 v{Y2+(k-1)%4}, v{cA}, v{Y+k-1}")
            if 0 <= k - 2 < 8: seq.append(f"v_pk_fma_f16 v{Y+k-2}, v{Y2+(k-2)%4}, v{cM}, v{Y+k-2}")
        return seq
    def valu4(Sx):
        seq = []
        for k in range(10):
            if k < 8: seq.append(f"v_cvt_pknorm_u16_f32 v{Y+k}, v{Sx+2*k}, v{Sx+2*k+1}")
            if 0 <= k - 1 < 8:
                seq.append(f"v_bitop3_b32 v{Y2+(k-1)%4}, v{Y+k-1}, v{cA}, v{cM} bitop3:0xea")
                seq.append(f"v_and_b32 v{E4+(k-1)%4}, v{cE}, v{Y+k-1}")
            if 0 <= k - 2 < 8: seq.append(f"v_pk_fma_f16 v{Y+k-2}, v{Y+k-2}, v{Y2+(k-2)%4}, v{E4+(k-2)%4}")
        return seq

    wodma = [0]
    def unit(x, tl, u, mode, body):
        y = 1 - x
        Sx, Sy, Ox, Oy = S[x], S[y], O[x], O[y]
        lasttile = (mode == 'last' and tl == 3)
        seq = valu3(Sx) if EXPV == 3 else valu4(Sx)
        pos = POS if EXPV == 3 else [0, 8, 20, 28]
        def slot0():
            if x == 1: a(f"s_waitcnt lgkmcnt({0 if lasttile else 1})")
            a(f"v_mfma_f32_32x32x16_f16 {r16(Oy)}, {r4(V1)}, {r4(Y+4)}, {r16(Oy)}")
            if x == 0: a(f"ds_read_b128 {r4(V1)}, v{vV} offset:{tl*1024+512}")
        def slot1():
            if x == 0:
                a(f"v_mfma_f32_32x32x16_bf16 {r16(Sy)}, {r4(KF)}, {r4(Q[y])}, {r16(CB)}")
                if not lasttile: a(f"ds_read_b128 {r4(KF)}, v{vK} offset:{(tl+1)*1024}")
            elif not lasttile:
                a("s_waitcnt lgkmcnt(0)")
                a(f"v_mfma_f32_32x32x16_bf16 {r16(Sy)}, {r4(KF)}, {r4(Q[y])}, {r16(CB)}")
        def slot2():
            ls, m = u >> 2, u & 3
            buf = FB + ls * 16
            A0, A1, B0, B1 = buf, buf + 4, buf + 8, buf + 12
            if mode == 'last' and u < 8:
                vq.issue("WO", f"buffer_load_dwordx4 v{T[7]}, s[{sWO}:{sWO+3}], s{sWoS} offen lds")
                if u < 7:
                    a(f"s_add_u32 m0, m0, 1024")
                    a(f"s_add_u32 s{sWoS}, s{sWoS}, 8192")
            if mode == 'first': return
            pre = (mode == 'mid')
            st = 2 * (body - 1) + ls
            off = (ls + 2) * 1024
            if m == 0:
                vq.wait(f"F{st}.1")
                a(f"v_mfma_f32_32x32x16_bf16 {r16(acc(0))}, {r4(A0)}, {r4(B0)}, {r16(acc(0))}")
            elif m == 1:
                vq.wait(f"F{st}.2")
                a(f"v_mfma_f32_32x32x16_bf16 {r16(acc(2))}, {r4(A0)}, {r4(B1)}, {r16(acc(2))}")
                if pre: ffn_load(0, buf, off, st + 2)
            elif m == 2:
                vq.wait(f"F{st}.3")
                a(f"v_mfma_f32_32x32x16_bf16 {r16(acc(1))}, {r4(A1)}, {r4(B0)}, {r16(acc(1))}")
                if pre: ffn_load(1, buf, off, st + 2)
            else:
                a(f"v_mfma_f32_32x32x16_bf16 {r16(acc(3))}, {r4(A1)}, {r4(B1)}, {r16(acc(3))}")
                if pre:
                    ffn_load(2, buf, off, st + 2); ffn_load(3, buf, off, st + 2)
        def slot3():
            if x == 0: a(f"s_waitcnt lgkmcnt({1 if lasttile else 2})")
            a(f"v_mfma_f32_32x32x16_f16 {r16(Ox)}, {r4(V0)}, {r4(Y)}, {r16(Ox)}")
            if x == 1 and not lasttile: a(f"ds_read_b128 {r4(V0)}, v{vV} offset:{(tl+1)*1024}")
        slots = [slot0, slot1, slot2, slot3]
        mi = 0
        for i, s_ in enumerate(seq):
            while mi < 4 and pos[mi] == i:
                slots[mi](); mi += 1
            a(s_)
        while mi < 4:
            slots[mi](); mi += 1

    def body(mode, b, bar=None):
        for tl in range(4):
            if tl == 3 and bar is not None:
                vq.wait(bar)
                a("s_barrier")
            for x in range(2):
                unit(x, tl, tl * 2 + x, mode, b)
                if os.environ.get("DUMP") and mode == 'first' and tl == 0 and x == 0:
                    a("s_cmp_lg_u32 s2, 0")
                    a("s_cbranch_scc1 K2_NODUMP")
                    a(f"s_cmp_lg_u32 s{sW}, 0")
                    a("s_cbranch_scc1 K2_NODUMP")
                    a("s_mov_b32 s50, 0xF00000")
                    for r in range(4): a(f"buffer_store_dwordx4 {r4(S[0]+4*r)}, v{vL16}, {W}, s50 offen offset:{r*1024}")
                    a("s_mov_b32 s50, 0xF01000")
                    for r in range(2): a(f"buffer_store_dwordx4 {r4(Y+4*r)}, v{vL16}, {W}, s50 offen offset:{r*1024}")
                    a(f"buffer_store_dwordx4 {r4(CB)}, v{vL16}, {W}, s50 offen offset:2048")
                    a(f"buffer_store_dwordx4 {r4(Q[0])}, v{vL16}, {W}, s50 offen offset:3072")
                    a("s_waitcnt vmcnt(0)")
                    a.label("K2_NODUMP")
        if mode != 'last':
            a(f"v_add_u32 v{vK}, 4096, v{vK}")
            a(f"v_add_u32 v{vV}, v{vVi}, v{vV}")
        if mode == 'mid':
            for s_ in sA + sB: a(f"s_add_u32 s{s_}, s{s_}, 2048")

    a("s_waitcnt lgkmcnt(1)")
    a(f"v_mfma_f32_32x32x16_bf16 {r16(S[0])}, {r4(KF)}, {r4(Q[0])}, {r16(CB)}")
    body('first', 0, "D3")
    ts_mark(a, MK[5] if PM else MK[1])
    body('mid', 1, "D5")
    vq.wait("D15")
    a("s_barrier")
    a(f"s_mov_b32 s{sCnt}, 5")
    a.label("K2_LOOP")
    n0 = len(a.ins)
    body('mid', 2)
    t1 = [i.text for i in a.ins[n0:]]
    save = a.ins; a.ins = []
    body('mid', 3)
    t2 = [i.text for i in a.ins]
    a.ins = save
    assert t1 == t2, "loop body not in steady state"
    for b in (4, 5, 6):
        a.ins = []
        body('mid', b)
    a.ins = save
    a(f"s_sub_u32 s{sCnt}, s{sCnt}, 1")
    a(f"s_cmp_lg_u32 s{sCnt}, 0")
    a(f"s_cbranch_scc1 K2_LOOP")
    if not PM: ts_mark(a, MK[2])
    a(f"v_lshrrev_b32 v{T[6]}, 3, v{vLane}")
    a(f"v_and_b32 v{T[7]}, 7, v{vLane}")
    a(f"v_bfe_u32 v{T[5]}, v{T[6]}, 1, 1")
    a(f"v_lshlrev_b32 v{T[5]}, 2, v{T[5]}")
    a(f"v_xor_b32 v{T[7]}, v{T[7]}, v{T[5]}")
    a(f"v_lshlrev_b32 v{T[7]}, 4, v{T[7]}")
    a(f"v_lshl_add_u32 v{T[7]}, v{T[6]}, 10, v{T[7]}")
    a(f"s_lshl_b32 s{sT0}, s{sKQ}, 15")
    a(f"s_lshl_b32 s{sT1}, s{sTS}, 13")
    a(f"s_add_u32 m0, s{sT0}, s{sT1}")
    a("s_barrier")
    body('last', 7)
    ts_mark(a, MK[6] if PM else MK[3])
    a(f"v_mfma_f32_32x32x16_f16 {r16(O[1])}, {r4(V1)}, {r4(Y+4)}, {r16(O[1])}")
    a(f"s_mul_i32 s{sT0}, s{sW}, 2304")
    a(f"s_add_u32 s{sT0}, s{sT0}, {L_XCH}")
    a(f"v_add_u32 v{T[0]}, s{sT0}, v{vL16}")
    a(f"v_lshlrev_b32 v{T[1]}, 2, v{vLane}")
    a(f"v_add_u32 v{T[1]}, s{sT0}, v{T[1]}")
    a(f"s_xor_b32 s{sT1}, s{sW}, 4")
    a(f"s_mul_i32 s{sT1}, s{sT1}, 2304")
    a(f"s_add_u32 s{sT1}, s{sT1}, {L_XCH}")
    a(f"v_add_u32 v{T[2]}, s{sT1}, v{vL16}")
    a(f"v_lshlrev_b32 v{T[3]}, 2, v{vLane}")
    a(f"v_add_u32 v{T[3]}, s{sT1}, v{T[3]}")
    a(f"s_lshl_b32 s{sT0}, s{sKQ}, 15")
    a(f"s_lshl_b32 s{sT1}, s{sTS}, 13")
    a(f"s_add_u32 s{sT0}, s{sT0}, s{sT1}")
    a(f"s_add_u32 s{sT0}, s{sT0}, 16384")
    a(f"v_add_u32 v{T[4]}, s{sT0}, v{vL16}")
    a(f"v_xor_b32 v{T[5]}, 8192, v{T[4]}")
    a(f"s_lshl_b32 s{sT0}, s{sTB}, 1")
    a(f"s_add_u32 s{sT0}, s{sT0}, s{sKH}")
    a(f"s_lshl_b32 s{sT0}, s{sT0}, 5")
    a(f"s_add_u32 s{sT0}, s{sT0}, s{sHD}")
    a(f"s_lshl_b32 s{sT0}, s{sT0}, 10")
    a(f"s_add_u32 s{sT3}, s{sT0}, {WS_OF}")
    a(f"ds_write_b128 v{T[0]}, {r4(O[1])}")
    a(f"ds_write_b128 v{T[0]}, {r4(O[1]+4)} offset:1024")
    a(f"ds_write_b32 v{T[1]}, v{O[1]+8} offset:2048")
    a("s_waitcnt lgkmcnt(0)")
    a("s_barrier")
    a(f"ds_read_b128 {r4(KF)}, v{T[2]}")
    a(f"ds_read_b128 {r4(V0)}, v{T[2]} offset:1024")
    a(f"ds_read_b32 v{V1}, v{T[3]} offset:2048")
    for i in range(2):
        for rq in range(4):
            a(f"ds_write_b128 v{T[4]}, {r4(acc(2+i)+4*rq)} offset:{i*4096+rq*1024}")
    a("s_waitcnt lgkmcnt(8)")
    a(f"v_add_f32 v{V1}, v{V1}, v{O[0]+8}")
    for r in range(4):
        a(f"v_add_f32 v{O[0]+r}, v{O[0]+r}, v{KF+r}")
        a(f"v_add_f32 v{O[0]+4+r}, v{O[0]+4+r}, v{V0+r}")
    a(f"v_subrev_u32 v{T[0]}, {LMIN_BITS}, v{V1}")
    a(f"v_cmp_gt_u32 vcc, {0x7f800000 - LMIN_BITS}, v{T[0]}")
    a("s_cmp_eq_u64 vcc, -1")
    a("s_cbranch_scc0 K2_SLOW")
    a.label("K2_NORM")
    a(f"v_rcp_f32 v{V1}, v{V1}")
    a(f"v_mul_f32 v{V1}, v{V1}, v{vGF}")
    for r in range(8): a(f"v_mul_f32 v{O[0]+r}, v{O[0]+r}, v{V1}")
    for r in range(4): a(f"v_cvt_pk_bf16_f32 v{Y+r}, v{O[0]+2*r}, v{O[0]+2*r+1}")
    a(f"buffer_store_dwordx4 {r4(Y)}, v{vL16}, {W}, s{sT3} offen sc1")
    if not PM: ts_mark(a, MK[4])
    OFR = [FB + 4 * i for i in range(8)]
    def of_loads(lo, hi):
        for i in range(lo, hi):
            a(f"buffer_load_dwordx4 {r4(OFR[i])}, v{vL16}, {W}, s{sOf if i < 4 else sT2} offen offset:{(i%4)*1024} sc1")
    a(f"s_add_u32 s{sT2}, s{sOf}, 4096")
    of_loads(0, 8)
    a(f"v_lshrrev_b32 v{T[0]}, 5, v{vLane}")
    a(f"v_bfe_u32 v{T[1]}, v{vLane}, 2, 2")
    a(f"v_lshl_add_u32 v{T[0]}, v{T[0]}, 2, v{T[1]}")
    a(f"v_lshlrev_b32 v{T[0]}, 7, v{T[0]}")
    a(f"v_bfe_u32 v{T[1]}, v{vLane}, 3, 1")
    a(f"v_lshl_add_u32 v{T[0]}, v{T[1]}, 6, v{T[0]}")
    a(f"v_bfe_u32 v{T[1]}, v{vLane}, 4, 1")
    a(f"v_lshl_add_u32 v{T[0]}, v{T[1]}, 5, v{T[0]}")
    a(f"v_and_b32 v{T[1]}, 3, v{vLane}")
    a(f"v_lshl_add_u32 v{T[0]}, v{T[1]}, 3, v{T[0]}")
    a(f"s_lshl_b32 s{sT0}, s{sKQ}, 15")
    a(f"s_lshl_b32 s{sT1}, s{sNS}, 6")
    a(f"v_add_u32 v{T[0]}, s{sT0}, v{T[0]}")
    a(f"v_xor_b32 v{T[0]}, s{sT1}, v{T[0]}")
    a(f"v_xor_b32 v{T[1]}, 64, v{T[0]}")
    a("s_waitcnt vmcnt(9) lgkmcnt(0)")
    a("s_barrier")
    for i in range(2):
        for rq in range(4):
            a(f"ds_read_b128 {r4(S[0]+16*i+4*rq)}, v{T[5]} offset:{i*4096+rq*1024}")
    WOA = [acc(2) + 4 * i for i in range(8)]
    WOB = [SP + 4 * i for i in range(7)] + [O[1]]
    a(f"v_sub_f32 v{vGT}, 1.0, v{vGT}")
    for h in range(8):
        for t in range(2):
            a(f"ds_read_b64_tr_b16 {r2(WOA[h]+2*t)}, v{T[0]} offset:{h*2048+t*1024}")
        if h == 3:
            a("s_waitcnt lgkmcnt(8)")
            for r in range(32):
                a(f"v_add_f32 v{ACC+r}, v{ACC+r}, v{S[0]+r}")
    for h in range(8):
        for t in range(2):
            a(f"ds_read_b64_tr_b16 {r2(WOB[h]+2*t)}, v{T[1]} offset:{h*2048+t*1024}")
    for r in range(32):
        a(f"v_mul_f32 v{ACC+r}, v{ACC+r}, v{vGT}")
    a(f"s_mul_i32 s{sT0}, s{sKQ}, {F2}")
    a(f"s_lshl_b32 s{sT1}, s{sTS}, 10")
    a(f"s_add_u32 s{sT0}, s{sT0}, s{sT1}")
    a(f"s_mul_i32 s{sT1}, s{sNS}, {4*CS}")
    a(f"s_add_u32 s{sT1}, s{sT1}, s{sT0}")
    a(f"v_add_u32 v{T[2]}, s{sT1}, v{vL16}")
    a(f"s_xor_b32 s{sT1}, s{sNS}, 1")
    a(f"s_mul_i32 s{sT1}, s{sT1}, {4*CS}")
    a(f"s_add_u32 s{sT1}, s{sT1}, s{sT0}")
    a(f"v_add_u32 v{T[3]}, s{sT1}, v{vL16}")
    a(f"v_and_b32 v{T[4]}, 7, v{vLane}")
    a(f"v_lshrrev_b32 v{T[5]}, 3, v{vLane}")
    a(f"v_mul_u32_u24 v{T[6]}, {CS}, v{T[4]}")
    a(f"v_lshl_add_u32 v{T[6]}, v{T[5]}, 4, v{T[6]}")
    a(f"s_lshl_b32 s{sT0}, s{sKH}, 10")
    a(f"s_lshl_b32 s{sT1}, s{sW3}, 7")
    a(f"s_add_u32 s{sT0}, s{sT0}, s{sT1}")
    a(f"v_add_u32 v{T[6]}, s{sT0}, v{T[6]}")
    a(f"v_add_u32 v{T[7]}, {2*F2}, v{T[6]}")
    a(f"v_lshlrev_b32 v{T[5]}, 10, v{T[5]}")
    a(f"v_lshl_add_u32 v{T[5]}, v{T[4]}, 4, v{T[5]}")
    a(f"s_lshl_b32 s{sT0}, s{sTB}, 16")
    a(f"s_lshl_b32 s{sT1}, s{sW}, 13")
    a(f"s_add_u32 s{sT0}, s{sT0}, s{sT1}")
    a(f"s_lshl_b32 s{sT1}, s{sHG}, 7")
    a(f"s_add_u32 s{sT3}, s{sT0}, s{sT1}")
    a("s_waitcnt lgkmcnt(0)")
    a("s_barrier")
    if not PM: ts_mark(a, MK[5])
    for g in range(4):
        a(f"s_mov_b32 s{sPoll}, 4096")
        a(f"s_waitcnt vmcnt({6 - 2*g})")
        a.label(f"K2_POLL{g}")
        rr = [OFR[i] + k for i in (2 * g, 2 * g + 1) for k in range(4)]
        a(f"v_max_u32 v{T[0]}, v{rr[0]}, v{rr[1]}")
        for k in range(2, 8, 2):
            a(f"v_max3_u32 v{T[0]}, v{rr[k]}, v{rr[k+1]}, v{T[0]}")
        a(f"v_cmp_eq_u32 vcc, -1, v{T[0]}")
        a(f"s_cbranch_vccz K2_GO{g}")
        a(f"s_sub_u32 s{sPoll}, s{sPoll}, 1")
        a(f"s_cmp_eq_u32 s{sPoll}, 0")
        a(f"s_cbranch_scc1 K2_GO{g}")
        of_loads(2 * g, 2 * g + 2)
        a("s_waitcnt vmcnt(0)")
        a(f"s_branch K2_POLL{g}")
        a.label(f"K2_GO{g}")
        for i in (2 * g, 2 * g + 1):
            a(f"v_mfma_f32_32x32x16_bf16 {r16(acc(0))}, {r4(WOA[i])}, {r4(OFR[i])}, {r16(acc(0))}")
            a(f"v_mfma_f32_32x32x16_bf16 {r16(acc(1))}, {r4(WOB[i])}, {r4(OFR[i])}, {r16(acc(1))}")
    if not PM: ts_mark(a, MK[6])
    for i in range(2):
        for rq in range(4):
            a(f"ds_write_b128 v{T[2+i]}, {r4(acc(i)+4*rq)} offset:{rq*CS}")
    a("s_waitcnt lgkmcnt(0)")
    a("s_barrier")
    R = S[0]
    for kq in range(4):
        base = T[6] if kq < 2 else T[7]
        for h in range(2):
            a(f"ds_read_b128 {r4(R+(kq*2+h)*4)}, v{base} offset:{(kq&1)*F2+h*512}")
    a("s_waitcnt lgkmcnt(4)")
    for k in range(8): a(f"v_add_f32 v{R+k}, v{R+k}, v{R+8+k}")
    a("s_waitcnt lgkmcnt(0)")
    for k in range(8): a(f"v_add_f32 v{R+16+k}, v{R+16+k}, v{R+24+k}")
    for k in range(8): a(f"v_add_f32 v{R+k}, v{R+k}, v{R+16+k}")
    for k in range(4): a(f"v_cvt_pk_bf16_f32 v{Y+k}, v{R+2*k}, v{R+2*k+1}")
    a(f"buffer_store_dwordx4 {r4(Y)}, v{T[5]}, s[{sOUT}:{sOUT+3}], s{sT3} offen")
    ts_mark(a, MK[7])
    if TS: a("s_waitcnt lgkmcnt(0)")
    ts_end(a, 1, sWS, sW, MK[:4])
    if TS:
        a("s_mov_b64 exec, -1")
        for i in range(4): a(f"v_mov_b32 v{i}, s{MK[4+i]}")
        a(f"s_add_u32 s4, s4, 0x20000")
        a("s_mov_b64 exec, 1")
        a(f"buffer_store_dwordx4 v[0:3], v8, s[{sWS}:{sWS+3}], s4 offen offset:16")
    a("s_endpgm")

    a.label("K2_SLOW")
    M = T[0]
    CI = 65535.0 / 1024.0
    a(f"v_mov_b32 v{M}, 0xff800000")
    a(f"s_mov_b32 s{sT0}, {WS_KF}")
    a(f"s_mov_b32 s{sCnt}, 64")
    a.label("K2_SL1")
    a(f"buffer_load_dwordx4 {r4(KF)}, v{vL16}, {W}, s{sT0} offen")
    a(f"s_add_u32 s{sT0}, s{sT0}, 1024")
    a("s_waitcnt vmcnt(0)")
    a(f"v_mfma_f32_32x32x16_bf16 {r16(S[0])}, {r4(KF)}, {r4(Q[0])}, 0")
    for r in range(0, 16, 2):
        a(f"v_max3_f32 v{M}, v{S[0]+r}, v{S[0]+r+1}, v{M}")
    a(f"s_sub_u32 s{sCnt}, s{sCnt}, 1")
    a(f"s_cmp_lg_u32 s{sCnt}, 0")
    a("s_cbranch_scc1 K2_SL1")
    a(f"v_mov_b32 v{T[1]}, v{M}")
    a(f"v_permlane32_swap_b32 v{M}, v{T[1]}")
    a(f"v_max_f32 v{M}, v{M}, v{T[1]}")
    a(f"v_mul_f32 v{M}, {f32hex(-CI)}, v{M}")
    a(f"v_mov_b32 v{T[1]}, {f32hex(CI)}")
    a(f"v_and_b32 v{T[2]}, 15, v{vLane}")
    a(f"v_lshlrev_b32 v{T[2]}, 4, v{T[2]}")
    a(f"v_lshrrev_b32 v{T[3]}, 5, v{vLane}")
    a(f"v_lshl_add_u32 v{T[2]}, v{T[3]}, 8, v{T[2]}")
    a(f"v_and_b32 v{T[3]}, 16, v{vLane}")
    a(f"v_cmp_eq_u32 s[40:41], 0, v{T[3]}")
    a(f"v_mov_b32 v{T[3]}, 0x3f803f80")
    for r in range(16): a(f"v_mov_b32 v{O[0]+r}, 0")
    a(f"s_mov_b32 s{sT0}, {WS_KF}")
    a(f"s_mov_b32 s{sT1}, {WS_VB}")
    a(f"s_mov_b32 s{sCnt}, 64")
    a.label("K2_SL2")
    a(f"buffer_load_dwordx4 {r4(KF)}, v{vL16}, {W}, s{sT0} offen")
    a(f"buffer_load_dwordx4 {r4(V0)}, v{T[2]}, {W}, s{sT1} offen")
    a(f"buffer_load_dwordx4 {r4(S[1])}, v{T[2]}, {W}, s{sT1} offen offset:512")
    a(f"s_add_u32 s{sT0}, s{sT0}, 1024")
    a(f"s_add_u32 s{sT1}, s{sT1}, 1024")
    a("s_waitcnt vmcnt(0)")
    a(f"v_mfma_f32_32x32x16_bf16 {r16(S[0])}, {r4(KF)}, {r4(Q[0])}, 0")
    for r in range(4):
        a(f"v_cndmask_b32 v{V0+r}, v{T[3]}, v{V0+r}, s[40:41]")
        a(f"v_cndmask_b32 v{S[1]+r}, v{T[3]}, v{S[1]+r}, s[40:41]")
    for r in range(16):
        a(f"v_fma_f32 v{S[0]+r}, v{S[0]+r}, v{T[1]}, v{M}")
        a(f"v_exp_f32 v{S[0]+r}, v{S[0]+r}")
    for k in range(8):
        a(f"v_cvt_pk_bf16_f32 v{Y+k}, v{S[0]+2*k}, v{S[0]+2*k+1}")
    a(f"v_mfma_f32_32x32x16_bf16 {r16(O[0])}, {r4(V0)}, {r4(Y)}, {r16(O[0])}")
    a(f"v_mfma_f32_32x32x16_bf16 {r16(O[0])}, {r4(S[1])}, {r4(Y+4)}, {r16(O[0])}")
    a(f"s_sub_u32 s{sCnt}, s{sCnt}, 1")
    a(f"s_cmp_lg_u32 s{sCnt}, 0")
    a("s_cbranch_scc1 K2_SL2")
    a(f"v_mov_b32 v{V1}, v{O[0]+8}")
    a("s_branch K2_NORM")
    a.label("K2_END")
    a("s_endpgm")
    return a

def build3(out):
    mm = os.environ.get("MAP", "simple")
    ks = [
        ("k1_kernel", gen_k1("k1_kernel", sentinel=True, newv=True), 256, 256, 163840, 512, 256),
        ("k2_kernel", gen_k2q("k2_kernel", mm), 256, 512, K2_LDS3, 256, 256),
    ]
    txt = HEADER
    for nm, a, g, b, lds, vg, acc in ks:
        txt += f"; @launch kernel={nm} grid=({g},1,1) block=({b},1,1) lds={lds}\n"
    txt += '.amdgcn_target "amdgcn-amd-amdhsa--gfx950"\n.text\n'
    for nm, a, g, b, lds, vg, acc in ks:
        n = a.fix()
        txt += kernel_header(nm) + a.text()
    txt += '.section .rodata,"a"\n'
    for nm, a, g, b, lds, vg, acc in ks:
        txt += kernel_desc(nm, vg, acc)
    open(out, "w").write(txt)

if __name__ == "__main__":
    out = sys.argv[1] if len(sys.argv) > 1 else "v3.s"
    build3(out)
```

```python
import sys, os
sys.path.insert(0, os.path.dirname(os.path.abspath(__file__)))
from asmlib import Asm
from gen import (WS_KF, WS_VF, WS_G, WS_KMAX, WS_HF, WS_W2F, WS_OF, WS_SIZE, QS2, WS_VB, WS_VMAX, f32hex, srd,
                 ts_begin, ts_mark, ts_end, TS)
WS_QF = 0

def r4(x): return f"v[{x}:{x+3}]"
def r2(x): return f"v[{x}:{x+1}]"
def r16(x): return f"v[{x}:{x+15}]"

XIMG, RING, SLOT, HOFF = 0, 65536, 18432, 4096
KVW = RING + 4 * SLOT
GATE = KVW + 16384
W2P = GATE + 1024
K1N_LDS = W2P + 7 * 1024
assert K1N_LDS == 163840
ST = os.environ.get("K1ST", "")
if ST: ST = " " + ST

def map_t8(a, sB, sTB, sCG, sT0, mode):
    if mode == 'simple':
        a(f"s_and_b32 s{sTB}, s{sB}, 31")
        a(f"s_lshr_b32 s{sCG}, s{sB}, 5")
    else:
        a(f"s_and_b32 s{sCG}, s{sB}, 1")
        a(f"s_lshl_b32 s{sCG}, s{sCG}, 2")
        a(f"s_bfe_u32 s{sT0}, s{sB}, 0x20003")
        a(f"s_or_b32 s{sCG}, s{sCG}, s{sT0}")
        a(f"s_bfe_u32 s{sTB}, s{sB}, 0x20001")
        a(f"s_lshl_b32 s{sTB}, s{sTB}, 3")
        a(f"s_lshr_b32 s{sT0}, s{sB}, 5")
        a(f"s_or_b32 s{sTB}, s{sTB}, s{sT0}")

def gen_k1n(name, mapmode='T8'):
    a = Asm()
    a.label(name)
    P = "K1_"
    sX, sW1, sWQ, sKV, sWS, sW2, sGT = 36, 40, 44, 48, 52, 56, 60
    sTB, sCG, sW, sT0, sT1, sC, sSlot, sK, sSo, sT2, sT3, sTYPE, sTT, sM = 64, 65, 66, 67, 68, 69, 70, 71, 72, 73, 74, 75, 76, 77
    sSoQ, sSoH, sLo, sSc, sTsS = 78, 79, 80, 81, 82
    MK = [84, 86, 88, 90]
    vLane, vL16 = 1, 2
    T = list(range(4, 16))
    a("s_cmp_ge_u32 s2, 256")
    a(f"s_cbranch_scc1 {P}END")
    ts_begin(a)
    a("s_load_dwordx16 s[16:31], s[0:1], 0")
    a("s_load_dwordx2 s[32:33], s[0:1], 64")
    a("s_load_dwordx2 s[34:35], s[0:1], 88")
    map_t8(a, 2, sTB, sCG, sT0, mapmode)
    a(f"v_lshrrev_b32 v{T[0]}, 6, v0")
    a(f"v_and_b32 v{vLane}, 63, v0")
    a(f"v_readfirstlane_b32 s{sW}, v{T[0]}")
    a(f"v_lshlrev_b32 v{vL16}, 4, v{vLane}")
    a(f"s_and_b32 s{sTYPE}, s{sCG}, 1")
    a(f"s_lshr_b32 s{sTT}, s{sCG}, 1")
    a(f"s_cmp_ge_u32 s{sW}, 4")
    a(f"s_cbranch_scc1 {P}LOADER")

    vX0, vXt, vE = 16, 17, 18
    vA0, vA1, vAc0, vAc1, vB, vBt = 20, 21, 22, 23, 24, 25
    AF = [[32, 36], [40, 44]]
    BF = [[48, 52], [56, 60]]
    ACC = 64
    def acc(ct, ts): return ACC + (ct * 2 + ts) * 16
    a(f"v_lshrrev_b32 v{T[0]}, 5, v{vLane}")
    a(f"v_and_b32 v{T[1]}, 31, v{vLane}")
    a(f"v_xor_b32 v{T[2]}, v{T[1]}, v{T[0]}")
    a(f"v_lshlrev_b32 v{T[2]}, 4, v{T[2]}")
    a(f"v_lshl_add_u32 v{vX0}, v{T[0]}, 10, v{T[2]}")
    a(f"s_lshl_b32 s{sT0}, s{sTB}, 16")
    a(f"s_lshl_b32 s{sT1}, s{sW}, 14")
    a(f"s_add_u32 s{sSo}, s{sT0}, s{sT1}")
    a(f"s_lshl_b32 s{sT2}, s{sW}, 13")
    a(f"v_lshrrev_b32 v{T[3]}, 1, v{vLane}")
    a(f"v_and_b32 v{T[4]}, 0x13, v{T[3]}")
    a(f"v_bfe_u32 v{T[5]}, v{T[3]}, 2, 1")
    a(f"v_bfe_u32 v{T[6]}, v{T[3]}, 3, 1")
    a(f"v_lshl_add_u32 v{T[4]}, v{T[5]}, 3, v{T[4]}")
    a(f"v_lshl_add_u32 v{T[4]}, v{T[6]}, 2, v{T[4]}")
    a(f"v_lshlrev_b32 v{T[4]}, 5, v{T[4]}")
    a(f"v_and_b32 v{T[5]}, 1, v{vLane}")
    a(f"v_lshl_add_u32 v{T[4]}, v{T[5]}, 4, v{T[4]}")
    a(f"v_lshrrev_b32 v{T[5]}, 2, v{vLane}")
    a(f"v_lshlrev_b32 v{T[5]}, 10, v{T[5]}")
    a(f"v_and_b32 v{T[6]}, 3, v{vLane}")
    a(f"v_lshl_add_u32 v{T[5]}, v{T[6]}, 4, v{T[5]}")
    a("s_waitcnt lgkmcnt(0)")
    ts_mark(a, MK[0])
    srd(a, sX, 16, 0x200000)
    def xdma(h):
        a(f"s_add_u32 m0, s{sT2}, {XIMG + h*32768}")
        a(f"s_add_u32 s{sT0}, s{sSo}, {h*512}")
        for i in range(8):
            if i == 0:
                a(f"buffer_load_dwordx4 v{vX0}, s[{sX}:{sX+3}], s{sT0} offen lds")
            else:
                a(f"v_xor_b32 v{vXt + (i&1)}, {32*i}, v{vX0}")
                a(f"s_add_u32 m0, m0, 1024")
                a(f"s_add_u32 s{sT0}, s{sT0}, 2048")
                a(f"buffer_load_dwordx4 v{vXt + (i&1)}, s[{sX}:{sX+3}], s{sT0} offen lds")
    xdma(0)
    a(f"s_cmp_eq_u32 s{sTYPE}, 0")
    a(f"s_cselect_b32 s{sKV}, s20, s22")
    a(f"s_cselect_b32 s{sKV+1}, s21, s23")
    a(f"s_mov_b32 s{sKV+2}, 16384")
    a(f"s_mov_b32 s{sKV+3}, 0x00020000")
    srd(a, sW2, 30, 1792 * 1024)
    srd(a, sGT, 32, 1024)
    a(f"s_lshl_b32 s{sT0}, s{sW}, 12")
    a(f"s_add_u32 m0, s{sT0}, {KVW}")
    for i in range(4):
        a(f"buffer_load_dwordx4 v{T[4]}, s[{sKV}:{sKV+3}], s{sT0} offen offset:{i*1024} lds")
    a(f"s_lshl_b32 s{sT0}, s{sTB}, 3")
    a(f"s_add_u32 s{sT0}, s{sT0}, s{sCG}")
    a(f"s_and_b32 s{sT1}, s{sT0}, 15")
    a(f"s_lshl_b32 s{sT1}, s{sT1}, 6")
    a(f"s_lshr_b32 s{sT0}, s{sT0}, 4")
    a(f"s_mul_i32 s{sT0}, s{sT0}, {112*1024}")
    a(f"s_add_u32 s{sT0}, s{sT0}, s{sT1}")
    a(f"s_lshl_b32 s{sT1}, s{sW}, 15")
    a(f"s_add_u32 s{sT0}, s{sT0}, s{sT1}")
    a(f"s_lshl_b32 s{sT1}, s{sW}, 11")
    a(f"s_add_u32 m0, s{sT1}, {W2P}")
    a(f"buffer_load_dwordx4 v{T[5]}, s[{sW2}:{sW2+3}], s{sT0} offen lds")
    a(f"s_cmp_eq_u32 s{sW}, 0")
    a(f"s_cbranch_scc1 {P}GATE")
    a(f"s_sub_u32 s{sT0}, s{sT0}, 16384")
    a(f"s_sub_u32 m0, m0, 1024")
    a(f"buffer_load_dwordx4 v{T[5]}, s[{sW2}:{sW2+3}], s{sT0} offen lds")
    a(f"s_branch {P}GDONE")
    a.label(f"{P}GATE")
    a(f"s_mov_b32 m0, {GATE}")
    a(f"buffer_load_dwordx4 v{vL16}, s[{sGT}:{sGT+3}], 0 offen lds")
    a.label(f"{P}GDONE")
    xdma(1)
    srd(a, sWS, 34, WS_SIZE)
    a(f"v_and_b32 v{T[2]}, 15, v{T[1]}")
    a(f"v_xor_b32 v{T[2]}, v{T[2]}, v{T[0]}")
    a(f"v_lshlrev_b32 v{T[2]}, 4, v{T[2]}")
    a(f"v_lshl_add_u32 v{vB}, v{T[1]}, 9, v{T[2]}")
    if XIMG: a(f"v_add_u32 v{vB}, {XIMG}, v{vB}")
    a(f"v_bfe_u32 v{T[2]}, v{vLane}, 2, 2")
    a(f"v_lshl_add_u32 v{T[3]}, v{T[0]}, 3, v{T[2]}")
    a(f"v_bfe_u32 v{T[4]}, v{vLane}, 4, 1")
    a(f"v_lshlrev_b32 v{T[4]}, 5, v{T[4]}")
    a(f"v_and_b32 v{T[5]}, 3, v{vLane}")
    a(f"v_lshl_add_u32 v{T[4]}, v{T[5]}, 3, v{T[4]}")
    for r in range(64): a(f"v_mov_b32 v{ACC+r}, 0")
    a(f"s_mov_b32 s{sC}, 0")
    a(f"s_mov_b32 s{sSlot}, {RING}")
    a(f"s_mov_b32 s{sK}, 0")
    a(f"s_cmp_eq_u32 s{sW}, 0")
    a(f"s_cbranch_scc0 {P}HROLE")

    def next_slot():
        a(f"s_add_u32 s{sSlot}, s{sSlot}, {SLOT}")
        a(f"s_cmp_eq_u32 s{sSlot}, {RING + 4*SLOT}")
        a(f"s_cselect_b32 s{sSlot}, {RING}, s{sSlot}")

    def big(role):
        L = f"{P}{role}"
        pitch = 128 if role == 'Q' else 448
        if role == 'Q':
            a(f"v_lshl_add_u32 v{vA0}, v{T[3]}, 7, v{T[4]}")
            a(f"v_bfe_u32 v{T[5]}, v{vLane}, 3, 1")
            a(f"v_lshl_add_u32 v{vA0}, v{T[5]}, 6, v{vA0}")
            a(f"v_xor_b32 v{vA1}, 64, v{vA0}")
        else:
            a(f"v_mul_u32_u24 v{vA0}, 448, v{T[3]}")
            a(f"v_add_u32 v{vA0}, v{vA0}, v{T[4]}")
            a(f"s_lshl_b32 s{sT0}, s{sW}, 7")
            a(f"s_add_u32 s{sT0}, s{sT0}, {HOFF - 128}")
            a(f"v_add_u32 v{vA0}, s{sT0}, v{vA0}")
        def reads(ksl, buf):
            rd = []
            for ct in range(2):
                for t in range(2):
                    if role == 'Q':
                        rd.append(f"ds_read_b64_tr_b16 {r2(AF[buf][ct]+2*t)}, v{vAc0 if ct == 0 else vAc1} offset:{ksl*16*pitch + t*4*pitch}")
                    else:
                        rd.append(f"ds_read_b64_tr_b16 {r2(AF[buf][ct]+2*t)}, v{vAc0} offset:{ksl*16*pitch + t*4*pitch + ct*64}")
            for ts in range(2):
                rd.append(f"ds_read_b128 {r4(BF[buf][ts])}, v{vBt} offset:{ts*16384}")
            return [rd[0], rd[1], rd[4], rd[5], rd[2], rd[3]]
        def setaddr():
            a(f"v_add_u32 v{vAc0}, s{sSlot}, v{vA0}")
            if role == 'Q': a(f"v_add_u32 v{vAc1}, s{sSlot}, v{vA1}")
        def setb():
            a(f"v_xor_b32 v{vBt}, s{sK}, v{vB}")
        def nextk():
            a(f"s_add_u32 s{sK}, s{sK}, 32")
            a(f"s_cmp_eq_u32 s{sK}, 512")
            a(f"s_cselect_b32 s{sK}, 32768, s{sK}")
        def mf(buf, i):
            ct, ts = [(0, 0), (0, 1), (1, 1), (1, 0)][i]
            return f"v_mfma_f32_32x32x16_bf16 {r16(acc(ct,ts))}, {r4(AF[buf][ct])}, {r4(BF[buf][ts])}, {r16(acc(ct,ts))}"
        setaddr(); setb()
        a("s_waitcnt vmcnt(14)")
        a("s_barrier")
        ts_mark(a, MK[1])
        for l in reads(0, 0): a(l)
        def half(buf, rd):
            a(mf(buf, 0))
            return
        a.label(L + "_LOOP")
        nextk(); setb()
        a("s_waitcnt lgkmcnt(0)")
        rd = reads(1, 1)
        a(mf(0, 0)); a(rd[0]); a(rd[1]); a(rd[2])
        a(mf(0, 1)); a(rd[3]); a(rd[4]); a(rd[5])
        a(mf(0, 2)); a(mf(0, 3))
        nextk(); next_slot()
        a("s_waitcnt lgkmcnt(0)")
        a(mf(1, 0))
        a(f"s_cmp_eq_u32 s{sC}, 15")
        a(f"s_cbranch_scc1 {L}_LAST")
        a(f"s_cmp_lg_u32 s{sC}, 1")
        a(f"s_cbranch_scc1 {L}_W1")
        a("s_waitcnt vmcnt(8)")
        a.label(L + "_W1")
        a(f"s_cmp_lg_u32 s{sC}, 7")
        a(f"s_cbranch_scc1 {L}_W2")
        a("s_waitcnt vmcnt(0)")
        a.label(L + "_W2")
        setaddr(); setb()
        a("s_barrier")
        rd = reads(0, 0)
        a(rd[0]); a(rd[1]); a(rd[2])
        a(mf(1, 1)); a(rd[3]); a(rd[4]); a(rd[5])
        a(mf(1, 2)); a(mf(1, 3))
        a(f"s_add_u32 s{sC}, s{sC}, 1")
        a(f"s_branch {L}_LOOP")
        a.label(L + "_LAST")
        a(mf(1, 1)); a(mf(1, 2)); a(mf(1, 3))
        ts_mark(a, MK[2])
        if role == 'Q':
            a(f"s_lshl_b32 s{sT0}, s{sTB}, 6")
            a(f"s_lshl_b32 s{sT1}, s{sCG}, 2")
            a(f"s_add_u32 s{sT0}, s{sT0}, s{sT1}")
            a(f"s_lshl_b32 s{sT0}, s{sT0}, 10")
            if WS_QF: a(f"s_add_u32 s{sT0}, s{sT0}, {WS_QF}")
            a(f"s_add_u32 s{sT1}, s{sT0}, {32*1024}")
        else:
            a(f"s_mul_i32 s{sT0}, s{sTB}, 224")
            a(f"s_mul_i32 s{sT1}, s{sCG}, 14")
            a(f"s_add_u32 s{sT0}, s{sT0}, s{sT1}")
            a(f"s_lshl_b32 s{sT1}, s{sW}, 2")
            a(f"s_add_u32 s{sT0}, s{sT0}, s{sT1}")
            a(f"s_lshl_b32 s{sT0}, s{sT0}, 10")
            a(f"s_add_u32 s{sT0}, s{sT0}, {WS_HF - 4096}")
            a(f"s_add_u32 s{sT1}, s{sT0}, {112*1024}")
        d = 32
        for ts in range(2):
            for ct in range(2):
                for f in range(2):
                    store_frag(a, role, acc(ct, ts) + 8 * f, d, sT0 if ts == 0 else sT1, (ct * 2 + f) * 1024)
                    d = 32 + ((d - 32 + 4) % 32)
        a(f"s_branch {P}FIN")

    def store_frag(a, role, r, d, so, off):
        for k in range(4):
            if role == 'Q':
                a(f"v_mul_f32 v{r+2*k}, {f32hex(QS2)}, v{r+2*k}")
                a(f"v_mul_f32 v{r+2*k+1}, {f32hex(QS2)}, v{r+2*k+1}")
            a(f"v_cvt_pk_bf16_f32 v{d+k}, v{r+2*k}, v{r+2*k+1}")
            if role != 'Q': a(f"v_pk_max_i16 v{d+k}, v{d+k}, 0")
        a(f"buffer_store_dwordx4 {r4(d)}, v{vL16}, s[{sWS}:{sWS+3}], s{so} offen offset:{off}{ST}")

    big('Q')
    a.label(f"{P}HROLE")
    big('H')

    a.label(f"{P}LOADER")
    sL = sM + 100 - 100
    sLW, sI0, sN = 83, 92, 93
    vQs = 16; vHs = [17, 18, 19, 20]
    a(f"s_sub_u32 s{sLW}, s{sW}, 4")
    a(f"v_lshrrev_b32 v{T[0]}, 3, v{vLane}")
    a(f"v_bfe_u32 v{T[1]}, v{T[0]}, 1, 1")
    a(f"v_lshlrev_b32 v{T[1]}, 2, v{T[1]}")
    a(f"v_and_b32 v{T[2]}, 7, v{vLane}")
    a(f"v_xor_b32 v{T[2]}, v{T[2]}, v{T[1]}")
    a(f"v_lshlrev_b32 v{T[2]}, 4, v{T[2]}")
    a(f"v_lshl_add_u32 v{vQs}, v{T[0]}, 10, v{T[2]}")
    a(f"s_lshl_b32 s{sT0}, s{sLW}, 13")
    a(f"s_lshl_b32 s{sT1}, s{sCG}, 7")
    a(f"s_add_u32 s{sSoQ}, s{sT0}, s{sT1}")
    a(f"s_lshl_b32 s{sI0}, s{sLW}, 2")
    a(f"s_cmp_eq_u32 s{sLW}, 3")
    a(f"s_cselect_b32 s{sI0}, 11, s{sI0}")
    a(f"s_lshl_b32 s{sT0}, s{sI0}, 6")
    for e in range(4):
        a(f"v_add_u32 v{T[0]}, s{sT0}, v{vLane}")
        if e: a(f"v_add_u32 v{T[0]}, {64*e}, v{T[0]}")
        a(f"v_mul_u32_u24 v{T[1]}, 2341, v{T[0]}")
        a(f"v_lshrrev_b32 v{T[1]}, 16, v{T[1]}")
        a(f"v_mul_u32_u24 v{T[2]}, 28, v{T[1]}")
        a(f"v_sub_u32 v{T[2]}, v{T[0]}, v{T[2]}")
        a(f"v_mul_u32_u24 v{T[1]}, 3584, v{T[1]}")
        a(f"v_lshl_add_u32 v{vHs[e]}, v{T[2]}, 4, v{T[1]}")
    a(f"s_mul_i32 s{sSoH}, s{sCG}, 448")
    a(f"s_mov_b32 s{sSlot}, {RING}")
    a("s_waitcnt lgkmcnt(0)")
    ts_mark(a, MK[0])
    srd(a, sWQ, 18, 0x80000)
    srd(a, sW1, 28, 512 * 3584)
    def chunk_dma(n):
        a(f"s_lshl_b32 s{sT0}, s{sLW}, 10")
        a(f"s_add_u32 m0, s{sSlot}, s{sT0}")
        a(f"buffer_load_dwordx4 v{vQs}, s[{sWQ}:{sWQ+3}], s{sSoQ} offen lds")
        a(f"s_lshl_b32 s{sT0}, s{sI0}, 10")
        a(f"s_add_u32 s{sT0}, s{sT0}, s{sSlot}")
        a(f"s_add_u32 m0, s{sT0}, {HOFF}")
        for e in range(n - 1):
            a(f"buffer_load_dwordx4 v{vHs[e]}, s[{sW1}:{sW1+3}], s{sSoH} offen lds")
            if e < n - 2: a("s_add_u32 m0, m0, 1024")
        a(f"s_add_u32 s{sSoQ}, s{sSoQ}, {32*1024}")
        a(f"s_add_u32 s{sSoH}, s{sSoH}, {32*3584}")
        next_slot()

    sRs = 94
    def loader(role):
        L = f"{P}{role}"
        n = 5 if role == 'C' else 4
        for c in range(4): chunk_dma(n)
        srd(a, sWS, 34, WS_SIZE)
        a(f"s_mov_b32 s{sC}, 0")
        a(f"s_mov_b32 s{sRs}, {RING}")
        pre, work, post = {'C': c8_role, 'M': mini_role, 'W': w2_role}[role]()
        pre()
        a(f"s_waitcnt vmcnt({3*n})")
        a("s_barrier")
        ts_mark(a, MK[1])
        a.label(L + "_LOOP")
        work()
        a(f"s_cmp_eq_u32 s{sC}, 15")
        a(f"s_cbranch_scc1 {L}_DONE")
        a(f"s_cmp_ge_u32 s{sC}, 13")
        a(f"s_cbranch_scc1 {L}_WA")
        a(f"s_waitcnt vmcnt({2*n})")
        a(f"s_branch {L}_WB")
        a.label(L + "_WA")
        a("s_waitcnt vmcnt(0)")
        a.label(L + "_WB")
        a("s_barrier")
        a(f"s_cmp_ge_u32 s{sC}, 12")
        a(f"s_cbranch_scc1 {L}_NOD")
        chunk_dma(n)
        a.label(L + "_NOD")
        a(f"s_add_u32 s{sC}, s{sC}, 1")
        a(f"s_add_u32 s{sRs}, s{sRs}, {SLOT}")
        a(f"s_cmp_eq_u32 s{sRs}, {RING + 4*SLOT}")
        a(f"s_cselect_b32 s{sRs}, {RING}, s{sRs}")
        a(f"s_branch {L}_LOOP")
        a.label(L + "_DONE")
        ts_mark(a, MK[2])
        post()
        a(f"s_branch {P}FIN")

    def c8_role():
        vA0, vAc, vB, vBt = 24, 25, 26, 27
        AF = [32, 36]; BF = [40, 44]; ACC = 64
        def pre():
            a(f"v_lshrrev_b32 v{T[0]}, 5, v{vLane}")
            a(f"v_and_b32 v{T[1]}, 31, v{vLane}")
            a(f"v_and_b32 v{T[2]}, 15, v{T[1]}")
            a(f"v_xor_b32 v{T[2]}, v{T[2]}, v{T[0]}")
            a(f"v_lshlrev_b32 v{T[2]}, 4, v{T[2]}")
            a(f"v_lshl_add_u32 v{vB}, v{T[1]}, 9, v{T[2]}")
            a(f"s_lshl_b32 s{sT0}, s{sLW}, 14")
            a(f"s_add_u32 s{sT0}, s{sT0}, {XIMG}")
            a(f"v_add_u32 v{vB}, s{sT0}, v{vB}")
            a(f"v_bfe_u32 v{T[2]}, v{vLane}, 2, 2")
            a(f"v_lshl_add_u32 v{T[3]}, v{T[0]}, 3, v{T[2]}")
            a(f"v_bfe_u32 v{T[4]}, v{vLane}, 4, 1")
            a(f"v_lshlrev_b32 v{T[4]}, 5, v{T[4]}")
            a(f"v_and_b32 v{T[5]}, 3, v{vLane}")
            a(f"v_lshl_add_u32 v{T[4]}, v{T[5]}, 3, v{T[4]}")
            a(f"v_mul_u32_u24 v{vA0}, 448, v{T[3]}")
            a(f"v_add_u32 v{vA0}, v{vA0}, v{T[4]}")
            a(f"v_add_u32 v{vA0}, {HOFF + 6*64}, v{vA0}")
            for r in range(16): a(f"v_mov_b32 v{ACC+r}, 0")
            a(f"s_mov_b32 s{sK}, 0")
        def work():
            a(f"v_add_u32 v{vAc}, s{sRs}, v{vA0}")
            for ksl in range(2):
                a(f"v_xor_b32 v{vBt+ksl}, s{sK}, v{vB}")
                for t in range(2):
                    a(f"ds_read_b64_tr_b16 {r2(AF[ksl]+2*t)}, v{vAc} offset:{ksl*16*448 + t*4*448}")
                a(f"ds_read_b128 {r4(BF[ksl])}, v{vBt+ksl}")
                a(f"s_add_u32 s{sK}, s{sK}, 32")
            a(f"s_cmp_eq_u32 s{sK}, 512")
            a(f"s_cselect_b32 s{sK}, 32768, s{sK}")
            a("s_waitcnt lgkmcnt(3)")
            a(f"v_mfma_f32_32x32x16_bf16 {r16(ACC)}, {r4(AF[0])}, {r4(BF[0])}, {r16(ACC)}")
            a("s_waitcnt lgkmcnt(0)")
            a(f"v_mfma_f32_32x32x16_bf16 {r16(ACC)}, {r4(AF[1])}, {r4(BF[1])}, {r16(ACC)}")
        def post():
            a(f"s_lshl_b32 s{sT0}, s{sTB}, 1")
            a(f"s_add_u32 s{sT0}, s{sT0}, s{sLW}")
            a(f"s_mul_i32 s{sT0}, s{sT0}, 112")
            a(f"s_mul_i32 s{sT1}, s{sCG}, 14")
            a(f"s_add_u32 s{sT0}, s{sT0}, s{sT1}")
            a(f"s_lshl_b32 s{sT0}, s{sT0}, 10")
            a(f"s_add_u32 s{sT0}, s{sT0}, {WS_HF + 12*1024}")
            for f in range(2): store_frag(a, 'H', ACC + 8 * f, 32 + 4 * f, sT0, f * 1024)
        return pre, work, post

    def mini_role():
        vXm, vXt, vWm, vGm = 24, 25, 26, 27
        XF = [32, 36]; WF = [40, 44]; GF = [48, 52]; D = 56; DG = 60
        L = f"{P}M"
        def pre():
            a(f"v_and_b32 v{T[0]}, 15, v{vLane}")
            a(f"v_lshrrev_b32 v{T[1]}, 4, v{vLane}")
            a(f"v_xor_b32 v{T[2]}, v{T[0]}, v{T[1]}")
            a(f"v_lshlrev_b32 v{T[2]}, 4, v{T[2]}")
            a(f"v_lshl_add_u32 v{vXm}, v{T[0]}, 9, v{T[2]}")
            a(f"s_lshl_b32 s{sT0}, s{sTT}, 13")
            a(f"s_add_u32 s{sT0}, s{sT0}, {XIMG}")
            a(f"v_add_u32 v{vXm}, s{sT0}, v{vXm}")
            a(f"v_lshrrev_b32 v{T[2]}, 1, v{T[1]}")
            a(f"v_lshlrev_b32 v{T[2]}, 4, v{T[2]}")
            a(f"v_and_b32 v{T[3]}, 1, v{T[1]}")
            a(f"v_lshl_add_u32 v{T[2]}, v{T[3]}, 2, v{T[2]}")
            a(f"v_lshrrev_b32 v{T[3]}, 2, v{T[0]}")
            a(f"v_add_u32 v{T[2]}, v{T[2]}, v{T[3]}")
            a(f"v_lshlrev_b32 v{T[2]}, 5, v{T[2]}")
            a(f"v_and_b32 v{T[3]}, 3, v{T[0]}")
            a(f"v_lshl_add_u32 v{T[2]}, v{T[3]}, 3, v{T[2]}")
            a(f"v_add_u32 v{vWm}, {KVW}, v{T[2]}")
            a(f"v_lshlrev_b32 v{vGm}, 4, v{T[1]}")
            a(f"v_add_u32 v{vGm}, {GATE}, v{vGm}")
            for r in range(8): a(f"v_mov_b32 v{D+r}, 0")
            a(f"s_mov_b32 s{sK}, 0")
        def work():
            a(f"s_sub_u32 s{sT0}, s{sC}, 2")
            a(f"s_and_b32 s{sT0}, s{sT0}, 0xfffffff9")
            a(f"s_sub_u32 s{sT0}, s{sC}, 2")
            a(f"s_cmp_lt_u32 s{sT0}, 4")
            a(f"s_cbranch_scc1 {L}_GO")
            a(f"s_sub_u32 s{sT0}, s{sC}, 8")
            a(f"s_cmp_lt_u32 s{sT0}, 4")
            a(f"s_cbranch_scc0 {L}_SKIP")
            a.label(L + "_GO")
            for e in range(2):
                a(f"v_xor_b32 v{vXt}, s{sK}, v{vXm}")
                a(f"ds_read_b128 {r4(XF[e])}, v{vXt}")
                for t in range(2):
                    a(f"ds_read_b64_tr_b16 {r2(WF[e]+2*t)}, v{vWm} offset:{e*1024 + t*256}")
                a(f"ds_read_b128 {r4(GF[e])}, v{vGm} offset:{e*64}")
                a(f"s_add_u32 s{sK}, s{sK}, 64")
            a(f"s_cmp_eq_u32 s{sK}, 512")
            a(f"s_cselect_b32 s{sK}, 32768, s{sK}")
            a(f"v_add_u32 v{vWm}, 2048, v{vWm}")
            a(f"v_add_u32 v{vGm}, 128, v{vGm}")
            a("s_waitcnt lgkmcnt(0)")
            a(f"s_cmp_eq_u32 s{sTYPE}, 0")
            a(f"s_cbranch_scc0 {L}_V")
            for e in range(2):
                a(f"v_mfma_f32_16x16x32_bf16 {r4(D)}, {r4(WF[e])}, {r4(XF[e])}, {r4(D)}")
                a(f"v_mfma_f32_16x16x32_bf16 {r4(DG)}, {r4(GF[e])}, {r4(XF[e])}, {r4(DG)}")
            a(f"s_branch {L}_SKIP")
            a.label(L + "_V")
            for e in range(2):
                a(f"v_mfma_f32_16x16x32_bf16 {r4(D)}, {r4(XF[e])}, {r4(WF[e])}, {r4(D)}")
            a.label(L + "_SKIP")
        def post():
            E = 32
            a(f"v_and_b32 v{T[0]}, 15, v{vLane}")
            a(f"v_lshrrev_b32 v{T[1]}, 4, v{vLane}")
            a(f"v_cvt_pk_bf16_f32 v{E}, v{D}, v{D+1}")
            a(f"v_cvt_pk_bf16_f32 v{E+1}, v{D+2}, v{D+3}")
            a(f"v_and_b32 v{T[2]}, 1, v{T[1]}")
            a(f"v_lshrrev_b32 v{T[3]}, 1, v{T[1]}")
            a(f"v_lshlrev_b32 v{T[3]}, 3, v{T[3]}")
            a(f"v_lshl_add_u32 v{T[3]}, v{T[0]}, 4, v{T[3]}")
            a(f"s_lshl_b32 s{sT0}, s{sTB}, 1")
            a(f"s_lshr_b32 s{sT1}, s{sTT}, 1")
            a(f"s_add_u32 s{sT0}, s{sT0}, s{sT1}")
            a(f"s_lshl_b32 s{sT0}, s{sT0}, 10")
            a(f"s_and_b32 s{sT1}, s{sTT}, 1")
            a(f"s_lshl_b32 s{sT2}, s{sTB}, 2")
            a(f"s_add_u32 s{sT2}, s{sT2}, s{sTT}")
            a(f"s_lshl_b32 s{sT2}, s{sT2}, 2")
            for q in range(2):
                a(f"v_lshlrev_b32 v{E+4+2*q}, 16, v{E+q}")
                a(f"v_and_b32 v{E+5+2*q}, 0xffff0000, v{E+q}")
            a(f"s_cmp_eq_u32 s{sTYPE}, 0")
            a(f"s_cbranch_scc0 {L}_VST")
            a(f"v_lshl_add_u32 v{T[3]}, v{T[2]}, 9, v{T[3]}")
            a(f"s_lshl_b32 s{sT1}, s{sT1}, 8")
            a(f"s_add_u32 s{sT0}, s{sT0}, s{sT1}")
            a(f"s_add_u32 s{sT0}, s{sT0}, {WS_KF}")
            a(f"buffer_store_dwordx2 {r2(E)}, v{T[3]}, s[{sWS}:{sWS+3}], s{sT0} offen{ST}")
            a(f"v_mul_f32 v{E+8}, v{E+4}, v{E+4}")
            for k in range(1, 4): a(f"v_fmac_f32 v{E+8}, v{E+4+k}, v{E+4+k}")
            a(f"v_mov_b32 v{E+9}, v{E+8}")
            a(f"v_permlane32_swap_b32 v{E+8}, v{E+9}")
            a(f"v_add_f32 v{E+8}, v{E+8}, v{E+9}")
            a(f"v_mov_b32 v{E+9}, v{E+8}")
            a(f"v_permlane16_swap_b32 v{E+8}, v{E+9}")
            a(f"v_add_f32 v{E+8}, v{E+8}, v{E+9}")
            for sh in (1, 2, 4, 8):
                a(f"v_max_u32_dpp v{E+8}, v{E+8}, v{E+8} row_shr:{sh} row_mask:0xf bank_mask:0xf")
            a(f"v_readlane_b32 s{sT3}, v{E+8}, 15")
            a(f"v_mul_f32 v{DG}, {f32hex(-1.4426950408889634)}, v{DG}")
            a(f"v_exp_f32 v{DG}, v{DG}")
            a(f"v_add_f32 v{DG}, 1.0, v{DG}")
            a(f"v_rcp_f32 v{DG}, v{DG}")
            a(f"v_lshlrev_b32 v{T[4]}, 2, v{vLane}")
            a(f"s_lshl_b32 s{sT0}, s{sT2}, 4")
            a(f"s_add_u32 s{sT0}, s{sT0}, {WS_G}")
            a(f"s_add_u32 s{sT2}, s{sT2}, {WS_KMAX}")
            a("s_mov_b64 exec, 0xffff")
            a(f"buffer_store_dword v{DG}, v{T[4]}, s[{sWS}:{sWS+3}], s{sT0} offen{ST}")
            a(f"s_branch {L}_MX")
            a.label(L + "_VST")
            a(f"v_lshl_add_u32 v{T[3]}, v{T[2]}, 8, v{T[3]}")
            a(f"s_lshl_b32 s{sT1}, s{sT1}, 9")
            a(f"s_add_u32 s{sT0}, s{sT0}, s{sT1}")
            a(f"s_add_u32 s{sT1}, s{sT0}, {WS_VB}")
            a(f"s_add_u32 s{sT0}, s{sT0}, {WS_VF}")
            a(f"buffer_store_dwordx2 {r2(E)}, v{T[3]}, s[{sWS}:{sWS+3}], s{sT1} offen{ST}")
            for q in range(2):
                a(f"v_cvt_pkrtz_f16_f32 v{E+8+q}, v{E+4+2*q}, v{E+5+2*q}")
            a(f"buffer_store_dwordx2 {r2(E+8)}, v{T[3]}, s[{sWS}:{sWS+3}], s{sT0} offen{ST}")
            for q in range(4): a(f"v_and_b32 v{E+4+q}, 0x7fffffff, v{E+4+q}")
            a(f"v_max_u32 v{E+4}, v{E+4}, v{E+5}")
            a(f"v_max3_u32 v{E+4}, v{E+4}, v{E+6}, v{E+7}")
            a(f"v_mov_b32 v{E+5}, v{E+4}")
            a(f"v_permlane32_swap_b32 v{E+4}, v{E+5}")
            a(f"v_max_u32 v{E+4}, v{E+4}, v{E+5}")
            a(f"v_mov_b32 v{E+5}, v{E+4}")
            a(f"v_permlane16_swap_b32 v{E+4}, v{E+5}")
            a(f"v_max_u32 v{E+4}, v{E+4}, v{E+5}")
            for sh in (1, 2, 4, 8):
                a(f"v_max_u32_dpp v{E+4}, v{E+4}, v{E+4} row_shr:{sh} row_mask:0xf bank_mask:0xf")
            a(f"v_readlane_b32 s{sT3}, v{E+4}, 15")
            a(f"s_add_u32 s{sT2}, s{sT2}, {WS_VMAX}")
            a.label(L + "_MX")
            a("s_mov_b64 exec, 1")
            a(f"v_mov_b32 v{E+10}, s{sT3}")
            a(f"v_mov_b32 v{E+11}, 0")
            a(f"buffer_store_dword v{E+10}, v{E+11}, s[{sWS}:{sWS+3}], s{sT2} offen{ST}")
            a("s_mov_b64 exec, -1")
        return pre, work, post

    def w2_role():
        vR = 24; F = 32
        L = f"{P}W"
        def pre():
            a(f"v_lshrrev_b32 v{T[0]}, 5, v{vLane}")
            a(f"v_bfe_u32 v{T[2]}, v{vLane}, 2, 2")
            a(f"v_lshl_add_u32 v{T[3]}, v{T[0]}, 2, v{T[2]}")
            a(f"v_lshlrev_b32 v{T[3]}, 6, v{T[3]}")
            a(f"v_bfe_u32 v{T[4]}, v{vLane}, 4, 1")
            a(f"v_lshl_add_u32 v{T[3]}, v{T[4]}, 5, v{T[3]}")
            a(f"v_and_b32 v{T[5]}, 3, v{vLane}")
            a(f"v_lshl_add_u32 v{T[3]}, v{T[5]}, 3, v{T[3]}")
            a(f"v_add_u32 v{vR}, {W2P}, v{T[3]}")
            a(f"s_lshl_b32 s{sT0}, s{sTB}, 3")
            a(f"s_add_u32 s{sT0}, s{sT0}, s{sCG}")
            a(f"s_and_b32 s{sT1}, s{sT0}, 15")
            a(f"s_mul_i32 s{sT1}, s{sT1}, 112")
            a(f"s_lshr_b32 s{sT0}, s{sT0}, 4")
            a(f"s_mul_i32 s{sT0}, s{sT0}, 7")
            a(f"s_add_u32 s{sT0}, s{sT0}, s{sT1}")
            a(f"s_lshl_b32 s{sT0}, s{sT0}, 10")
            a(f"s_add_u32 s{sM}, s{sT0}, {WS_W2F}")
            a(f"s_lshl_b32 s{sK}, s2, 13")
            a(f"s_add_u32 s{sK}, s{sK}, {WS_OF}")
            for r in range(4): a(f"v_mov_b32 v{F+8+r}, -1")
        def work():
            a(f"s_sub_u32 s{sT0}, s{sC}, 2")
            a(f"s_cmp_lt_u32 s{sT0}, 7")
            a(f"s_cbranch_scc0 {L}_S")
            for t in range(2):
                a(f"ds_read_b64_tr_b16 {r2(F+2*t)}, v{vR} offset:{t*512}")
            a(f"v_add_u32 v{vR}, 1024, v{vR}")
            a("s_waitcnt lgkmcnt(0)")
            a(f"buffer_store_dwordx4 {r4(F)}, v{vL16}, s[{sWS}:{sWS+3}], s{sM} offen{ST}")
            a(f"s_add_u32 s{sM}, s{sM}, 1024")
            a(f"s_branch {L}_E")
            a.label(L + "_S")
            a(f"s_sub_u32 s{sT0}, s{sC}, 9")
            a(f"s_cmp_lt_u32 s{sT0}, 4")
            a(f"s_cbranch_scc0 {L}_E")
            for i in range(2):
                a(f"buffer_store_dwordx4 {r4(F+8)}, v{vL16}, s[{sWS}:{sWS+3}], s{sK} offen offset:{i*1024}{ST}")
            a(f"s_add_u32 s{sK}, s{sK}, 2048")
            a.label(L + "_E")
        def post(): pass
        return pre, work, post

    a(f"s_cmp_ge_u32 s{sW}, 6")
    a(f"s_cbranch_scc1 {P}L67")
    loader('C')
    a.label(f"{P}L67")
    a(f"s_cmp_eq_u32 s{sW}, 7")
    a(f"s_cbranch_scc1 {P}L7")
    loader('M')
    a.label(f"{P}L7")
    loader('W')
    a.label(f"{P}FIN")
    ts_mark(a, MK[3])
    ts_end(a, 0, sWS, sW, MK)
    a("s_endpgm")
    a.label(f"{P}END")
    a("s_endpgm")
    return a

if __name__ == "__main__":
    for idx in range(896): assert (idx * 2341) >> 16 == idx // 28
    print("ok")
```

```python
import sys, os
sys.path.insert(0, os.path.dirname(os.path.abspath(__file__)))
from gen import *
import gen3, k1n, k1r, gen5

def build(out, ks):
    txt = HEADER
    for nm, a, g, b, lds, vg, acc in ks:
        txt += f"; @launch kernel={nm} grid=({g},1,1) block=({b},1,1) lds={lds}\n"
    txt += '.amdgcn_target "amdgcn-amd-amdhsa--gfx950"\n.text\n'
    for nm, a, g, b, lds, vg, acc in ks:
        n = a.fix()
        txt += kernel_header(nm) + a.text()
    txt += '.section .rodata,"a"\n'
    for nm, a, g, b, lds, vg, acc in ks:
        txt += kernel_desc(nm, vg, acc)
    open(out, "w").write(txt)

def build4a(out):
    mm = os.environ.get("MAP", "simple")
    mm1 = os.environ.get("MAP1", "T8")
    ks = [
        ("k1_kernel", (k1r.gen_k1r if os.environ.get("K1", "r") == "r" else k1n.gen_k1n)("k1_kernel", mm1), 256, 512, 163840, 128, 128),
        (("k2_kernel", gen3.gen_k2q("k2_kernel", mm, qf=True), 256, 512, gen3.K2_LDS3, 256, 256) if os.environ.get("K2", "p") == "q" else
         ("k2_kernel", gen5.gen_k2p("k2_kernel", mm), 256, 512, gen5.K2P_LDS, 256, 256)),
    ]
    build(out, ks)

if __name__ == "__main__":
    out = sys.argv[1] if len(sys.argv) > 1 else "v4a.s"
    build4a(out)
```

```python
import sys, os
sys.path.insert(0, os.path.dirname(os.path.abspath(__file__)))
from asmlib import Asm
from gen import (WS_KF, WS_VF, WS_G, WS_KMAX, WS_HF, WS_W2F, WS_OF, WS_SIZE, QS2, WS_VB, WS_VMAX, f32hex, srd,
                 ts_begin, ts_mark, ts_end, TS)
WS_QF = 0

def r4(x): return f"v[{x}:{x+3}]"
def r2(x): return f"v[{x}:{x+1}]"
def r16(x): return f"v[{x}:{x+15}]"

XIMG, RING, SLOT, HOFF = 0, 65536, 18432, 4096
KVW = RING + 4 * SLOT
GATE = KVW + 16384
W2P = GATE + 1024
K1N_LDS = W2P + 7 * 1024
assert K1N_LDS == 163840
K1PM = int(os.environ.get("K1PM", "0"))
PF = int(os.environ.get("PF", "0"))
PF2 = int(os.environ.get("PF2", "1"))
ST = os.environ.get("K1ST", "")
if ST: ST = " " + ST

def map_t8(a, sB, sTB, sCG, sT0, mode):
    if mode == 'simple':
        a(f"s_and_b32 s{sTB}, s{sB}, 31")
        a(f"s_lshr_b32 s{sCG}, s{sB}, 5")
    else:
        a(f"s_and_b32 s{sCG}, s{sB}, 1")
        a(f"s_lshl_b32 s{sCG}, s{sCG}, 2")
        a(f"s_bfe_u32 s{sT0}, s{sB}, 0x20003")
        a(f"s_or_b32 s{sCG}, s{sCG}, s{sT0}")
        a(f"s_bfe_u32 s{sTB}, s{sB}, 0x20001")
        a(f"s_lshl_b32 s{sTB}, s{sTB}, 3")
        a(f"s_lshr_b32 s{sT0}, s{sB}, 5")
        a(f"s_or_b32 s{sTB}, s{sTB}, s{sT0}")

def gen_k1n(name, mapmode='T8'):
    a = Asm()
    a.label(name)
    P = "K1_"
    sX, sW1, sWQ, sKV, sWS, sW2, sGT = 36, 40, 44, 48, 52, 56, 60
    sTB, sCG, sW, sT0, sT1, sC, sSlot, sK, sSo, sT2, sT3, sTYPE, sTT, sM = 64, 65, 66, 67, 68, 69, 70, 71, 72, 73, 74, 75, 76, 77
    sSoQ, sSoH, sKs = 78, 79, 80
    sPFS = 44
    MK = [84, 86, 88, 90]
    vLane, vL16 = 1, 2
    T = list(range(4, 16))
    a("s_cmp_ge_u32 s2, 256")
    a(f"s_cbranch_scc1 {P}END")
    ts_begin(a)
    a("s_load_dwordx16 s[16:31], s[0:1], 0")
    a("s_load_dwordx2 s[32:33], s[0:1], 64")
    a("s_load_dwordx2 s[34:35], s[0:1], 88")
    map_t8(a, 2, sTB, sCG, sT0, mapmode)
    a(f"v_lshrrev_b32 v{T[0]}, 6, v0")
    a(f"v_and_b32 v{vLane}, 63, v0")
    a(f"v_readfirstlane_b32 s{sW}, v{T[0]}")
    a(f"v_lshlrev_b32 v{vL16}, 4, v{vLane}")
    a(f"s_and_b32 s{sTYPE}, s{sCG}, 1")
    a(f"s_lshr_b32 s{sTT}, s{sCG}, 1")
    if PF2:
        vq, vd = T[0], 3
        a(f"v_lshrrev_b32 v{T[1]}, 2, v{vLane}")
        a(f"v_and_b32 v{T[2]}, 3, v{vLane}")
        a(f"v_lshlrev_b32 v{T[2]}, 7, v{T[2]}")
        a(f"s_and_b32 s{sT0}, s{sTB}, 7")
        a(f"s_lshl_b32 s{sT1}, s{sW}, 2")
        a(f"s_lshr_b32 s{sT1}, {(2<<28)|(1<<24)|(3<<8)}, s{sT1}")
        a(f"s_and_b32 s{sT1}, s{sT1}, 3")
        a("s_waitcnt lgkmcnt(0)")
        a(f"s_cmp_lt_u32 s{sW}, 2")
        a(f"s_cbranch_scc1 {P}PFX")
        a(f"s_cmp_eq_u32 s{sW}, 5")
        a(f"s_cbranch_scc1 {P}PFQ")
        a(f"s_cmp_eq_u32 s{sW}, 3")
        a(f"s_cbranch_scc1 {P}PFK")
        srd(a, sW1, 28, 512 * 3584)
        a(f"v_mul_u32_u24 v{vq}, {8*3584}, v{T[1]}")
        a(f"v_add_u32 v{vq}, v{vq}, v{T[2]}")
        a(f"s_lshl_b32 s{sT1}, s{sT1}, 7")
        a(f"s_add_u32 s{sT0}, s{sT0}, s{sT1}")
        a(f"s_mul_i32 s{sT0}, s{sT0}, 3584")
        a(f"s_mul_i32 s{sT1}, s{sCG}, 448")
        a(f"s_and_b32 s{sT1}, s{sT1}, 0xffffff80")
        a(f"s_add_u32 s{sT0}, s{sT0}, s{sT1}")
        a(f"buffer_load_dword v{vd}, v{vq}, s[{sW1}:{sW1+3}], s{sT0} offen")
        a(f"s_branch {P}PFD")
        a.label(f"{P}PFQ")
        srd(a, sWQ, 18, 0x80000)
        a(f"v_lshlrev_b32 v{vq}, 13, v{vLane}")
        a(f"s_lshl_b32 s{sT0}, s{sT0}, 10")
        a(f"s_lshl_b32 s{sT1}, s{sCG}, 7")
        a(f"s_add_u32 s{sT0}, s{sT0}, s{sT1}")
        a(f"buffer_load_dword v{vd}, v{vq}, s[{sWQ}:{sWQ+3}], s{sT0} offen")
        a(f"s_branch {P}PFD")
        a.label(f"{P}PFK")
        a(f"s_cmp_eq_u32 s{sTYPE}, 0")
        a(f"s_cselect_b32 s{sKV}, s20, s22")
        a(f"s_cselect_b32 s{sKV+1}, s21, s23")
        a(f"s_mov_b32 s{sKV+2}, 16384")
        a(f"s_mov_b32 s{sKV+3}, 0x00020000")
        a(f"v_lshlrev_b32 v{vq}, 7, v{vLane}")
        a(f"s_and_b32 s{sT0}, s{sTB}, 1")
        a(f"s_lshl_b32 s{sT0}, s{sT0}, 13")
        a(f"buffer_load_dword v{vd}, v{vq}, s[{sKV}:{sKV+3}], s{sT0} offen")
        a(f"s_branch {P}PFD")
        a.label(f"{P}PFX")
        srd(a, sX, 16, 0x200000)
        a(f"v_lshl_add_u32 v{vq}, v{T[1]}, 12, v{T[2]}")
        a(f"s_lshl_b32 s{sT0}, s{sTB}, 6")
        a(f"s_and_b32 s{sT1}, s{sCG}, 3")
        a(f"s_add_u32 s{sT0}, s{sT0}, s{sT1}")
        a(f"s_lshl_b32 s{sT0}, s{sT0}, 10")
        a(f"s_lshl_b32 s{sT1}, s{sW}, 9")
        a(f"s_add_u32 s{sT0}, s{sT0}, s{sT1}")
        a(f"buffer_load_dword v{vd}, v{vq}, s[{sX}:{sX+3}], s{sT0} offen")
        a.label(f"{P}PFD")
    def pf_sync():
        if not PF2: return
        if PF2 == 1:
            lab = f"{P}PFW{len(a.ins)}"
            a(f"s_lshr_b32 s{sT0}, 0x31, s{sW}")
            a(f"s_bitcmp1_b32 s{sT0}, 0")
            a(f"s_cbranch_scc0 {lab}")
            a("s_waitcnt vmcnt(0)")
            a.label(lab)
        elif PF2 == 2:
            a("s_waitcnt vmcnt(0)")
        a("s_barrier")
    a(f"s_cmp_ge_u32 s{sW}, 4")
    a(f"s_cbranch_scc1 {P}LOADER")

    vX0, vPF = 16, 26
    vA0, vA1, vAc0, vAc1, vB, vBt = 20, 21, 22, 23, 24, 25
    AF = [[32, 36], [40, 44]]
    BF = [[48, 52], [56, 60]]
    ACC = 64
    def acc(ct, ts): return ACC + (ct * 2 + ts) * 16
    a(f"v_lshrrev_b32 v{T[0]}, 5, v{vLane}")
    a(f"v_and_b32 v{T[1]}, 31, v{vLane}")
    a(f"v_lshrrev_b32 v{T[3]}, 4, v{vLane}")
    a(f"v_and_b32 v{T[2]}, 15, v{vLane}")
    a(f"v_xor_b32 v{T[2]}, v{T[2]}, v{T[3]}")
    a(f"v_lshlrev_b32 v{T[2]}, 4, v{T[2]}")
    a(f"v_lshl_add_u32 v{vX0}, v{T[3]}, 10, v{T[2]}")
    for i in range(1, 4): a(f"v_xor_b32 v{vX0+i}, {64*i}, v{vX0}")
    a(f"s_lshl_b32 s{sT0}, s{sTB}, 16")
    a(f"s_lshl_b32 s{sT1}, s{sW}, 14")
    a(f"s_add_u32 s{sSo}, s{sT0}, s{sT1}")
    a(f"s_lshl_b32 s{sT2}, s{sW}, 12")
    a(f"v_min_u32 v{T[6]}, 47, v{vLane}")
    a(f"v_lshlrev_b32 v{T[6]}, 13, v{T[6]}")
    a(f"v_lshrrev_b32 v{T[7]}, 2, v{vLane}")
    a(f"v_mul_u32_u24 v{T[7]}, {8*3584}, v{T[7]}")
    a(f"v_and_b32 v{T[5]}, 3, v{vLane}")
    a(f"v_lshl_add_u32 v{T[7]}, v{T[5]}, 7, v{T[7]}")
    a(f"s_cmp_eq_u32 s{sW}, 0")
    a(f"s_cselect_b64 vcc, -1, 0")
    a(f"v_cndmask_b32 v{vPF}, v{T[7]}, v{T[6]}, vcc")
    a(f"v_lshrrev_b32 v{T[3]}, 1, v{vLane}")
    a(f"v_and_b32 v{T[4]}, 0x13, v{T[3]}")
    a(f"v_bfe_u32 v{T[5]}, v{T[3]}, 2, 1")
    a(f"v_bfe_u32 v{T[6]}, v{T[3]}, 3, 1")
    a(f"v_lshl_add_u32 v{T[4]}, v{T[5]}, 3, v{T[4]}")
    a(f"v_lshl_add_u32 v{T[4]}, v{T[6]}, 2, v{T[4]}")
    a(f"v_lshlrev_b32 v{T[4]}, 5, v{T[4]}")
    a(f"v_and_b32 v{T[5]}, 1, v{vLane}")
    a(f"v_lshl_add_u32 v{T[4]}, v{T[5]}, 4, v{T[4]}")
    a(f"v_lshrrev_b32 v{T[5]}, 2, v{vLane}")
    a(f"v_lshlrev_b32 v{T[5]}, 10, v{T[5]}")
    a(f"v_and_b32 v{T[6]}, 3, v{vLane}")
    a(f"v_lshl_add_u32 v{T[5]}, v{T[6]}, 4, v{T[5]}")
    a("s_waitcnt lgkmcnt(0)")
    if not K1PM: ts_mark(a, MK[0])
    pf_sync()
    if K1PM: ts_mark(a, MK[0])
    srd(a, sX, 16, 0x200000)
    def xdma(q):
        a(f"s_add_u32 m0, s{sT2}, {XIMG + q*16384}")
        a(f"s_add_u32 s{sT0}, s{sSo}, {q*256}")
        for i in range(4):
            if i:
                a(f"s_add_u32 m0, m0, 1024")
                a(f"s_add_u32 s{sT0}, s{sT0}, 4096")
            a(f"buffer_load_dwordx4 v{vX0+i}, s[{sX}:{sX+3}], s{sT0} offen lds")
    xdma(0)
    a(f"s_cmp_eq_u32 s{sTYPE}, 0")
    a(f"s_cselect_b32 s{sKV}, s20, s22")
    a(f"s_cselect_b32 s{sKV+1}, s21, s23")
    a(f"s_mov_b32 s{sKV+2}, 16384")
    a(f"s_mov_b32 s{sKV+3}, 0x00020000")
    srd(a, sW2, 30, 1792 * 1024)
    srd(a, sGT, 32, 1024)
    a(f"s_lshl_b32 s{sT0}, s{sW}, 12")
    a(f"s_add_u32 m0, s{sT0}, {KVW}")
    for i in range(4):
        a(f"buffer_load_dwordx4 v{T[4]}, s[{sKV}:{sKV+3}], s{sT0} offen offset:{i*1024} lds")
    a(f"s_lshl_b32 s{sT3}, s{sTB}, 3")
    a(f"s_add_u32 s{sT3}, s{sT3}, s{sCG}")
    a(f"s_and_b32 s{sT1}, s{sT3}, 15")
    a(f"s_lshl_b32 s{sT1}, s{sT1}, 6")
    a(f"s_lshr_b32 s{sT3}, s{sT3}, 4")
    a(f"s_mul_i32 s{sT3}, s{sT3}, {112*1024}")
    a(f"s_add_u32 s{sT3}, s{sT3}, s{sT1}")
    a(f"s_lshl_b32 s{sT1}, s{sW}, 15")
    a(f"s_add_u32 s{sT3}, s{sT3}, s{sT1}")
    a(f"s_lshl_b32 s{sM}, s{sW}, 11")
    a(f"s_add_u32 s{sM}, s{sM}, {W2P}")
    a(f"s_cmp_eq_u32 s{sW}, 0")
    a(f"s_cbranch_scc1 {P}GATE")
    a(f"s_sub_u32 s{sT0}, s{sT3}, 16384")
    a(f"s_sub_u32 m0, s{sM}, 1024")
    a(f"buffer_load_dwordx4 v{T[5]}, s[{sW2}:{sW2+3}], s{sT0} offen lds")
    a(f"s_branch {P}GDONE")
    a.label(f"{P}GATE")
    a(f"s_mov_b32 m0, {GATE}")
    a(f"buffer_load_dwordx4 v{vL16}, s[{sGT}:{sGT+3}], 0 offen lds")
    a.label(f"{P}GDONE")
    xdma(1)
    if PF:
        a(f"s_and_b32 s{sT0}, s{sTB}, 7")
        a(f"s_add_u32 s{sT0}, s{sT0}, 128")
        a(f"s_lshl_b32 s{sT1}, s{sT0}, 10")
        a(f"s_lshl_b32 s{sC}, s{sCG}, 7")
        a(f"s_add_u32 s{sT1}, s{sT1}, s{sC}")
        a(f"s_lshl_b32 s{sC}, s{sW}, 7")
        a(f"s_add_u32 s{sT0}, s{sT0}, s{sC}")
        a(f"s_sub_u32 s{sT0}, s{sT0}, 128")
        a(f"s_mul_i32 s{sT0}, s{sT0}, 3584")
        a(f"s_mul_i32 s{sC}, s{sCG}, 448")
        a(f"s_and_b32 s{sC}, s{sC}, 0xffffff80")
        a(f"s_add_u32 s{sT0}, s{sT0}, s{sC}")
        srd(a, sWQ, 18, 0x80000)
        srd(a, sW1, 28, 512 * 3584)
        a(f"s_cmp_eq_u32 s{sW}, 0")
        a(f"s_cbranch_scc1 {P}PFQ")
        a(f"buffer_load_dword v{vPF+1}, v{vPF}, s[{sW1}:{sW1+3}], s{sT0} offen")
        a(f"s_branch {P}PFD")
        a.label(f"{P}PFQ")
        a(f"buffer_load_dword v{vPF+1}, v{vPF}, s[{sWQ}:{sWQ+3}], s{sT1} offen")
        a.label(f"{P}PFD")
    xdma(2)
    xdma(3)
    a(f"s_mov_b32 m0, s{sM}")
    a(f"buffer_load_dwordx4 v{T[5]}, s[{sW2}:{sW2+3}], s{sT3} offen lds")
    srd(a, sWS, 34, WS_SIZE)
    a(f"v_and_b32 v{T[2]}, 15, v{T[1]}")
    a(f"v_xor_b32 v{T[2]}, v{T[2]}, v{T[0]}")
    a(f"v_lshlrev_b32 v{T[2]}, 4, v{T[2]}")
    a(f"v_lshl_add_u32 v{vB}, v{T[1]}, 8, v{T[2]}")
    if XIMG: a(f"v_add_u32 v{vB}, {XIMG}, v{vB}")
    a(f"v_bfe_u32 v{T[2]}, v{vLane}, 2, 2")
    a(f"v_lshl_add_u32 v{T[3]}, v{T[0]}, 3, v{T[2]}")
    a(f"v_bfe_u32 v{T[4]}, v{vLane}, 4, 1")
    a(f"v_lshlrev_b32 v{T[4]}, 5, v{T[4]}")
    a(f"v_and_b32 v{T[5]}, 3, v{vLane}")
    a(f"v_lshl_add_u32 v{T[4]}, v{T[5]}, 3, v{T[4]}")
    for r in range(64): a(f"v_mov_b32 v{ACC+r}, 0")
    a(f"s_mov_b32 s{sC}, 0")
    a(f"s_mov_b32 s{sSlot}, {RING}")
    a(f"s_mov_b32 s{sK}, 0")
    a(f"s_mov_b32 s{sKs}, 0")
    a(f"s_cmp_eq_u32 s{sW}, 0")
    a(f"s_cbranch_scc0 {P}HROLE")

    def next_slot():
        a(f"s_add_u32 s{sSlot}, s{sSlot}, {SLOT}")
        a(f"s_cmp_eq_u32 s{sSlot}, {RING + 4*SLOT}")
        a(f"s_cselect_b32 s{sSlot}, {RING}, s{sSlot}")

    def nextk16():
        a(f"s_add_u32 s{sKs}, s{sKs}, 32")
        a(f"s_lshr_b32 s{sK}, s{sKs}, 8")
        a(f"s_lshl_b32 s{sK}, s{sK}, 14")
        a(f"s_and_b32 s{sT3}, s{sKs}, 0xe0")
        a(f"s_or_b32 s{sK}, s{sK}, s{sT3}")
    NQ = 22 + PF

    def big(role):
        L = f"{P}{role}"
        pitch = 128 if role == 'Q' else 448
        if role == 'Q':
            a(f"v_lshl_add_u32 v{vA0}, v{T[3]}, 7, v{T[4]}")
            a(f"v_bfe_u32 v{T[5]}, v{vLane}, 3, 1")
            a(f"v_lshl_add_u32 v{vA0}, v{T[5]}, 6, v{vA0}")
            a(f"v_xor_b32 v{vA1}, 64, v{vA0}")
        else:
            a(f"v_mul_u32_u24 v{vA0}, 448, v{T[3]}")
            a(f"v_add_u32 v{vA0}, v{vA0}, v{T[4]}")
            a(f"s_lshl_b32 s{sT0}, s{sW}, 7")
            a(f"s_add_u32 s{sT0}, s{sT0}, {HOFF - 128}")
            a(f"v_add_u32 v{vA0}, s{sT0}, v{vA0}")
        def reads(ksl, buf):
            rd = []
            for ct in range(2):
                for t in range(2):
                    if role == 'Q':
                        rd.append(f"ds_read_b64_tr_b16 {r2(AF[buf][ct]+2*t)}, v{vAc0 if ct == 0 else vAc1} offset:{ksl*16*pitch + t*4*pitch}")
                    else:
                        rd.append(f"ds_read_b64_tr_b16 {r2(AF[buf][ct]+2*t)}, v{vAc0} offset:{ksl*16*pitch + t*4*pitch + ct*64}")
            for ts in range(2):
                rd.append(f"ds_read_b128 {r4(BF[buf][ts])}, v{vBt} offset:{ts*8192}")
            return [rd[0], rd[1], rd[4], rd[5], rd[2], rd[3]]
        def setaddr():
            a(f"v_add_u32 v{vAc0}, s{sSlot}, v{vA0}")
            if role == 'Q': a(f"v_add_u32 v{vAc1}, s{sSlot}, v{vA1}")
        def setb():
            a(f"v_xor_b32 v{vBt}, s{sK}, v{vB}")
        def nextk():
            nextk16()
        def mf(buf, i):
            ct, ts = [(0, 0), (0, 1), (1, 1), (1, 0)][i]
            return f"v_mfma_f32_32x32x16_bf16 {r16(acc(ct,ts))}, {r4(AF[buf][ct])}, {r4(BF[buf][ts])}, {r16(acc(ct,ts))}"
        setaddr(); setb()
        if K1PM: ts_mark(a, MK[1])
        a(f"s_waitcnt vmcnt({NQ-4})")
        if K1PM: ts_mark(a, MK[2])
        a("s_barrier")
        ts_mark(a, MK[3] if K1PM else MK[1])
        for l in reads(0, 0): a(l)
        a.label(L + "_LOOP")
        nextk(); setb()
        a("s_waitcnt lgkmcnt(0)")
        rd = reads(1, 1)
        a(mf(0, 0)); a(rd[0]); a(rd[1]); a(rd[2])
        a(mf(0, 1)); a(rd[3]); a(rd[4]); a(rd[5])
        a(mf(0, 2)); a(mf(0, 3))
        nextk(); next_slot()
        a("s_waitcnt lgkmcnt(0)")
        a(mf(1, 0))
        a(f"s_cmp_eq_u32 s{sC}, 15")
        a(f"s_cbranch_scc1 {L}_LAST")
        a(f"s_cmp_lg_u32 s{sC}, 1")
        a(f"s_cbranch_scc1 {L}_W1")
        a(f"s_waitcnt vmcnt({NQ-9})")
        a.label(L + "_W1")
        for cc, n in ((3, 9 + PF), (7, 5), (11, 0)):
            a(f"s_cmp_lg_u32 s{sC}, {cc}")
            a(f"s_cbranch_scc1 {L}_W{cc}")
            a(f"s_waitcnt vmcnt({n})")
            a.label(L + f"_W{cc}")
        setaddr(); setb()
        a("s_barrier")
        rd = reads(0, 0)
        a(rd[0]); a(rd[1]); a(rd[2])
        a(mf(1, 1)); a(rd[3]); a(rd[4]); a(rd[5])
        a(mf(1, 2)); a(mf(1, 3))
        a(f"s_add_u32 s{sC}, s{sC}, 1")
        a(f"s_branch {L}_LOOP")
        a.label(L + "_LAST")
        a(mf(1, 1)); a(mf(1, 2)); a(mf(1, 3))
        if not K1PM: ts_mark(a, MK[2])
        if role == 'Q':
            a(f"s_lshl_b32 s{sT0}, s{sTB}, 6")
            a(f"s_lshl_b32 s{sT1}, s{sCG}, 2")
            a(f"s_add_u32 s{sT0}, s{sT0}, s{sT1}")
            a(f"s_lshl_b32 s{sT0}, s{sT0}, 10")
            if WS_QF: a(f"s_add_u32 s{sT0}, s{sT0}, {WS_QF}")
            a(f"s_add_u32 s{sT1}, s{sT0}, {32*1024}")
        else:
            a(f"s_mul_i32 s{sT0}, s{sTB}, 224")
            a(f"s_mul_i32 s{sT1}, s{sCG}, 14")
            a(f"s_add_u32 s{sT0}, s{sT0}, s{sT1}")
            a(f"s_lshl_b32 s{sT1}, s{sW}, 2")
            a(f"s_add_u32 s{sT0}, s{sT0}, s{sT1}")
            a(f"s_lshl_b32 s{sT0}, s{sT0}, 10")
            a(f"s_add_u32 s{sT0}, s{sT0}, {WS_HF - 4096}")
            a(f"s_add_u32 s{sT1}, s{sT0}, {112*1024}")
        d = 32
        for ts in range(2):
            for ct in range(2):
                for f in range(2):
                    store_frag(a, role, acc(ct, ts) + 8 * f, d, sT0 if ts == 0 else sT1, (ct * 2 + f) * 1024)
                    d = 32 + ((d - 32 + 4) % 32)
        a(f"s_branch {P}FIN")

    def store_frag(a, role, r, d, so, off):
        for k in range(4):
            if role == 'Q':
                a(f"v_mul_f32 v{r+2*k}, {f32hex(QS2)}, v{r+2*k}")
                a(f"v_mul_f32 v{r+2*k+1}, {f32hex(QS2)}, v{r+2*k+1}")
            a(f"v_cvt_pk_bf16_f32 v{d+k}, v{r+2*k}, v{r+2*k+1}")
            if role != 'Q': a(f"v_pk_max_i16 v{d+k}, v{d+k}, 0")
        a(f"buffer_store_dwordx4 {r4(d)}, v{vL16}, s[{sWS}:{sWS+3}], s{so} offen offset:{off}{ST}")

    big('Q')
    a.label(f"{P}HROLE")
    big('H')

    a.label(f"{P}LOADER")
    sLW, sI0, sN = 83, 92, 93
    vQs = 16; vHs = [17, 18, 19, 20]
    a(f"s_sub_u32 s{sLW}, s{sW}, 4")
    a(f"v_lshrrev_b32 v{T[0]}, 3, v{vLane}")
    a(f"v_bfe_u32 v{T[1]}, v{T[0]}, 1, 1")
    a(f"v_lshlrev_b32 v{T[1]}, 2, v{T[1]}")
    a(f"v_and_b32 v{T[2]}, 7, v{vLane}")
    a(f"v_xor_b32 v{T[2]}, v{T[2]}, v{T[1]}")
    a(f"v_lshlrev_b32 v{T[2]}, 4, v{T[2]}")
    a(f"v_lshl_add_u32 v{vQs}, v{T[0]}, 10, v{T[2]}")
    a(f"s_lshl_b32 s{sT0}, s{sLW}, 13")
    a(f"s_lshl_b32 s{sT1}, s{sCG}, 7")
    a(f"s_add_u32 s{sSoQ}, s{sT0}, s{sT1}")
    a(f"s_lshl_b32 s{sI0}, s{sLW}, 2")
    a(f"s_cmp_eq_u32 s{sLW}, 3")
    a(f"s_cselect_b32 s{sI0}, 11, s{sI0}")
    a(f"s_lshl_b32 s{sT0}, s{sI0}, 6")
    for e in range(4):
        a(f"v_add_u32 v{T[0]}, s{sT0}, v{vLane}")
        if e: a(f"v_add_u32 v{T[0]}, {64*e}, v{T[0]}")
        a(f"v_mul_u32_u24 v{T[1]}, 2341, v{T[0]}")
        a(f"v_lshrrev_b32 v{T[1]}, 16, v{T[1]}")
        a(f"v_mul_u32_u24 v{T[2]}, 28, v{T[1]}")
        a(f"v_sub_u32 v{T[2]}, v{T[0]}, v{T[2]}")
        a(f"v_mul_u32_u24 v{T[1]}, 3584, v{T[1]}")
        a(f"v_lshl_add_u32 v{vHs[e]}, v{T[2]}, 4, v{T[1]}")
    a(f"s_mul_i32 s{sSoH}, s{sCG}, 448")
    a(f"s_mov_b32 s{sSlot}, {RING}")
    a("s_waitcnt lgkmcnt(0)")
    if not K1PM: ts_mark(a, MK[0])
    pf_sync()
    if K1PM: ts_mark(a, MK[0])
    srd(a, sWQ, 18, 0x80000)
    srd(a, sW1, 28, 512 * 3584)
    def chunk_dma(n):
        a(f"s_lshl_b32 s{sT0}, s{sLW}, 10")
        a(f"s_add_u32 m0, s{sSlot}, s{sT0}")
        a(f"buffer_load_dwordx4 v{vQs}, s[{sWQ}:{sWQ+3}], s{sSoQ} offen lds")
        a(f"s_lshl_b32 s{sT0}, s{sI0}, 10")
        a(f"s_add_u32 s{sT0}, s{sT0}, s{sSlot}")
        a(f"s_add_u32 m0, s{sT0}, {HOFF}")
        for e in range(n - 1):
            a(f"buffer_load_dwordx4 v{vHs[e]}, s[{sW1}:{sW1+3}], s{sSoH} offen lds")
            if e < n - 2: a("s_add_u32 m0, m0, 1024")
        a(f"s_add_u32 s{sSoQ}, s{sSoQ}, {32*1024}")
        a(f"s_add_u32 s{sSoH}, s{sSoH}, {32*3584}")
        next_slot()

    sRs = 94
    def loader(role):
        L = f"{P}{role}"
        n = 5 if role == 'C' else 4
        for c in range(4): chunk_dma(n)
        srd(a, sWS, 34, WS_SIZE)
        a(f"s_mov_b32 s{sC}, 0")
        a(f"s_mov_b32 s{sRs}, {RING}")
        pre, work, post = {'C': c8_role, 'M': mini_role, 'W': w2_role}[role]()
        pre()
        if K1PM: ts_mark(a, MK[1])
        a(f"s_waitcnt vmcnt({3*n})")
        if K1PM: ts_mark(a, MK[2])
        a("s_barrier")
        ts_mark(a, MK[3] if K1PM else MK[1])
        a.label(L + "_LOOP")
        work()
        a(f"s_cmp_eq_u32 s{sC}, 15")
        a(f"s_cbranch_scc1 {L}_DONE")
        a(f"s_cmp_ge_u32 s{sC}, 13")
        a(f"s_cbranch_scc1 {L}_WA")
        a(f"s_waitcnt vmcnt({2*n})")
        a(f"s_branch {L}_WB")
        a.label(L + "_WA")
        a("s_waitcnt vmcnt(0)")
        a.label(L + "_WB")
        a("s_barrier")
        a(f"s_cmp_ge_u32 s{sC}, 12")
        a(f"s_cbranch_scc1 {L}_NOD")
        chunk_dma(n)
        a.label(L + "_NOD")
        a(f"s_add_u32 s{sC}, s{sC}, 1")
        a(f"s_add_u32 s{sRs}, s{sRs}, {SLOT}")
        a(f"s_cmp_eq_u32 s{sRs}, {RING + 4*SLOT}")
        a(f"s_cselect_b32 s{sRs}, {RING}, s{sRs}")
        a(f"s_branch {L}_LOOP")
        a.label(L + "_DONE")
        if not K1PM: ts_mark(a, MK[2])
        post()
        a(f"s_branch {P}FIN")

    def c8_role():
        vA0, vAc, vB, vBt = 24, 25, 26, 27
        AF = [32, 36]; BF = [40, 44]; ACC = 64
        def pre():
            a(f"v_lshrrev_b32 v{T[0]}, 5, v{vLane}")
            a(f"v_and_b32 v{T[1]}, 31, v{vLane}")
            a(f"v_and_b32 v{T[2]}, 15, v{T[1]}")
            a(f"v_xor_b32 v{T[2]}, v{T[2]}, v{T[0]}")
            a(f"v_lshlrev_b32 v{T[2]}, 4, v{T[2]}")
            a(f"v_lshl_add_u32 v{vB}, v{T[1]}, 8, v{T[2]}")
            a(f"s_lshl_b32 s{sT0}, s{sLW}, 13")
            a(f"s_add_u32 s{sT0}, s{sT0}, {XIMG}")
            a(f"v_add_u32 v{vB}, s{sT0}, v{vB}")
            a(f"v_bfe_u32 v{T[2]}, v{vLane}, 2, 2")
            a(f"v_lshl_add_u32 v{T[3]}, v{T[0]}, 3, v{T[2]}")
            a(f"v_bfe_u32 v{T[4]}, v{vLane}, 4, 1")
            a(f"v_lshlrev_b32 v{T[4]}, 5, v{T[4]}")
            a(f"v_and_b32 v{T[5]}, 3, v{vLane}")
            a(f"v_lshl_add_u32 v{T[4]}, v{T[5]}, 3, v{T[4]}")
            a(f"v_mul_u32_u24 v{vA0}, 448, v{T[3]}")
            a(f"v_add_u32 v{vA0}, v{vA0}, v{T[4]}")
            a(f"v_add_u32 v{vA0}, {HOFF + 6*64}, v{vA0}")
            for r in range(16): a(f"v_mov_b32 v{ACC+r}, 0")
            a(f"s_mov_b32 s{sK}, 0")
            a(f"s_mov_b32 s{sKs}, 0")
        def work():
            a(f"v_add_u32 v{vAc}, s{sRs}, v{vA0}")
            for ksl in range(2):
                a(f"v_xor_b32 v{vBt+ksl}, s{sK}, v{vB}")
                for t in range(2):
                    a(f"ds_read_b64_tr_b16 {r2(AF[ksl]+2*t)}, v{vAc} offset:{ksl*16*448 + t*4*448}")
                a(f"ds_read_b128 {r4(BF[ksl])}, v{vBt+ksl}")
                nextk16()
            a("s_waitcnt lgkmcnt(3)")
            a(f"v_mfma_f32_32x32x16_bf16 {r16(ACC)}, {r4(AF[0])}, {r4(BF[0])}, {r16(ACC)}")
            a("s_waitcnt lgkmcnt(0)")
            a(f"v_mfma_f32_32x32x16_bf16 {r16(ACC)}, {r4(AF[1])}, {r4(BF[1])}, {r16(ACC)}")
        def post():
            a(f"s_lshl_b32 s{sT0}, s{sTB}, 1")
            a(f"s_add_u32 s{sT0}, s{sT0}, s{sLW}")
            a(f"s_mul_i32 s{sT0}, s{sT0}, 112")
            a(f"s_mul_i32 s{sT1}, s{sCG}, 14")
            a(f"s_add_u32 s{sT0}, s{sT0}, s{sT1}")
            a(f"s_lshl_b32 s{sT0}, s{sT0}, 10")
            a(f"s_add_u32 s{sT0}, s{sT0}, {WS_HF + 12*1024}")
            for f in range(2): store_frag(a, 'H', ACC + 8 * f, 32 + 4 * f, sT0, f * 1024)
        return pre, work, post

    def mini_role():
        vXm, vXt, vWm, vGm = 24, 25, 26, 27
        XF = [32, 36]; WF = [40, 44]; GF = [48, 52]; D = 56; DG = 60
        L = f"{P}M"
        def pre():
            a(f"v_and_b32 v{T[0]}, 15, v{vLane}")
            a(f"v_lshrrev_b32 v{T[1]}, 4, v{vLane}")
            a(f"v_xor_b32 v{T[2]}, v{T[0]}, v{T[1]}")
            a(f"v_lshlrev_b32 v{T[2]}, 4, v{T[2]}")
            a(f"v_lshl_add_u32 v{vXm}, v{T[0]}, 8, v{T[2]}")
            a(f"s_lshl_b32 s{sT0}, s{sTT}, 12")
            a(f"s_add_u32 s{sT0}, s{sT0}, {XIMG}")
            a(f"v_add_u32 v{vXm}, s{sT0}, v{vXm}")
            a(f"v_lshrrev_b32 v{T[2]}, 1, v{T[1]}")
            a(f"v_lshlrev_b32 v{T[2]}, 4, v{T[2]}")
            a(f"v_and_b32 v{T[3]}, 1, v{T[1]}")
            a(f"v_lshl_add_u32 v{T[2]}, v{T[3]}, 2, v{T[2]}")
            a(f"v_lshrrev_b32 v{T[3]}, 2, v{T[0]}")
            a(f"v_add_u32 v{T[2]}, v{T[2]}, v{T[3]}")
            a(f"v_lshlrev_b32 v{T[2]}, 5, v{T[2]}")
            a(f"v_and_b32 v{T[3]}, 3, v{T[0]}")
            a(f"v_lshl_add_u32 v{T[2]}, v{T[3]}, 3, v{T[2]}")
            a(f"v_add_u32 v{vWm}, {KVW}, v{T[2]}")
            a(f"v_lshlrev_b32 v{vGm}, 4, v{T[1]}")
            a(f"v_add_u32 v{vGm}, {GATE}, v{vGm}")
            for r in range(8): a(f"v_mov_b32 v{D+r}, 0")
            a(f"s_mov_b32 s{sK}, 0")
            a(f"s_mov_b32 s{sKs}, 0")
        def work():
            a(f"s_lshr_b32 s{sT0}, s{sC}, 1")
            a(f"s_lshl_b32 s{sT0}, 1, s{sT0}")
            a(f"s_and_b32 s{sT0}, s{sT0}, {(1<<1)|(1<<2)|(1<<4)|(1<<6)}")
            a(f"s_cbranch_scc0 {L}_SKIP")
            a.label(L + "_GO")
            for e in range(2):
                a(f"v_xor_b32 v{vXt}, s{sK}, v{vXm}")
                a(f"ds_read_b128 {r4(XF[e])}, v{vXt}")
                for t in range(2):
                    a(f"ds_read_b64_tr_b16 {r2(WF[e]+2*t)}, v{vWm} offset:{e*1024 + t*256}")
                a(f"ds_read_b128 {r4(GF[e])}, v{vGm} offset:{e*64}")
                a(f"s_add_u32 s{sKs}, s{sKs}, 64")
                a(f"s_lshr_b32 s{sK}, s{sKs}, 8")
                a(f"s_lshl_b32 s{sK}, s{sK}, 14")
                a(f"s_and_b32 s{sT3}, s{sKs}, 0xc0")
                a(f"s_or_b32 s{sK}, s{sK}, s{sT3}")
            a(f"v_add_u32 v{vWm}, 2048, v{vWm}")
            a(f"v_add_u32 v{vGm}, 128, v{vGm}")
            a("s_waitcnt lgkmcnt(0)")
            a(f"s_cmp_eq_u32 s{sTYPE}, 0")
            a(f"s_cbranch_scc0 {L}_V")
            for e in range(2):
                a(f"v_mfma_f32_16x16x32_bf16 {r4(D)}, {r4(WF[e])}, {r4(XF[e])}, {r4(D)}")
                a(f"v_mfma_f32_16x16x32_bf16 {r4(DG)}, {r4(GF[e])}, {r4(XF[e])}, {r4(DG)}")
            a(f"s_branch {L}_SKIP")
            a.label(L + "_V")
            for e in range(2):
                a(f"v_mfma_f32_16x16x32_bf16 {r4(D)}, {r4(XF[e])}, {r4(WF[e])}, {r4(D)}")
            a.label(L + "_SKIP")
        def post():
            E = 32
            a(f"v_and_b32 v{T[0]}, 15, v{vLane}")
            a(f"v_lshrrev_b32 v{T[1]}, 4, v{vLane}")
            a(f"v_cvt_pk_bf16_f32 v{E}, v{D}, v{D+1}")
            a(f"v_cvt_pk_bf16_f32 v{E+1}, v{D+2}, v{D+3}")
            a(f"v_and_b32 v{T[2]}, 1, v{T[1]}")
            a(f"v_lshrrev_b32 v{T[3]}, 1, v{T[1]}")
            a(f"v_lshlrev_b32 v{T[3]}, 3, v{T[3]}")
            a(f"v_lshl_add_u32 v{T[3]}, v{T[0]}, 4, v{T[3]}")
            a(f"s_lshl_b32 s{sT0}, s{sTB}, 1")
            a(f"s_lshr_b32 s{sT1}, s{sTT}, 1")
            a(f"s_add_u32 s{sT0}, s{sT0}, s{sT1}")
            a(f"s_lshl_b32 s{sT0}, s{sT0}, 10")
            a(f"s_and_b32 s{sT1}, s{sTT}, 1")
            a(f"s_lshl_b32 s{sT2}, s{sTB}, 2")
            a(f"s_add_u32 s{sT2}, s{sT2}, s{sTT}")
            a(f"s_lshl_b32 s{sT2}, s{sT2}, 2")
            for q in range(2):
                a(f"v_lshlrev_b32 v{E+4+2*q}, 16, v{E+q}")
                a(f"v_and_b32 v{E+5+2*q}, 0xffff0000, v{E+q}")
            a(f"s_cmp_eq_u32 s{sTYPE}, 0")
            a(f"s_cbranch_scc0 {L}_VST")
            a(f"v_lshl_add_u32 v{T[3]}, v{T[2]}, 9, v{T[3]}")
            a(f"s_lshl_b32 s{sT1}, s{sT1}, 8")
            a(f"s_add_u32 s{sT0}, s{sT0}, s{sT1}")
            a(f"s_add_u32 s{sT0}, s{sT0}, {WS_KF}")
            a(f"buffer_store_dwordx2 {r2(E)}, v{T[3]}, s[{sWS}:{sWS+3}], s{sT0} offen{ST}")
            a(f"v_mul_f32 v{E+8}, v{E+4}, v{E+4}")
            for k in range(1, 4): a(f"v_fmac_f32 v{E+8}, v{E+4+k}, v{E+4+k}")
            a(f"v_mov_b32 v{E+9}, v{E+8}")
            a(f"v_permlane32_swap_b32 v{E+8}, v{E+9}")
            a(f"v_add_f32 v{E+8}, v{E+8}, v{E+9}")
            a(f"v_mov_b32 v{E+9}, v{E+8}")
            a(f"v_permlane16_swap_b32 v{E+8}, v{E+9}")
            a(f"v_add_f32 v{E+8}, v{E+8}, v{E+9}")
            for sh in (1, 2, 4, 8):
                a(f"v_max_u32_dpp v{E+8}, v{E+8}, v{E+8} row_shr:{sh} row_mask:0xf bank_mask:0xf")
            a(f"v_readlane_b32 s{sT3}, v{E+8}, 15")
            a(f"v_mul_f32 v{DG}, {f32hex(-1.4426950408889634)}, v{DG}")
            a(f"v_exp_f32 v{DG}, v{DG}")
            a(f"v_add_f32 v{DG}, 1.0, v{DG}")
            a(f"v_rcp_f32 v{DG}, v{DG}")
            a(f"v_lshlrev_b32 v{T[4]}, 2, v{vLane}")
            a(f"s_lshl_b32 s{sT0}, s{sT2}, 4")
            a(f"s_add_u32 s{sT0}, s{sT0}, {WS_G}")
            a(f"s_add_u32 s{sT2}, s{sT2}, {WS_KMAX}")
            a("s_mov_b64 exec, 0xffff")
            a(f"buffer_store_dword v{DG}, v{T[4]}, s[{sWS}:{sWS+3}], s{sT0} offen{ST}")
            a(f"s_branch {L}_MX")
            a.label(L + "_VST")
            a(f"v_lshl_add_u32 v{T[3]}, v{T[2]}, 8, v{T[3]}")
            a(f"s_lshl_b32 s{sT1}, s{sT1}, 9")
            a(f"s_add_u32 s{sT0}, s{sT0}, s{sT1}")
            a(f"s_add_u32 s{sT1}, s{sT0}, {WS_VB}")
            a(f"s_add_u32 s{sT0}, s{sT0}, {WS_VF}")
            a(f"buffer_store_dwordx2 {r2(E)}, v{T[3]}, s[{sWS}:{sWS+3}], s{sT1} offen{ST}")
            for q in range(2):
                a(f"v_cvt_pkrtz_f16_f32 v{E+8+q}, v{E+4+2*q}, v{E+5+2*q}")
            a(f"buffer_store_dwordx2 {r2(E+8)}, v{T[3]}, s[{sWS}:{sWS+3}], s{sT0} offen{ST}")
            for q in range(4): a(f"v_and_b32 v{E+4+q}, 0x7fffffff, v{E+4+q}")
            a(f"v_max_u32 v{E+4}, v{E+4}, v{E+5}")
            a(f"v_max3_u32 v{E+4}, v{E+4}, v{E+6}, v{E+7}")
            a(f"v_mov_b32 v{E+5}, v{E+4}")
            a(f"v_permlane32_swap_b32 v{E+4}, v{E+5}")
            a(f"v_max_u32 v{E+4}, v{E+4}, v{E+5}")
            a(f"v_mov_b32 v{E+5}, v{E+4}")
            a(f"v_permlane16_swap_b32 v{E+4}, v{E+5}")
            a(f"v_max_u32 v{E+4}, v{E+4}, v{E+5}")
            for sh in (1, 2, 4, 8):
                a(f"v_max_u32_dpp v{E+4}, v{E+4}, v{E+4} row_shr:{sh} row_mask:0xf bank_mask:0xf")
            a(f"v_readlane_b32 s{sT3}, v{E+4}, 15")
            a(f"s_add_u32 s{sT2}, s{sT2}, {WS_VMAX}")
            a.label(L + "_MX")
            a("s_mov_b64 exec, 1")
            a(f"v_mov_b32 v{E+10}, s{sT3}")
            a(f"v_mov_b32 v{E+11}, 0")
            a(f"buffer_store_dword v{E+10}, v{E+11}, s[{sWS}:{sWS+3}], s{sT2} offen{ST}")
            a("s_mov_b64 exec, -1")
        return pre, work, post

    def w2_role():
        vR = 24; F = 32
        L = f"{P}W"
        def pre():
            a(f"v_lshrrev_b32 v{T[0]}, 5, v{vLane}")
            a(f"v_bfe_u32 v{T[2]}, v{vLane}, 2, 2")
            a(f"v_lshl_add_u32 v{T[3]}, v{T[0]}, 2, v{T[2]}")
            a(f"v_lshlrev_b32 v{T[3]}, 6, v{T[3]}")
            a(f"v_bfe_u32 v{T[4]}, v{vLane}, 4, 1")
            a(f"v_lshl_add_u32 v{T[3]}, v{T[4]}, 5, v{T[3]}")
            a(f"v_and_b32 v{T[5]}, 3, v{vLane}")
            a(f"v_lshl_add_u32 v{T[3]}, v{T[5]}, 3, v{T[3]}")
            a(f"v_add_u32 v{vR}, {W2P}, v{T[3]}")
            a(f"s_lshl_b32 s{sT0}, s{sTB}, 3")
            a(f"s_add_u32 s{sT0}, s{sT0}, s{sCG}")
            a(f"s_and_b32 s{sT1}, s{sT0}, 15")
            a(f"s_mul_i32 s{sT1}, s{sT1}, 112")
            a(f"s_lshr_b32 s{sT0}, s{sT0}, 4")
            a(f"s_mul_i32 s{sT0}, s{sT0}, 7")
            a(f"s_add_u32 s{sT0}, s{sT0}, s{sT1}")
            a(f"s_lshl_b32 s{sT0}, s{sT0}, 10")
            a(f"s_add_u32 s{sM}, s{sT0}, {WS_W2F}")
            a(f"s_lshl_b32 s{sK}, s2, 13")
            a(f"s_add_u32 s{sK}, s{sK}, {WS_OF}")
            for r in range(4): a(f"v_mov_b32 v{F+8+r}, -1")
        def work(): pass
        def post():
            for i in range(8):
                a(f"buffer_store_dwordx4 {r4(F+8)}, v{vL16}, s[{sWS}:{sWS+3}], s{sK} offen offset:{(i%4)*1024}{ST}")
                if i == 3: a(f"s_add_u32 s{sK}, s{sK}, 4096")
            for i in range(7):
                for t in range(2):
                    a(f"ds_read_b64_tr_b16 {r2(F+12+4*i+2*t)}, v{vR} offset:{i*1024+t*512}")
            for i in range(7):
                a(f"s_waitcnt lgkmcnt({12-2*i})")
                a(f"buffer_store_dwordx4 {r4(F+12+4*i)}, v{vL16}, s[{sWS}:{sWS+3}], s{sM} offen{ST}")
                a(f"s_add_u32 s{sM}, s{sM}, 1024")
        return pre, work, post

    a(f"s_cmp_ge_u32 s{sW}, 6")
    a(f"s_cbranch_scc1 {P}L67")
    loader('C')
    a.label(f"{P}L67")
    a(f"s_cmp_eq_u32 s{sW}, 7")
    a(f"s_cbranch_scc1 {P}L7")
    loader('M')
    a.label(f"{P}L7")
    loader('W')
    a.label(f"{P}FIN")
    if not K1PM: ts_mark(a, MK[3])
    ts_end(a, 0, sWS, sW, MK)
    a("s_endpgm")
    a.label(f"{P}END")
    a("s_endpgm")
    return a

if __name__ == "__main__":
    for idx in range(896): assert (idx * 2341) >> 16 == idx // 28
    print("ok")
```

```python
import sys, os
sys.path.insert(0, os.path.dirname(os.path.abspath(__file__)))
from asmlib import Asm
from gen import (WS_KF, WS_VF, WS_G, WS_KMAX, WS_HF, WS_W2F, WS_OF, WS_SIZE, QS2, WS_VB, WS_VMAX, f32hex, srd,
                 ts_begin, ts_mark, ts_end, TS)
WS_QF = 0

def r4(x): return f"v[{x}:{x+3}]"
def r2(x): return f"v[{x}:{x+1}]"
def r16(x): return f"v[{x}:{x+15}]"

XIMG, RING, SLOT, HOFF = 0, 65536, 18432, 4096
KVW = RING + 4 * SLOT
GATE = KVW + 16384
W2P = GATE + 1024
K1_LDS = W2P + 7 * 1024
assert K1_LDS == 163840
K1PM = int(os.environ.get("K1PM", "0"))
ROT = int(os.environ.get("ROT", "1"))
ST = os.environ.get("K1ST", "sc1")
if ST: ST = " " + ST

def map_t8(a, sB, sTB, sCG, sT0, mode):
    if mode == 'simple':
        a(f"s_and_b32 s{sTB}, s{sB}, 31")
        a(f"s_lshr_b32 s{sCG}, s{sB}, 5")
    else:
        a(f"s_and_b32 s{sCG}, s{sB}, 1")
        a(f"s_lshl_b32 s{sCG}, s{sCG}, 2")
        a(f"s_bfe_u32 s{sT0}, s{sB}, 0x20003")
        a(f"s_or_b32 s{sCG}, s{sCG}, s{sT0}")
        a(f"s_bfe_u32 s{sTB}, s{sB}, 0x20001")
        a(f"s_lshl_b32 s{sTB}, s{sTB}, 3")
        a(f"s_lshr_b32 s{sT0}, s{sB}, 5")
        a(f"s_or_b32 s{sTB}, s{sTB}, s{sT0}")

def gen_k1r(name, mapmode='T8'):
    a = Asm()
    a.label(name)
    P = "K1_"
    sX, sW1, sWQ, sKV, sWS, sW2, sGT = 36, 40, 44, 48, 52, 56, 60
    sTB, sCG, sW, sT0, sT1, sC, sSlot, sK, sSo, sT2, sT3, sTYPE, sTT, sM = 64, 65, 66, 67, 68, 69, 70, 71, 72, 73, 74, 75, 76, 77
    sSoQ, sSoH, sKs, sG, sCC, sXm = 78, 79, 80, 81, 82, 83
    MK = [84, 86, 88, 90]
    sLW, sI0, sRs, sW2s, sW2m = 92, 93, 94, 95, 100
    vLane, vL16 = 1, 2
    T = list(range(4, 16))
    a("s_cmp_ge_u32 s2, 256")
    a(f"s_cbranch_scc1 {P}END")
    ts_begin(a)
    a("s_load_dwordx16 s[16:31], s[0:1], 0")
    a("s_load_dwordx2 s[32:33], s[0:1], 64")
    a("s_load_dwordx2 s[34:35], s[0:1], 88")
    map_t8(a, 2, sTB, sCG, sT0, mapmode)
    a(f"v_lshrrev_b32 v{T[0]}, 6, v0")
    a(f"v_and_b32 v{vLane}, 63, v0")
    a(f"v_readfirstlane_b32 s{sW}, v{T[0]}")
    a(f"v_lshlrev_b32 v{vL16}, 4, v{vLane}")
    a(f"s_and_b32 s{sTYPE}, s{sCG}, 1")
    a(f"s_lshr_b32 s{sTT}, s{sCG}, 1")
    if ROT: a(f"s_and_b32 s{sG}, s{sTB}, 3")
    else: a(f"s_mov_b32 s{sG}, 0")
    vX0 = 16
    a(f"v_lshrrev_b32 v{T[3]}, 4, v{vLane}")
    a(f"v_and_b32 v{T[2]}, 15, v{vLane}")
    a(f"v_xor_b32 v{T[2]}, v{T[2]}, v{T[3]}")
    a(f"v_lshlrev_b32 v{T[2]}, 4, v{T[2]}")
    a(f"v_lshl_add_u32 v{vX0}, v{T[3]}, 10, v{T[2]}")
    a(f"s_and_b32 s{sLW}, s{sW}, 3")
    a(f"s_lshl_b32 s{sT0}, s{sTB}, 16")
    a(f"s_lshl_b32 s{sT1}, s{sLW}, 14")
    a(f"s_add_u32 s{sSo}, s{sT0}, s{sT1}")
    a(f"s_lshl_b32 s{sXm}, s{sLW}, 12")
    if XIMG: a(f"s_add_u32 s{sXm}, s{sXm}, {XIMG}")
    a(f"s_lshl_b32 s{sKs}, s{sG}, 8")
    a(f"s_lshl_b32 s{sK}, s{sG}, 14")
    a(f"s_mov_b32 s{sC}, 0")
    def xquarter(qi):
        a(f"s_add_u32 s{sT0}, s{sG}, {qi}")
        a(f"s_and_b32 s{sT0}, s{sT0}, 3")
        a(f"s_lshl_b32 s{sT1}, s{sT0}, 14")
        a(f"s_add_u32 m0, s{sT1}, s{sXm}")
        a(f"s_lshl_b32 s{sT0}, s{sT0}, 8")
        a(f"s_add_u32 s{sT0}, s{sT0}, s{sSo}")
        for i in range(4):
            if i:
                a(f"s_add_u32 m0, m0, 1024")
                a(f"s_add_u32 s{sT0}, s{sT0}, 4096")
                a(f"v_xor_b32 v{vX0+i}, {64*i}, v{vX0}")
            a(f"buffer_load_dwordx4 v{vX0+i}, s[{sX}:{sX+3}], s{sT0} offen lds")
    def nextk(step, mask):
        a(f"s_add_u32 s{sKs}, s{sKs}, {step}")
        a(f"s_and_b32 s{sKs}, s{sKs}, 0x3ff")
        a(f"s_lshr_b32 s{sK}, s{sKs}, 8")
        a(f"s_lshl_b32 s{sK}, s{sK}, 14")
        a(f"s_and_b32 s{sT3}, s{sKs}, {mask}")
        a(f"s_or_b32 s{sK}, s{sK}, s{sT3}")
    def next_slot(s_):
        a(f"s_add_u32 s{s_}, s{s_}, {SLOT}")
        a(f"s_cmp_eq_u32 s{s_}, {RING + 4*SLOT}")
        a(f"s_cselect_b32 s{s_}, {RING}, s{s_}")
    a(f"s_cmp_ge_u32 s{sW}, 4")
    a(f"s_cbranch_scc1 {P}LOADER")

    vA0, vA1, vAc0, vAc1, vB, vBt = 20, 21, 22, 23, 24, 25
    AF = [[32, 36], [40, 44]]
    BF = [[48, 52], [56, 60]]
    ACC = 64
    def acc(ct, ts): return ACC + (ct * 2 + ts) * 16
    a(f"v_lshrrev_b32 v{T[3]}, 1, v{vLane}")
    a(f"v_and_b32 v{T[4]}, 0x13, v{T[3]}")
    a(f"v_bfe_u32 v{T[5]}, v{T[3]}, 2, 1")
    a(f"v_bfe_u32 v{T[6]}, v{T[3]}, 3, 1")
    a(f"v_lshl_add_u32 v{T[4]}, v{T[5]}, 3, v{T[4]}")
    a(f"v_lshl_add_u32 v{T[4]}, v{T[6]}, 2, v{T[4]}")
    a(f"v_lshlrev_b32 v{T[4]}, 5, v{T[4]}")
    a(f"v_and_b32 v{T[5]}, 1, v{vLane}")
    a(f"v_lshl_add_u32 v{T[4]}, v{T[5]}, 4, v{T[4]}")
    a("s_waitcnt lgkmcnt(0)")
    if not K1PM: ts_mark(a, MK[0])
    srd(a, sX, 16, 0x200000)
    xquarter(0)
    a(f"s_cmp_eq_u32 s{sTYPE}, 0")
    a(f"s_cselect_b32 s{sKV}, s20, s22")
    a(f"s_cselect_b32 s{sKV+1}, s21, s23")
    a(f"s_mov_b32 s{sKV+2}, 16384")
    a(f"s_mov_b32 s{sKV+3}, 0x00020000")
    a(f"s_lshl_b32 s{sT0}, s{sW}, 12")
    a(f"s_add_u32 m0, s{sT0}, {KVW}")
    for i in range(4):
        a(f"buffer_load_dwordx4 v{T[4]}, s[{sKV}:{sKV+3}], s{sT0} offen offset:{i*1024} lds")
    srd(a, sWS, 34, WS_SIZE)
    a(f"v_lshrrev_b32 v{T[0]}, 5, v{vLane}")
    a(f"v_and_b32 v{T[1]}, 31, v{vLane}")
    a(f"v_and_b32 v{T[2]}, 15, v{T[1]}")
    a(f"v_xor_b32 v{T[2]}, v{T[2]}, v{T[0]}")
    a(f"v_lshlrev_b32 v{T[2]}, 4, v{T[2]}")
    a(f"v_lshl_add_u32 v{vB}, v{T[1]}, 8, v{T[2]}")
    if XIMG: a(f"v_add_u32 v{vB}, {XIMG}, v{vB}")
    a(f"v_bfe_u32 v{T[2]}, v{vLane}, 2, 2")
    a(f"v_lshl_add_u32 v{T[3]}, v{T[0]}, 3, v{T[2]}")
    a(f"v_bfe_u32 v{T[4]}, v{vLane}, 4, 1")
    a(f"v_lshlrev_b32 v{T[4]}, 5, v{T[4]}")
    a(f"v_and_b32 v{T[5]}, 3, v{vLane}")
    a(f"v_lshl_add_u32 v{T[4]}, v{T[5]}, 3, v{T[4]}")
    a(f"s_mov_b32 s{sSlot}, {RING}")
    a(f"s_cmp_eq_u32 s{sW}, 0")
    a(f"s_cbranch_scc0 {P}HROLE")

    def big(role):
        L = f"{P}{role}"
        pitch = 128 if role == 'Q' else 448
        if role == 'Q':
            srd(a, sGT, 32, 1024)
            a(f"s_mov_b32 m0, {GATE}")
            a(f"buffer_load_dwordx4 v{vL16}, s[{sGT}:{sGT+3}], 0 offen lds")
            a(f"v_lshl_add_u32 v{vA0}, v{T[3]}, 7, v{T[4]}")
            a(f"v_bfe_u32 v{T[5]}, v{vLane}, 3, 1")
            a(f"v_lshl_add_u32 v{vA0}, v{T[5]}, 6, v{vA0}")
            a(f"v_xor_b32 v{vA1}, 64, v{vA0}")
        else:
            a(f"v_mul_u32_u24 v{vA0}, 448, v{T[3]}")
            a(f"v_add_u32 v{vA0}, v{vA0}, v{T[4]}")
            a(f"s_lshl_b32 s{sT0}, s{sW}, 7")
            a(f"s_add_u32 s{sT0}, s{sT0}, {HOFF - 128}")
            a(f"v_add_u32 v{vA0}, s{sT0}, v{vA0}")
        for r in range(64): a(f"v_mov_b32 v{ACC+r}, 0")
        def reads(ksl, buf):
            rd = []
            for ct in range(2):
                for t in range(2):
                    if role == 'Q':
                        rd.append(f"ds_read_b64_tr_b16 {r2(AF[buf][ct]+2*t)}, v{vAc0 if ct == 0 else vAc1} offset:{ksl*16*pitch + t*4*pitch}")
                    else:
                        rd.append(f"ds_read_b64_tr_b16 {r2(AF[buf][ct]+2*t)}, v{vAc0} offset:{ksl*16*pitch + t*4*pitch + ct*64}")
            for ts in range(2):
                rd.append(f"ds_read_b128 {r4(BF[buf][ts])}, v{vBt} offset:{ts*8192}")
            return [rd[0], rd[1], rd[4], rd[5], rd[2], rd[3]]
        def setaddr():
            a(f"v_add_u32 v{vAc0}, s{sSlot}, v{vA0}")
            if role == 'Q': a(f"v_add_u32 v{vAc1}, s{sSlot}, v{vA1}")
        def setb():
            a(f"v_xor_b32 v{vBt}, s{sK}, v{vB}")
        def mf(buf, i):
            ct, ts = [(0, 0), (0, 1), (1, 1), (1, 0)][i]
            return f"v_mfma_f32_32x32x16_bf16 {r16(acc(ct,ts))}, {r4(AF[buf][ct])}, {r4(BF[buf][ts])}, {r16(acc(ct,ts))}"
        setaddr(); setb()
        if K1PM: ts_mark(a, MK[1])
        a(f"s_waitcnt vmcnt({5 if role == 'Q' else 4})")
        if K1PM: ts_mark(a, MK[2])
        a("s_barrier")
        ts_mark(a, MK[3] if K1PM else MK[1])
        for l in reads(0, 0): a(l)
        a.label(L + "_LOOP")
        nextk(32, 0xe0); setb()
        rd = reads(1, 1)
        a("s_waitcnt lgkmcnt(3)")
        a(mf(0, 0)); a(rd[0]); a(rd[1]); a(rd[2])
        a("s_waitcnt lgkmcnt(5)")
        a(mf(0, 1)); a(rd[3])
        a("s_waitcnt lgkmcnt(4)")
        a(mf(0, 2)); a(rd[4]); a(rd[5])
        a(mf(0, 3))
        nextk(32, 0xe0); next_slot(sSlot)
        a("s_waitcnt lgkmcnt(3)")
        a(mf(1, 0))
        a(f"s_cmp_eq_u32 s{sC}, 15")
        a(f"s_cbranch_scc1 {L}_LAST")
        a(f"s_cmp_lg_u32 s{sC}, 1")
        a(f"s_cbranch_scc1 {L}_W1")
        a(f"s_waitcnt vmcnt(0)")
        a.label(L + "_W1")
        a("s_waitcnt lgkmcnt(0)")
        setaddr(); setb()
        a("s_barrier")
        rd = reads(0, 0)
        a(rd[0]); a(rd[1]); a(rd[2])
        a(mf(1, 1)); a(rd[3]); a(rd[4]); a(rd[5])
        a(mf(1, 2)); a(mf(1, 3))
        a(f"s_add_u32 s{sC}, s{sC}, 1")
        a(f"s_branch {L}_LOOP")
        a.label(L + "_LAST")
        a("s_waitcnt lgkmcnt(0)")
        a(mf(1, 1)); a(mf(1, 2)); a(mf(1, 3))
        if not K1PM: ts_mark(a, MK[2])
        if role == 'Q':
            a(f"s_lshl_b32 s{sT0}, s{sTB}, 6")
            a(f"s_lshl_b32 s{sT1}, s{sCG}, 2")
            a(f"s_add_u32 s{sT0}, s{sT0}, s{sT1}")
            a(f"s_lshl_b32 s{sT0}, s{sT0}, 10")
            if WS_QF: a(f"s_add_u32 s{sT0}, s{sT0}, {WS_QF}")
            a(f"s_add_u32 s{sT1}, s{sT0}, {32*1024}")
        else:
            a(f"s_mul_i32 s{sT0}, s{sTB}, 224")
            a(f"s_mul_i32 s{sT1}, s{sCG}, 14")
            a(f"s_add_u32 s{sT0}, s{sT0}, s{sT1}")
            a(f"s_lshl_b32 s{sT1}, s{sW}, 2")
            a(f"s_add_u32 s{sT0}, s{sT0}, s{sT1}")
            a(f"s_lshl_b32 s{sT0}, s{sT0}, 10")
            a(f"s_add_u32 s{sT0}, s{sT0}, {WS_HF - 4096}")
            a(f"s_add_u32 s{sT1}, s{sT0}, {112*1024}")
        d = 32
        for ts in range(2):
            for ct in range(2):
                for f in range(2):
                    store_frag(a, role, acc(ct, ts) + 8 * f, d, sT0 if ts == 0 else sT1, (ct * 2 + f) * 1024)
                    d = 32 + ((d - 32 + 4) % 32)
        a(f"s_branch {P}FIN")

    def store_frag(a, role, r, d, so, off):
        for k in range(4):
            if role == 'Q':
                a(f"v_mul_f32 v{r+2*k}, {f32hex(QS2)}, v{r+2*k}")
                a(f"v_mul_f32 v{r+2*k+1}, {f32hex(QS2)}, v{r+2*k+1}")
            a(f"v_cvt_pk_bf16_f32 v{d+k}, v{r+2*k}, v{r+2*k+1}")
            if role != 'Q': a(f"v_pk_max_i16 v{d+k}, v{d+k}, 0")
        a(f"buffer_store_dwordx4 {r4(d)}, v{vL16}, s[{sWS}:{sWS+3}], s{so} offen offset:{off}{ST}")

    big('Q')
    a.label(f"{P}HROLE")
    big('H')

    a.label(f"{P}LOADER")
    vQs = 20; vHs = [21, 22, 23, 24]; vW2 = 25; vXt = 26
    a(f"v_lshrrev_b32 v{T[0]}, 3, v{vLane}")
    a(f"v_bfe_u32 v{T[1]}, v{T[0]}, 1, 1")
    a(f"v_lshlrev_b32 v{T[1]}, 2, v{T[1]}")
    a(f"v_and_b32 v{T[2]}, 7, v{vLane}")
    a(f"v_xor_b32 v{T[2]}, v{T[2]}, v{T[1]}")
    a(f"v_lshlrev_b32 v{T[2]}, 4, v{T[2]}")
    a(f"v_lshl_add_u32 v{vQs}, v{T[0]}, 10, v{T[2]}")
    a(f"s_lshl_b32 s{sT0}, s{sLW}, 13")
    a(f"s_lshl_b32 s{sT1}, s{sCG}, 7")
    a(f"s_add_u32 s{sSoQ}, s{sT0}, s{sT1}")
    a(f"s_mul_i32 s{sI0}, s{sLW}, 3")
    a(f"s_lshr_b32 s{sT0}, s{sLW}, 1")
    a(f"s_and_b32 s{sT0}, s{sT0}, s{sLW}")
    a(f"s_add_u32 s{sI0}, s{sI0}, s{sT0}")
    a(f"s_lshl_b32 s{sT0}, s{sI0}, 6")
    for e in range(4):
        a(f"v_add_u32 v{T[0]}, s{sT0}, v{vLane}")
        if e: a(f"v_add_u32 v{T[0]}, {64*e}, v{T[0]}")
        a(f"v_mul_u32_u24 v{T[1]}, 2341, v{T[0]}")
        a(f"v_lshrrev_b32 v{T[1]}, 16, v{T[1]}")
        a(f"v_mul_u32_u24 v{T[2]}, 28, v{T[1]}")
        a(f"v_sub_u32 v{T[2]}, v{T[0]}, v{T[2]}")
        a(f"v_mul_u32_u24 v{T[1]}, 3584, v{T[1]}")
        a(f"v_lshl_add_u32 v{vHs[e]}, v{T[2]}, 4, v{T[1]}")
    a(f"s_mul_i32 s{sSoH}, s{sCG}, 448")
    a(f"s_lshl_b32 s{sI0}, s{sI0}, 10")
    a(f"s_add_u32 s{sI0}, s{sI0}, {HOFF}")
    a(f"s_mov_b32 s{sSlot}, {RING}")
    a(f"s_lshl_b32 s{sCC}, s{sG}, 2")
    a(f"v_lshrrev_b32 v{T[5]}, 2, v{vLane}")
    a(f"v_lshlrev_b32 v{T[5]}, 10, v{T[5]}")
    a(f"v_and_b32 v{T[6]}, 3, v{vLane}")
    a(f"v_lshl_add_u32 v{vW2}, v{T[6]}, 4, v{T[5]}")
    a(f"s_lshl_b32 s{sW2s}, s{sTB}, 3")
    a(f"s_add_u32 s{sW2s}, s{sW2s}, s{sCG}")
    a(f"s_and_b32 s{sT1}, s{sW2s}, 15")
    a(f"s_lshl_b32 s{sT1}, s{sT1}, 6")
    a(f"s_lshr_b32 s{sW2s}, s{sW2s}, 4")
    a(f"s_mul_i32 s{sW2s}, s{sW2s}, {112*1024}")
    a(f"s_add_u32 s{sW2s}, s{sW2s}, s{sT1}")
    a("s_waitcnt lgkmcnt(0)")
    if not K1PM: ts_mark(a, MK[0])
    srd(a, sWQ, 18, 0x80000)
    srd(a, sW1, 28, 512 * 3584)
    srd(a, sX, 16, 0x200000)
    def chunk_dma(n):
        a(f"s_lshl_b32 s{sT0}, s{sLW}, 10")
        a(f"s_add_u32 m0, s{sSlot}, s{sT0}")
        a(f"s_lshl_b32 s{sT0}, s{sCC}, 15")
        a(f"s_add_u32 s{sT0}, s{sT0}, s{sSoQ}")
        a(f"buffer_load_dwordx4 v{vQs}, s[{sWQ}:{sWQ+3}], s{sT0} offen lds")
        a(f"s_add_u32 m0, s{sSlot}, s{sI0}")
        a(f"s_mul_i32 s{sT0}, s{sCC}, {32*3584}")
        a(f"s_add_u32 s{sT0}, s{sT0}, s{sSoH}")
        for e in range(n - 1):
            a(f"buffer_load_dwordx4 v{vHs[e]}, s[{sW1}:{sW1+3}], s{sT0} offen lds")
            if e < n - 2: a("s_add_u32 m0, m0, 1024")
        a(f"s_add_u32 s{sCC}, s{sCC}, 1")
        a(f"s_and_b32 s{sCC}, s{sCC}, 15")
        next_slot(sSlot)
    def bg_dma(L):
        a(f"s_cmp_ge_u32 s{sC}, 8")
        a(f"s_cbranch_scc1 {L}_BGW")
        a(f"s_lshr_b32 s{sT0}, s{sC}, 2")
        a(f"s_add_u32 s{sT0}, s{sT0}, s{sG}")
        a(f"s_add_u32 s{sT0}, s{sT0}, 2")
        a(f"s_and_b32 s{sT0}, s{sT0}, 3")
        a(f"s_and_b32 s{sT1}, s{sC}, 3")
        a(f"s_lshl_b32 s{sT2}, s{sT1}, 6")
        a(f"v_xor_b32 v{vXt}, s{sT2}, v{vX0}")
        a(f"s_lshl_b32 s{sT2}, s{sT0}, 14")
        a(f"s_add_u32 s{sT2}, s{sT2}, s{sXm}")
        a(f"s_lshl_b32 s{sT3}, s{sT1}, 10")
        a(f"s_add_u32 m0, s{sT2}, s{sT3}")
        a(f"s_lshl_b32 s{sT0}, s{sT0}, 8")
        a(f"s_lshl_b32 s{sT1}, s{sT1}, 12")
        a(f"s_add_u32 s{sT0}, s{sT0}, s{sT1}")
        a(f"s_add_u32 s{sT0}, s{sT0}, s{sSo}")
        a(f"buffer_load_dwordx4 v{vXt}, s[{sX}:{sX+3}], s{sT0} offen lds")
        a(f"s_branch {L}_BGE")
        a.label(L + "_BGW")
        a(f"s_cmp_ge_u32 s{sC}, 10")
        a(f"s_cbranch_scc1 {L}_BGE")
        a(f"s_lshl_b32 s{sT0}, s{sLW}, 1")
        a(f"s_add_u32 s{sT0}, s{sT0}, s{sC}")
        a(f"s_sub_u32 s{sT0}, s{sT0}, 8")
        a(f"s_min_u32 s{sT0}, s{sT0}, 6")
        a(f"s_lshl_b32 s{sT1}, s{sT0}, 10")
        a(f"s_add_u32 m0, s{sT1}, {W2P}")
        a(f"s_lshl_b32 s{sT0}, s{sT0}, 14")
        a(f"s_add_u32 s{sT0}, s{sT0}, s{sW2s}")
        a(f"buffer_load_dwordx4 v{vW2}, s[{sW2}:{sW2+3}], s{sT0} offen lds")
        a.label(L + "_BGE")

    def loader(role):
        L = f"{P}{role}"
        n = 4 if role == 'C' else 5
        chunk_dma(n); chunk_dma(n); chunk_dma(n)
        xquarter(1)
        chunk_dma(n)
        srd(a, sWS, 34, WS_SIZE)
        srd(a, sW2, 30, 1792 * 1024)
        a(f"s_mov_b32 s{sRs}, {RING}")
        pre, work1, work2, post = {'C': c8_role, 'M': mini_role, 'W': w2_role}[role]()
        pre()
        if K1PM: ts_mark(a, MK[1])
        a(f"s_waitcnt vmcnt({3*n+4})")
        if K1PM: ts_mark(a, MK[2])
        a("s_barrier")
        ts_mark(a, MK[3] if K1PM else MK[1])
        work1()
        a.label(L + "_LOOP")
        work2()
        a(f"s_cmp_eq_u32 s{sC}, 15")
        a(f"s_cbranch_scc1 {L}_DONE")
        a(f"s_cmp_ge_u32 s{sC}, 11")
        a(f"s_cbranch_scc1 {L}_WA")
        a(f"s_waitcnt vmcnt({2*n+2})")
        a(f"s_branch {L}_WB")
        a.label(L + "_WA")
        a(f"s_cmp_ge_u32 s{sC}, 13")
        a(f"s_cbranch_scc1 {L}_WA2")
        a(f"s_waitcnt vmcnt({2*n})")
        a(f"s_branch {L}_WB")
        a.label(L + "_WA2")
        a("s_waitcnt vmcnt(0)")
        a.label(L + "_WB")
        a("s_barrier")
        a(f"s_add_u32 s{sC}, s{sC}, 1")
        next_slot(sRs)
        work1()
        a(f"s_cmp_ge_u32 s{sC}, 13")
        a(f"s_cbranch_scc1 {L}_LOOP")
        chunk_dma(n)
        a(f"s_sub_u32 s{sC}, s{sC}, 1")
        bg_dma(L)
        a(f"s_add_u32 s{sC}, s{sC}, 1")
        a(f"s_branch {L}_LOOP")
        a.label(L + "_DONE")
        if not K1PM: ts_mark(a, MK[2])
        post()
        a(f"s_branch {P}FIN")

    def c8_role():
        vA0, vAc, vB, vBt = 28, 29, 30, 31
        AF = [32, 36]; BF = [40, 44]; ACC = 64
        def pre():
            a(f"v_lshrrev_b32 v{T[0]}, 5, v{vLane}")
            a(f"v_and_b32 v{T[1]}, 31, v{vLane}")
            a(f"v_and_b32 v{T[2]}, 15, v{T[1]}")
            a(f"v_xor_b32 v{T[2]}, v{T[2]}, v{T[0]}")
            a(f"v_lshlrev_b32 v{T[2]}, 4, v{T[2]}")
            a(f"v_lshl_add_u32 v{vB}, v{T[1]}, 8, v{T[2]}")
            a(f"s_lshl_b32 s{sT0}, s{sLW}, 13")
            a(f"s_add_u32 s{sT0}, s{sT0}, {XIMG}")
            a(f"v_add_u32 v{vB}, s{sT0}, v{vB}")
            a(f"v_bfe_u32 v{T[2]}, v{vLane}, 2, 2")
            a(f"v_lshl_add_u32 v{T[3]}, v{T[0]}, 3, v{T[2]}")
            a(f"v_bfe_u32 v{T[4]}, v{vLane}, 4, 1")
            a(f"v_lshlrev_b32 v{T[4]}, 5, v{T[4]}")
            a(f"v_and_b32 v{T[5]}, 3, v{vLane}")
            a(f"v_lshl_add_u32 v{T[4]}, v{T[5]}, 3, v{T[4]}")
            a(f"v_mul_u32_u24 v{vA0}, 448, v{T[3]}")
            a(f"v_add_u32 v{vA0}, v{vA0}, v{T[4]}")
            a(f"v_add_u32 v{vA0}, {HOFF + 6*64}, v{vA0}")
            for r in range(16): a(f"v_mov_b32 v{ACC+r}, 0")
        def work1():
            a(f"v_add_u32 v{vAc}, s{sRs}, v{vA0}")
            for ksl in range(2):
                a(f"v_xor_b32 v{vBt}, s{sK}, v{vB}")
                for t in range(2):
                    a(f"ds_read_b64_tr_b16 {r2(AF[ksl]+2*t)}, v{vAc} offset:{ksl*16*448 + t*4*448}")
                a(f"ds_read_b128 {r4(BF[ksl])}, v{vBt}")
                nextk(32, 0xe0)
        def work2():
            a("s_waitcnt lgkmcnt(3)")
            a(f"v_mfma_f32_32x32x16_bf16 {r16(ACC)}, {r4(AF[0])}, {r4(BF[0])}, {r16(ACC)}")
            a("s_waitcnt lgkmcnt(0)")
            a(f"v_mfma_f32_32x32x16_bf16 {r16(ACC)}, {r4(AF[1])}, {r4(BF[1])}, {r16(ACC)}")
        def post():
            a(f"s_lshl_b32 s{sT0}, s{sTB}, 1")
            a(f"s_add_u32 s{sT0}, s{sT0}, s{sLW}")
            a(f"s_mul_i32 s{sT0}, s{sT0}, 112")
            a(f"s_mul_i32 s{sT1}, s{sCG}, 14")
            a(f"s_add_u32 s{sT0}, s{sT0}, s{sT1}")
            a(f"s_lshl_b32 s{sT0}, s{sT0}, 10")
            a(f"s_add_u32 s{sT0}, s{sT0}, {WS_HF + 12*1024}")
            for f in range(2): store_frag(a, 'H', ACC + 8 * f, 32 + 4 * f, sT0, f * 1024)
        return pre, work1, work2, post

    def mini_role():
        vXm, vXa, vWm, vGm, vWt, vGt = 28, 29, 30, 31, 64, 65
        XF = [32, 36]; WF = [40, 44]; GF = [48, 52]; D = 56; DG = 60
        L = f"{P}M"
        cnt = [0]
        def pre():
            a(f"v_and_b32 v{T[0]}, 15, v{vLane}")
            a(f"v_lshrrev_b32 v{T[1]}, 4, v{vLane}")
            a(f"v_xor_b32 v{T[2]}, v{T[0]}, v{T[1]}")
            a(f"v_lshlrev_b32 v{T[2]}, 4, v{T[2]}")
            a(f"v_lshl_add_u32 v{vXm}, v{T[0]}, 8, v{T[2]}")
            a(f"s_lshl_b32 s{sT0}, s{sTT}, 12")
            a(f"s_add_u32 s{sT0}, s{sT0}, {XIMG}")
            a(f"v_add_u32 v{vXm}, s{sT0}, v{vXm}")
            a(f"v_lshrrev_b32 v{T[2]}, 1, v{T[1]}")
            a(f"v_lshlrev_b32 v{T[2]}, 4, v{T[2]}")
            a(f"v_and_b32 v{T[3]}, 1, v{T[1]}")
            a(f"v_lshl_add_u32 v{T[2]}, v{T[3]}, 2, v{T[2]}")
            a(f"v_lshrrev_b32 v{T[3]}, 2, v{T[0]}")
            a(f"v_add_u32 v{T[2]}, v{T[2]}, v{T[3]}")
            a(f"v_lshlrev_b32 v{T[2]}, 5, v{T[2]}")
            a(f"v_and_b32 v{T[3]}, 3, v{T[0]}")
            a(f"v_lshl_add_u32 v{T[2]}, v{T[3]}, 3, v{T[2]}")
            a(f"v_add_u32 v{vWm}, {KVW}, v{T[2]}")
            a(f"v_lshlrev_b32 v{vGm}, 4, v{T[1]}")
            a(f"v_add_u32 v{vGm}, {GATE}, v{vGm}")
            for r in range(8): a(f"v_mov_b32 v{D+r}, 0")
        def cond(lab):
            a(f"s_lshr_b32 s{sT0}, s{sC}, 1")
            a(f"s_lshl_b32 s{sT0}, 1, s{sT0}")
            a(f"s_and_b32 s{sT0}, s{sT0}, {(1<<1)|(1<<2)|(1<<4)|(1<<6)}")
            a(f"s_cbranch_scc0 {lab}")
        def work1():
            cnt[0] += 1
            lab = f"{L}_SK{cnt[0]}"
            cond(lab)
            a(f"s_lshl_b32 s{sT0}, s{sKs}, 4")
            a(f"v_add_u32 v{vWt}, s{sT0}, v{vWm}")
            a(f"v_add_u32 v{vGt}, s{sKs}, v{vGm}")
            for e in range(2):
                a(f"v_xor_b32 v{vXa}, s{sK}, v{vXm}")
                a(f"ds_read_b128 {r4(XF[e])}, v{vXa}")
                for t in range(2):
                    a(f"ds_read_b64_tr_b16 {r2(WF[e]+2*t)}, v{vWt} offset:{e*1024 + t*256}")
                a(f"ds_read_b128 {r4(GF[e])}, v{vGt} offset:{e*64}")
                nextk(64, 0xc0)
            a.label(lab)
        def work2():
            cond(L + "_SKIP")
            a("s_waitcnt lgkmcnt(0)")
            a(f"s_cmp_eq_u32 s{sTYPE}, 0")
            a(f"s_cbranch_scc0 {L}_V")
            for e in range(2):
                a(f"v_mfma_f32_16x16x32_bf16 {r4(D)}, {r4(WF[e])}, {r4(XF[e])}, {r4(D)}")
                a(f"v_mfma_f32_16x16x32_bf16 {r4(DG)}, {r4(GF[e])}, {r4(XF[e])}, {r4(DG)}")
            a(f"s_branch {L}_SKIP")
            a.label(L + "_V")
            for e in range(2):
                a(f"v_mfma_f32_16x16x32_bf16 {r4(D)}, {r4(XF[e])}, {r4(WF[e])}, {r4(D)}")
            a.label(L + "_SKIP")
        def post():
            E = 32
            a(f"v_and_b32 v{T[0]}, 15, v{vLane}")
            a(f"v_lshrrev_b32 v{T[1]}, 4, v{vLane}")
            a(f"v_cvt_pk_bf16_f32 v{E}, v{D}, v{D+1}")
            a(f"v_cvt_pk_bf16_f32 v{E+1}, v{D+2}, v{D+3}")
            a(f"v_and_b32 v{T[2]}, 1, v{T[1]}")
            a(f"v_lshrrev_b32 v{T[3]}, 1, v{T[1]}")
            a(f"v_lshlrev_b32 v{T[3]}, 3, v{T[3]}")
            a(f"v_lshl_add_u32 v{T[3]}, v{T[0]}, 4, v{T[3]}")
            a(f"s_lshl_b32 s{sT0}, s{sTB}, 1")
            a(f"s_lshr_b32 s{sT1}, s{sTT}, 1")
            a(f"s_add_u32 s{sT0}, s{sT0}, s{sT1}")
            a(f"s_lshl_b32 s{sT0}, s{sT0}, 10")
            a(f"s_and_b32 s{sT1}, s{sTT}, 1")
            a(f"s_lshl_b32 s{sT2}, s{sTB}, 2")
            a(f"s_add_u32 s{sT2}, s{sT2}, s{sTT}")
            a(f"s_lshl_b32 s{sT2}, s{sT2}, 2")
            for q in range(2):
                a(f"v_lshlrev_b32 v{E+4+2*q}, 16, v{E+q}")
                a(f"v_and_b32 v{E+5+2*q}, 0xffff0000, v{E+q}")
            a(f"s_cmp_eq_u32 s{sTYPE}, 0")
            a(f"s_cbranch_scc0 {L}_VST")
            a(f"v_lshl_add_u32 v{T[3]}, v{T[2]}, 9, v{T[3]}")
            a(f"s_lshl_b32 s{sT1}, s{sT1}, 8")
            a(f"s_add_u32 s{sT0}, s{sT0}, s{sT1}")
            a(f"s_add_u32 s{sT0}, s{sT0}, {WS_KF}")
            a(f"buffer_store_dwordx2 {r2(E)}, v{T[3]}, s[{sWS}:{sWS+3}], s{sT0} offen{ST}")
            a(f"v_mul_f32 v{E+8}, v{E+4}, v{E+4}")
            for k in range(1, 4): a(f"v_fmac_f32 v{E+8}, v{E+4+k}, v{E+4+k}")
            a(f"v_mov_b32 v{E+9}, v{E+8}")
            a(f"v_permlane32_swap_b32 v{E+8}, v{E+9}")
            a(f"v_add_f32 v{E+8}, v{E+8}, v{E+9}")
            a(f"v_mov_b32 v{E+9}, v{E+8}")
            a(f"v_permlane16_swap_b32 v{E+8}, v{E+9}")
            a(f"v_add_f32 v{E+8}, v{E+8}, v{E+9}")
            for sh in (1, 2, 4, 8):
                a(f"v_max_u32_dpp v{E+8}, v{E+8}, v{E+8} row_shr:{sh} row_mask:0xf bank_mask:0xf")
            a(f"v_readlane_b32 s{sT3}, v{E+8}, 15")
            a(f"v_mul_f32 v{DG}, {f32hex(-1.4426950408889634)}, v{DG}")
            a(f"v_exp_f32 v{DG}, v{DG}")
            a(f"v_add_f32 v{DG}, 1.0, v{DG}")
            a(f"v_rcp_f32 v{DG}, v{DG}")
            a(f"v_lshlrev_b32 v{T[4]}, 2, v{vLane}")
            a(f"s_lshl_b32 s{sT0}, s{sT2}, 4")
            a(f"s_add_u32 s{sT0}, s{sT0}, {WS_G}")
            a(f"s_add_u32 s{sT2}, s{sT2}, {WS_KMAX}")
            a("s_mov_b64 exec, 0xffff")
            a(f"buffer_store_dword v{DG}, v{T[4]}, s[{sWS}:{sWS+3}], s{sT0} offen{ST}")
            a(f"s_branch {L}_MX")
            a.label(L + "_VST")
            a(f"v_lshl_add_u32 v{T[3]}, v{T[2]}, 8, v{T[3]}")
            a(f"s_lshl_b32 s{sT1}, s{sT1}, 9")
            a(f"s_add_u32 s{sT0}, s{sT0}, s{sT1}")
            a(f"s_add_u32 s{sT1}, s{sT0}, {WS_VB}")
            a(f"s_add_u32 s{sT0}, s{sT0}, {WS_VF}")
            a(f"buffer_store_dwordx2 {r2(E)}, v{T[3]}, s[{sWS}:{sWS+3}], s{sT1} offen{ST}")
            for q in range(2):
                a(f"v_cvt_pkrtz_f16_f32 v{E+8+q}, v{E+4+2*q}, v{E+5+2*q}")
            a(f"buffer_store_dwordx2 {r2(E+8)}, v{T[3]}, s[{sWS}:{sWS+3}], s{sT0} offen{ST}")
            for q in range(4): a(f"v_and_b32 v{E+4+q}, 0x7fffffff, v{E+4+q}")
            a(f"v_max_u32 v{E+4}, v{E+4}, v{E+5}")
            a(f"v_max3_u32 v{E+4}, v{E+4}, v{E+6}, v{E+7}")
            a(f"v_mov_b32 v{E+5}, v{E+4}")
            a(f"v_permlane32_swap_b32 v{E+4}, v{E+5}")
            a(f"v_max_u32 v{E+4}, v{E+4}, v{E+5}")
            a(f"v_mov_b32 v{E+5}, v{E+4}")
            a(f"v_permlane16_swap_b32 v{E+4}, v{E+5}")
            a(f"v_max_u32 v{E+4}, v{E+4}, v{E+5}")
            for sh in (1, 2, 4, 8):
                a(f"v_max_u32_dpp v{E+4}, v{E+4}, v{E+4} row_shr:{sh} row_mask:0xf bank_mask:0xf")
            a(f"v_readlane_b32 s{sT3}, v{E+4}, 15")
            a(f"s_add_u32 s{sT2}, s{sT2}, {WS_VMAX}")
            a.label(L + "_MX")
            a("s_mov_b64 exec, 1")
            a(f"v_mov_b32 v{E+10}, s{sT3}")
            a(f"v_mov_b32 v{E+11}, 0")
            a(f"buffer_store_dword v{E+10}, v{E+11}, s[{sWS}:{sWS+3}], s{sT2} offen{ST}")
            a("s_mov_b64 exec, -1")
        return pre, work1, work2, post

    def w2_role():
        vR = 28; F = 32
        def pre():
            a(f"v_lshrrev_b32 v{T[0]}, 5, v{vLane}")
            a(f"v_bfe_u32 v{T[2]}, v{vLane}, 2, 2")
            a(f"v_lshl_add_u32 v{T[3]}, v{T[0]}, 2, v{T[2]}")
            a(f"v_lshlrev_b32 v{T[3]}, 6, v{T[3]}")
            a(f"v_bfe_u32 v{T[4]}, v{vLane}, 4, 1")
            a(f"v_lshl_add_u32 v{T[3]}, v{T[4]}, 5, v{T[3]}")
            a(f"v_and_b32 v{T[5]}, 3, v{vLane}")
            a(f"v_lshl_add_u32 v{T[3]}, v{T[5]}, 3, v{T[3]}")
            a(f"v_add_u32 v{vR}, {W2P}, v{T[3]}")
            a(f"s_lshl_b32 s{sT0}, s{sTB}, 3")
            a(f"s_add_u32 s{sT0}, s{sT0}, s{sCG}")
            a(f"s_and_b32 s{sT1}, s{sT0}, 15")
            a(f"s_mul_i32 s{sT1}, s{sT1}, 112")
            a(f"s_lshr_b32 s{sT0}, s{sT0}, 4")
            a(f"s_mul_i32 s{sT0}, s{sT0}, 7")
            a(f"s_add_u32 s{sT0}, s{sT0}, s{sT1}")
            a(f"s_lshl_b32 s{sT0}, s{sT0}, 10")
            a(f"s_add_u32 s{sM}, s{sT0}, {WS_W2F}")
            a(f"s_lshl_b32 s{sW2m}, s2, 13")
            a(f"s_add_u32 s{sW2m}, s{sW2m}, {WS_OF}")
            for r in range(4): a(f"v_mov_b32 v{F+8+r}, -1")
        def work(): pass
        def post():
            for i in range(8):
                a(f"buffer_store_dwordx4 {r4(F+8)}, v{vL16}, s[{sWS}:{sWS+3}], s{sW2m} offen offset:{(i%4)*1024}{ST}")
                if i == 3: a(f"s_add_u32 s{sW2m}, s{sW2m}, 4096")
            for i in range(7):
                for t in range(2):
                    a(f"ds_read_b64_tr_b16 {r2(F+12+4*i+2*t)}, v{vR} offset:{i*1024+t*512}")
            for i in range(7):
                a(f"s_waitcnt lgkmcnt({12-2*i})")
                a(f"buffer_store_dwordx4 {r4(F+12+4*i)}, v{vL16}, s[{sWS}:{sWS+3}], s{sM} offen{ST}")
                a(f"s_add_u32 s{sM}, s{sM}, 1024")
        return pre, work, work, post

    a(f"s_cmp_ge_u32 s{sW}, 6")
    a(f"s_cbranch_scc1 {P}L67")
    loader('C')
    a.label(f"{P}L67")
    a(f"s_cmp_eq_u32 s{sW}, 7")
    a(f"s_cbranch_scc1 {P}L7")
    loader('M')
    a.label(f"{P}L7")
    loader('W')
    a.label(f"{P}FIN")
    if not K1PM: ts_mark(a, MK[3])
    ts_end(a, 0, sWS, sW, MK)
    a("s_endpgm")
    a.label(f"{P}END")
    a("s_endpgm")
    return a

if __name__ == "__main__":
    for idx in range(896): assert (idx * 2341) >> 16 == idx // 28
    print("ok")
```

```python
import sys, os
sys.path.insert(0, os.path.dirname(os.path.abspath(__file__)))
from asmlib import Asm
import gen
from gen import *
from gen3 import VQ, map_wg, r4, r2, r16

class LQ:
    def __init__(self, a):
        self.a = a; self.q = []; self.done = 0
    def issue(self, tag, text):
        self.a(text); self.q.append(tag)
    def wait(self, tag):
        idx = max(i for i, t in enumerate(self.q) if t == tag)
        if idx < self.done: return
        n = len(self.q) - 1 - idx
        assert n <= 15, n
        self.a(f"s_waitcnt lgkmcnt({n})")
        self.done = idx + 1
    def wait_all(self):
        self.a("s_waitcnt lgkmcnt(0)")
        self.done = len(self.q)

L_K, L_V, L_ONES = 0, 65536, 131072
K2P_LDS = 163840
CS = 2048 + 64
F2 = 8 * CS
POS = [int(x) for x in os.environ.get("POS", "2,8,14,20").split(",")]
TBITS = 29.75 * 1024
PM = int(os.environ.get("PM", "0"))
LMIN_BITS = 0x43000000
POLL1 = os.environ.get("POLL1", "sc1")
FSH = int(os.environ.get("FSH", "4"))

def gen_k2p(name, mapmode='simple'):
    a = Asm()
    vq = VQ(a)
    lq = LQ(a)
    a.label(name)
    sWS, sOUT, sWO = 8, 12, 60
    sW, sTB, sHG, sT0, sT1, sCnt, sXB, sHD = 16, 17, 18, 19, 20, 21, 22, 23
    sA = [24, 25]; sB = [26, 27]
    sW3, sNS, sTS, sKM, sOff, sT2, sPoll, sKQ, sOf, sT3, sWoS, sVM, sRED = 28, 29, 30, 31, 32, 33, 34, 35, 36, 37, 38, 39, 42
    vLane, vRW, vV, vVi, vL16, vGF, vGT = 1, 2, 3, 4, 5, 6, 7
    T = list(range(8, 16))
    Q = 16; vWo = 20; vRR = 21
    KF, V0, V1 = 24, 28, 32
    Y = 36; Y2 = 44; cA, cM = 48, 49
    CB = 52; S = [68, 84]; O = 100; X1 = 116; ACC = 132; FB = 196; SP = 228
    def acc(i): return ACC + 16 * i
    W = f"s[{sWS}:{sWS+3}]"
    MK = [64, 66, 68, 70, 72, 74, 76, 78]

    a("s_cmp_ge_u32 s2, 256")
    a("s_cbranch_scc1 K2_END")
    ts_begin(a)
    a("s_load_dwordx2 s[4:5], s[0:1], 88")
    a("s_load_dwordx2 s[6:7], s[0:1], 72")
    a("s_load_dwordx2 s[44:45], s[0:1], 32")
    a(f"v_lshrrev_b32 v{T[0]}, 6, v0")
    a(f"v_and_b32 v{vLane}, 63, v0")
    a(f"v_readfirstlane_b32 s{sW}, v{T[0]}")
    map_wg(a, 2, sTB, sHG, sT0, mapmode)
    a(f"v_lshlrev_b32 v{vL16}, 4, v{vLane}")
    a(f"s_lshr_b32 s{sXB}, s{sW}, 2")
    a(f"s_and_b32 s{sW3}, s{sW}, 3")
    a(f"s_and_b32 s{sTS}, s{sW}, 1")
    a(f"s_bfe_u32 s{sNS}, s{sW}, 0x10001")
    a(f"s_lshr_b32 s{sKQ}, s{sW}, 1")
    a(f"s_lshl_b32 s{sHD}, s{sHG}, 2")
    a(f"s_add_u32 s{sHD}, s{sHD}, s{sW3}")
    a(f"s_lshl_b32 s{sT0}, s{sW}, 10")
    a(f"s_mov_b32 m0, s{sT0}")
    a(f"s_add_u32 s{sOff}, s{sT0}, {WS_KF}")
    a(f"s_lshl_b32 s{sT2}, s{sTB}, 1")
    a(f"s_add_u32 s{sT2}, s{sT2}, s{sXB}")
    a(f"s_lshl_b32 s{sT2}, s{sT2}, 5")
    a(f"s_add_u32 s{sT2}, s{sT2}, s{sHD}")
    a(f"s_lshl_b32 s{sT2}, s{sT2}, 10")
    a(f"s_add_u32 s{sT3}, s{sT2}, {WS_OF}")
    a(f"s_mov_b32 s{sKM}, {WS_KMAX}")
    a(f"s_mul_i32 s{sT0}, s{sW}, 14")
    a(f"s_lshl_b32 s{sT1}, s{sHG}, 1")
    a(f"s_add_u32 s{sT1}, s{sT1}, s{sNS}")
    a(f"s_mul_i32 s{sA[0]}, s{sT1}, 112")
    a(f"s_xor_b32 s{sT1}, s{sT1}, 1")
    a(f"s_mul_i32 s{sA[1]}, s{sT1}, 112")
    a(f"s_lshl_b32 s{sT1}, s{sTB}, 1")
    a(f"s_add_u32 s{sT1}, s{sT1}, s{sTS}")
    a(f"s_mul_i32 s{sB[0]}, s{sT1}, 112")
    a(f"s_xor_b32 s{sT1}, s{sT1}, 1")
    a(f"s_mul_i32 s{sB[1]}, s{sT1}, 112")
    for s_, base in ((sA[0], WS_W2F), (sA[1], WS_W2F), (sB[0], WS_HF), (sB[1], WS_HF)):
        a(f"s_add_u32 s{s_}, s{s_}, s{sT0}")
        a(f"s_lshl_b32 s{s_}, s{s_}, 10")
        a(f"s_add_u32 s{s_}, s{s_}, {base}")
    a("s_waitcnt lgkmcnt(0)")
    if PM == 1: ts_mark(a, MK[0])
    srd(a, sWS, 4, WS_SIZE)
    dcount = [0]
    def kv_dma():
        j = dcount[0]; dcount[0] += 1
        r, kv = j >> 1, j & 1
        vq.issue(f"D{r}{'KV'[kv]}", f"buffer_load_dwordx4 v{vL16}, {W}, s{sOff} offen lds")
        if j < 15:
            d = 65536 if kv == 0 else -57344
            if d > 0:
                a(f"s_add_u32 m0, m0, {d}"); a(f"s_add_u32 s{sOff}, s{sOff}, {d}")
            else:
                a(f"s_sub_u32 m0, m0, {-d}"); a(f"s_sub_u32 s{sOff}, s{sOff}, {-d}")
    fstep = {}
    def ffn_load(which, st):
        buf = FB + 16 * (st & 1)
        reg = {0: buf, 3: buf + 4, 1: buf + 8, 2: buf + 12}[which]
        s_ = {0: sA[0], 3: sA[1], 1: sB[0], 2: sB[1]}[which]
        base = fstep.get(which, 0)
        if st - base >= 4:
            a(f"s_add_u32 s{s_}, s{s_}, {4096}")
            base += 4; fstep[which] = base
        vq.issue(f"F{st}.{which}", f"buffer_load_dwordx4 {r4(reg)}, v{vL16}, {W}, s{s_} offen offset:{(st-base)*1024}")
    kv_dma()
    vq.issue("Q", f"buffer_load_dwordx4 {r4(Q)}, v{vL16}, {W}, s{sT2} offen")
    vq.issue("KM", f"buffer_load_dwordx4 {r4(S[1])}, v{vL16}, {W}, s{sKM} offen")
    kv_dma()
    for wh in (0, 1, 2, 3): ffn_load(wh, 0)
    srd(a, sOUT, 6, 0x200000)
    srd(a, sWO, 44, 0x80000)
    a(f"v_and_b32 v{T[0]}, 31, v{vLane}")
    a(f"v_lshrrev_b32 v{T[1]}, 5, v{vLane}")
    for r in range(4): a(f"v_mov_b32 v{S[0]+r}, 0x3c003c00")
    a(f"v_lshlrev_b32 v{T[2]}, 4, v0")
    a(f"v_add_u32 v{T[2]}, {L_ONES}, v{T[2]}")
    lq.issue("ONES", f"ds_write_b128 v{T[2]}, {r4(S[0])}")
    a(f"v_lshlrev_b32 v{T[2]}, 8, v{T[1]}")
    a(f"v_lshl_add_u32 v{T[2]}, v{T[0]}, 4, v{T[2]}")
    a(f"v_add_u32 v{T[2]}, {L_V}, v{T[2]}")
    a(f"v_subrev_u32 v{T[3]}, 20, v{T[0]}")
    a(f"v_cmp_gt_u32 vcc, 8, v{T[3]}")
    a(f"v_mov_b32 v{T[3]}, {L_ONES}")
    a(f"v_mov_b32 v{T[4]}, {L_ONES + 64}")
    a(f"v_cndmask_b32 v{T[3]}, v{T[3]}, v{T[4]}, vcc")
    a(f"v_cmp_gt_u32 vcc, 16, v{T[0]}")
    a(f"v_cndmask_b32 v{vV}, v{T[3]}, v{T[2]}, vcc")
    a(f"v_mov_b32 v{T[3]}, 8192")
    a(f"v_cndmask_b32 v{vVi}, 0, v{T[3]}, vcc")
    a(f"v_lshlrev_b32 v{vGF}, 2, v{T[0]}")
    for r in range(16): a(f"v_mov_b32 v{O+r}, 0")
    for r in range(64): a(f"v_mov_b32 v{ACC+r}, 0")
    a(f"v_mov_b32 v{cA}, 0x02000200")
    a(f"v_mov_b32 v{cM}, 0x39a839a8")
    def red_slot(dst, wreg):
        a(f"s_lshl_b32 s{dst}, s{wreg}, 13")
        a(f"s_add_u32 s{dst}, s{dst}, 32768")
        a(f"s_cmp_ge_u32 s{wreg}, 3")
        a(f"s_cselect_b32 s{sT1}, 40960, 0")
        a(f"s_add_u32 s{dst}, s{dst}, s{sT1}")
        a(f"s_cmp_ge_u32 s{wreg}, 6")
        a(f"s_cselect_b32 s{sT1}, 16384, 0")
        a(f"s_add_u32 s{dst}, s{dst}, s{sT1}")
    red_slot(sT0, sW)
    a(f"v_add_u32 v{vRW}, s{sT0}, v{vL16}")
    a(f"s_xor_b32 s{sRED}, s{sW}, 1")
    red_slot(sT0, sRED)
    a(f"v_add_u32 v{vRR}, s{sT0}, v{vL16}")
    a(f"s_lshl_b32 s{sT1}, s{sTB}, 1")
    a(f"s_add_u32 s{sT1}, s{sT1}, s{sTS}")
    a(f"s_lshl_b32 s{sT1}, s{sT1}, 5")
    a(f"s_lshl_b32 s{sT0}, s{sKQ}, 3")
    a(f"s_add_u32 s{sT1}, s{sT1}, s{sT0}")
    a(f"s_lshl_b32 s{sT1}, s{sT1}, 10")
    a(f"s_add_u32 s{sOf}, s{sT1}, {WS_OF}")
    a(f"s_lshl_b32 s{sT0}, s{sW}, 16")
    a(f"s_lshl_b32 s{sT1}, s{sHG}, 7")
    a(f"s_add_u32 s{sWoS}, s{sT0}, s{sT1}")
    a(f"v_lshrrev_b32 v{T[6]}, 3, v{vLane}")
    a(f"v_and_b32 v{vWo}, 7, v{vLane}")
    a(f"v_bfe_u32 v{T[5]}, v{T[6]}, 1, 1")
    a(f"v_lshlrev_b32 v{T[5]}, 2, v{T[5]}")
    a(f"v_xor_b32 v{vWo}, v{vWo}, v{T[5]}")
    a(f"v_lshlrev_b32 v{vWo}, 4, v{vWo}")
    a(f"v_lshl_add_u32 v{vWo}, v{T[6]}, 10, v{vWo}")
    if PM == 1: ts_mark(a, MK[1])
    vq.wait("KM")
    km = S[1]
    a(f"v_max_u32 v{km}, v{km}, v{km+1}")
    a(f"v_max3_u32 v{km}, v{km}, v{km+2}, v{km+3}")
    for sh in (1, 2, 4, 8):
        a(f"v_max_u32_dpp v{km}, v{km}, v{km} row_shr:{sh} row_mask:0xf bank_mask:0xf")
    a(f"v_max_u32_dpp v{km}, v{km}, v{km} row_bcast:15 row_mask:0xa bank_mask:0xf")
    a(f"v_readlane_b32 s{sKM}, v{km}, 31")
    a(f"v_readlane_b32 s{sVM}, v{km}, 63")
    a(f"v_mov_b32 v{T[2]}, 0")
    for r in range(4):
        a(f"v_dot2_f32_bf16 v{T[2]}, v{Q+r}, v{Q+r}, v{T[2]}")
    a(f"v_mov_b32 v{T[5]}, v{T[2]}")
    a(f"v_permlane32_swap_b32 v{T[2]}, v{T[5]}")
    a(f"v_add_f32 v{T[2]}, v{T[2]}, v{T[5]}")
    a(f"v_mul_f32 v{T[2]}, s{sKM}, v{T[2]}")
    a(f"v_sqrt_f32 v{T[2]}, v{T[2]}")
    a(f"s_sub_u32 s{sT0}, s{sVM}, 0x3c800000")
    a(f"s_cmp_le_u32 s{sT0}, {0x47000000 - 0x3c800000}")
    a(f"s_cselect_b32 s{sT0}, 0, 0x7f800000")
    a(f"v_add_f32 v{T[2]}, s{sT0}, v{T[2]}")
    a(f"v_sub_f32 v{CB}, {f32hex(TBITS / 65535.0)}, v{T[2]}")
    for r in range(1, 16): a(f"v_mov_b32 v{CB+r}, v{CB}")
    vq.wait("D0V")
    lq.wait_all()
    a("s_barrier")
    if PM != 2: ts_mark(a, MK[2] if PM else MK[0])
    lq.issue("K0", f"ds_read_b128 {r4(KF)}, v{vL16}")
    lq.issue("K1", f"ds_read_b128 {r4(V1)}, v{vL16} offset:1024")
    lq.issue("VA0", f"ds_read_b128 {r4(V0)}, v{vV}")

    def valu3(Sx):
        seq = []
        for k in range(10):
            if k < 8: seq.append(f"v_cvt_pknorm_u16_f32 v{Y+k}, v{Sx+2*k}, v{Sx+2*k+1}")
            if 0 <= k - 1 < 8: seq.append(f"v_add_u32 v{Y2+(k-1)%4}, v{cA}, v{Y+k-1}")
            if 0 <= k - 2 < 8: seq.append(f"v_pk_fma_f16 v{Y+k-2}, v{Y2+(k-2)%4}, v{cM}, v{Y+k-2}")
        return seq

    aux = {}
    def at(t, pos, fn): aux.setdefault(t, {}).setdefault(pos, []).append(fn)
    at(0, 0, kv_dma); at(0, 5, kv_dma)
    for i, t in enumerate((1, 2, 3, 4)): at(t, 5, kv_dma)
    for t in (8, 10, 12, 15): at(t, 5, kv_dma)
    for t in (24, 26, 28, 31): at(t, 5, kv_dma)
    def g_loads():
        a(f"s_lshl_b32 s{sT0}, s{sTB}, 8")
        a(f"s_add_u32 s{sT0}, s{sT0}, {WS_G}")
        a(f"s_lshl_b32 s{sT1}, s{sTS}, 7")
        a(f"s_add_u32 s{sT1}, s{sT1}, s{sT0}")
        vq.issue("G", f"buffer_load_dword v{vGT}, v{vGF}, {W}, s{sT1} offen")
        a(f"s_lshl_b32 s{sT1}, s{sXB}, 7")
        a(f"s_add_u32 s{sT1}, s{sT1}, s{sT0}")
        vq.issue("G", f"buffer_load_dword v{vGF}, v{vGF}, {W}, s{sT1} offen")
    at(20, 5, g_loads)
    wo_n = [0]
    def wo_dma():
        i = wo_n[0]; wo_n[0] += 1
        if i == 0:
            a(f"s_lshl_b32 s{sT0}, s{sNS}, 14")
            a(f"s_lshl_b32 s{sT1}, s{sXB}, 16")
            a(f"s_add_u32 s{sT0}, s{sT0}, s{sT1}")
            a(f"s_lshl_b32 s{sT1}, s{sTS}, 13")
            a(f"s_add_u32 m0, s{sT0}, s{sT1}")
        vq.issue("WO", f"buffer_load_dwordx4 v{vWo}, s[{sWO}:{sWO+3}], s{sWoS} offen lds")
        if i < 7:
            a(f"s_add_u32 m0, m0, 1024")
            a(f"s_add_u32 s{sWoS}, s{sWoS}, 8192")
    for t in range(47, 55): at(t, 5, wo_dma)
    bars = {6: "D1V", 14: "D3V", 30: "D5V", 46: "D7V", 58: None}

    def unit(t):
        x = t & 1; y = 1 - x
        Sx, Sy = S[x], S[y]
        tl = t & 7
        seq = valu3(Sx)
        if t in bars:
            if bars[t]: vq.wait(bars[t])
            a("s_barrier")
        def slot0():
            if t > 0:
                lq.wait(f"VB{t-1}")
                a(f"v_mfma_f32_32x32x16_f16 {r16(O)}, {r4(V1)}, {r4(Y+4)}, {r16(O)}")
                lq.issue(f"VB{t}", f"ds_read_b128 {r4(V1)}, v{vV} offset:{tl*1024+512}")
        def slot1():
            if t == 0:
                lq.wait("K1")
                a(f"v_mfma_f32_32x32x16_bf16 {r16(Sy)}, {r4(V1)}, {r4(Q)}, {r16(CB)}")
                lq.issue("VB0", f"ds_read_b128 {r4(V1)}, v{vV} offset:512")
                lq.issue("K2", f"ds_read_b128 {r4(KF)}, v{vL16} offset:2048")
            elif t < 63:
                lq.wait(f"K{t+1}")
                a(f"v_mfma_f32_32x32x16_bf16 {r16(Sy)}, {r4(KF)}, {r4(Q)}, {r16(CB)}")
                if t + 2 <= 63: lq.issue(f"K{t+2}", f"ds_read_b128 {r4(KF)}, v{vL16} offset:{(t+2)*1024}")
        def slot2():
            u = t - FSH
            if t < FSH:
                if t < 4: ffn_load(t, 1)
                return
            st, m = u >> 2, u & 3
            if st < 14:
                buf = FB + (st & 1) * 16
                A0, A1, B0, B1 = buf, buf + 4, buf + 8, buf + 12
                pre = st + 2 < 14
                if m == 0:
                    vq.wait(f"F{st}.1")
                    a(f"v_mfma_f32_32x32x16_bf16 {r16(acc(0))}, {r4(A0)}, {r4(B0)}, {r16(acc(0))}")
                elif m == 1:
                    vq.wait(f"F{st}.2")
                    a(f"v_mfma_f32_32x32x16_bf16 {r16(acc(2))}, {r4(A0)}, {r4(B1)}, {r16(acc(2))}")
                    if pre: ffn_load(0, st + 2)
                elif m == 2:
                    vq.wait(f"F{st}.3")
                    a(f"v_mfma_f32_32x32x16_bf16 {r16(acc(1))}, {r4(A1)}, {r4(B0)}, {r16(acc(1))}")
                    if pre: ffn_load(1, st + 2)
                else:
                    a(f"v_mfma_f32_32x32x16_bf16 {r16(acc(3))}, {r4(A1)}, {r4(B1)}, {r16(acc(3))}")
                    if pre:
                        ffn_load(2, st + 2); ffn_load(3, st + 2)
            else:
                k = u - 56
                nrem = 64 - FSH - 56
                per = (8 + nrem - 1) // nrem
                for qd in range(k * per, min(8, (k + 1) * per)):
                    i, rq = qd >> 2, qd & 3
                    lq.issue("RW", f"ds_write_b128 v{vRW}, {r4(acc(2+i)+4*rq)} offset:{i*4096+rq*1024}")
        def slot3():
            lq.wait(f"VA{t}")
            a(f"v_mfma_f32_32x32x16_f16 {r16(O)}, {r4(V0)}, {r4(Y)}, {r16(O)}")
            if t < 63:
                if (t + 1) & 7 == 0: a(f"v_add_u32 v{vV}, v{vVi}, v{vV}")
                lq.issue(f"VA{t+1}", f"ds_read_b128 {r4(V0)}, v{vV} offset:{((t+1)&7)*1024}")
        slots = [slot0, slot1, slot2, slot3]
        mi = 0
        for i, s_ in enumerate(seq):
            for fn in aux.get(t, {}).get(i, []): fn()
            while mi < 4 and POS[mi] == i:
                slots[mi](); mi += 1
            a(s_)
        while mi < 4:
            slots[mi](); mi += 1

    lq.wait("K0")
    a(f"v_mfma_f32_32x32x16_bf16 {r16(S[0])}, {r4(KF)}, {r4(Q)}, {r16(CB)}")
    for t in range(64):
        unit(t)
        if t == 7 and PM != 2: ts_mark(a, MK[3] if PM else MK[1])
        if t == 55 and PM != 2: ts_mark(a, MK[4] if PM else MK[2])
    ts_mark(a, MK[0] if PM == 2 else MK[5] if PM else MK[3])
    lq.wait("VB63")
    a(f"v_mfma_f32_32x32x16_f16 {r16(O)}, {r4(V1)}, {r4(Y+4)}, {r16(O)}")
    a(f"v_lshrrev_b32 v{T[0]}, 5, v{vLane}")
    a(f"v_bfe_u32 v{T[1]}, v{vLane}, 2, 2")
    a(f"v_lshl_add_u32 v{T[0]}, v{T[0]}, 2, v{T[1]}")
    a(f"v_lshlrev_b32 v{T[0]}, 7, v{T[0]}")
    a(f"v_bfe_u32 v{T[1]}, v{vLane}, 3, 1")
    a(f"v_lshl_add_u32 v{T[0]}, v{T[1]}, 6, v{T[0]}")
    a(f"v_bfe_u32 v{T[1]}, v{vLane}, 4, 1")
    a(f"v_lshl_add_u32 v{T[0]}, v{T[1]}, 5, v{T[0]}")
    a(f"v_and_b32 v{T[1]}, 3, v{vLane}")
    a(f"v_lshl_add_u32 v{T[0]}, v{T[1]}, 3, v{T[0]}")
    a(f"s_lshl_b32 s{sT0}, s{sNS}, 14")
    a(f"s_lshl_b32 s{sT1}, s{sXB}, 16")
    a(f"s_add_u32 s{sT0}, s{sT0}, s{sT1}")
    a(f"s_lshl_b32 s{sT1}, s{sNS}, 6")
    a(f"v_add_u32 v{T[0]}, s{sT0}, v{T[0]}")
    a(f"v_xor_b32 v{T[0]}, s{sT1}, v{T[0]}")
    a(f"v_xor_b32 v{T[1]}, 64, v{T[0]}")
    vq.wait("WO")
    a(f"v_mov_b32 v{V1}, v{O+8}")
    a(f"v_subrev_u32 v{T[2]}, {LMIN_BITS}, v{V1}")
    a(f"v_cmp_gt_u32 vcc, {0x7f800000 - LMIN_BITS}, v{T[2]}")
    a("s_cmp_eq_u64 vcc, -1")
    a("s_cbranch_scc0 K2_SLOW")
    a.label("K2_NORM")
    a(f"v_rcp_f32 v{V1}, v{V1}")
    a(f"v_mul_f32 v{V1}, v{V1}, v{vGF}")
    for r in range(8): a(f"v_mul_f32 v{O+r}, v{O+r}, v{V1}")
    for r in range(4): a(f"v_cvt_pk_bf16_f32 v{Y+r}, v{O+2*r}, v{O+2*r+1}")
    a(f"buffer_store_dwordx4 {r4(Y)}, v{vL16}, {W}, s{sT3} offen sc1")
    if not PM: ts_mark(a, MK[4])
    if PM == 2: ts_mark(a, MK[1])
    OFR = [FB + 4 * i for i in range(8)]
    def of_loads(lo, hi, pol="sc1"):
        for i in range(lo, hi):
            a(f"buffer_load_dwordx4 {r4(OFR[i])}, v{vL16}, {W}, s{sOf if i < 4 else sT2} offen offset:{(i%4)*1024} {pol}")
    a(f"s_add_u32 s{sT2}, s{sOf}, 4096")
    EARLY = int(os.environ.get("EARLY", "1"))
    if EARLY: of_loads(0, 8, POLL1)
    if PM == 2: ts_mark(a, MK[2])
    a("s_waitcnt lgkmcnt(0)")
    a("s_barrier")
    if PM == 2: ts_mark(a, MK[3])
    for i in range(2):
        for rq in range(4):
            a(f"ds_read_b128 {r4(S[0]+16*i+4*rq)}, v{vRR} offset:{i*4096+rq*1024}")
    WOA = [acc(2) + 4 * i for i in range(8)]
    WOB = [X1 + 4 * i for i in range(4)] + [SP + 4 * i for i in range(4)]
    a(f"v_sub_f32 v{vGT}, 1.0, v{vGT}")
    for h in range(8):
        for t in range(2):
            a(f"ds_read_b64_tr_b16 {r2(WOA[h]+2*t)}, v{T[0]} offset:{h*2048+t*1024}")
        if h == 3:
            a("s_waitcnt lgkmcnt(8)")
            for r in range(32):
                a(f"v_add_f32 v{ACC+r}, v{ACC+r}, v{S[0]+r}")
    for h in range(8):
        for t in range(2):
            a(f"ds_read_b64_tr_b16 {r2(WOB[h]+2*t)}, v{T[1]} offset:{h*2048+t*1024}")
    for r in range(32):
        a(f"v_mul_f32 v{ACC+r}, v{ACC+r}, v{vGT}")
    if PM == 2: ts_mark(a, MK[4])
    a(f"s_mul_i32 s{sT0}, s{sKQ}, {F2}")
    a(f"s_lshl_b32 s{sT1}, s{sTS}, 10")
    a(f"s_add_u32 s{sT0}, s{sT0}, s{sT1}")
    a(f"s_mul_i32 s{sT1}, s{sNS}, {4*CS}")
    a(f"s_add_u32 s{sT1}, s{sT1}, s{sT0}")
    a(f"v_add_u32 v{T[2]}, s{sT1}, v{vL16}")
    a(f"s_xor_b32 s{sT1}, s{sNS}, 1")
    a(f"s_mul_i32 s{sT1}, s{sT1}, {4*CS}")
    a(f"s_add_u32 s{sT1}, s{sT1}, s{sT0}")
    a(f"v_add_u32 v{T[3]}, s{sT1}, v{vL16}")
    a(f"v_and_b32 v{T[4]}, 7, v{vLane}")
    a(f"v_lshrrev_b32 v{T[5]}, 3, v{vLane}")
    a(f"v_mul_u32_u24 v{T[6]}, {CS}, v{T[4]}")
    a(f"v_lshl_add_u32 v{T[6]}, v{T[5]}, 4, v{T[6]}")
    a(f"s_lshl_b32 s{sT0}, s{sXB}, 10")
    a(f"s_lshl_b32 s{sT1}, s{sW3}, 7")
    a(f"s_add_u32 s{sT0}, s{sT0}, s{sT1}")
    a(f"v_add_u32 v{T[6]}, s{sT0}, v{T[6]}")
    a(f"v_add_u32 v{T[7]}, {2*F2}, v{T[6]}")
    a(f"v_lshlrev_b32 v{T[5]}, 10, v{T[5]}")
    a(f"v_lshl_add_u32 v{T[5]}, v{T[4]}, 4, v{T[5]}")
    a(f"s_lshl_b32 s{sT0}, s{sTB}, 16")
    a(f"s_lshl_b32 s{sT1}, s{sW}, 13")
    a(f"s_add_u32 s{sT0}, s{sT0}, s{sT1}")
    a(f"s_lshl_b32 s{sT1}, s{sHG}, 7")
    a(f"s_add_u32 s{sT3}, s{sT0}, s{sT1}")
    a("s_waitcnt lgkmcnt(0)")
    a("s_barrier")
    if PM in (0, 2): ts_mark(a, MK[5])
    else: ts_mark(a, MK[6])
    if not EARLY: of_loads(0, 8, POLL1)
    for g in range(4):
        a(f"s_mov_b32 s{sPoll}, 4096")
        a(f"s_waitcnt vmcnt({6 - 2*g})")
        a.label(f"K2_POLL{g}")
        rr = [OFR[i] + k for i in (2 * g, 2 * g + 1) for k in range(4)]
        a(f"v_max_u32 v{T[0]}, v{rr[0]}, v{rr[1]}")
        for k in range(2, 8, 2):
            a(f"v_max3_u32 v{T[0]}, v{rr[k]}, v{rr[k+1]}, v{T[0]}")
        a(f"v_cmp_eq_u32 vcc, -1, v{T[0]}")
        a(f"s_cbranch_vccz K2_GO{g}")
        a(f"s_sub_u32 s{sPoll}, s{sPoll}, 1")
        a(f"s_cmp_eq_u32 s{sPoll}, 0")
        a(f"s_cbranch_scc1 K2_GO{g}")
        of_loads(2 * g, 2 * g + 2)
        a("s_waitcnt vmcnt(0)")
        a(f"s_branch K2_POLL{g}")
        a.label(f"K2_GO{g}")
        for i in (2 * g, 2 * g + 1):
            a(f"v_mfma_f32_32x32x16_bf16 {r16(acc(0))}, {r4(WOA[i])}, {r4(OFR[i])}, {r16(acc(0))}")
            a(f"v_mfma_f32_32x32x16_bf16 {r16(acc(1))}, {r4(WOB[i])}, {r4(OFR[i])}, {r16(acc(1))}")
    if PM in (0, 2): ts_mark(a, MK[6])
    for i in range(2):
        for rq in range(4):
            a(f"ds_write_b128 v{T[2+i]}, {r4(acc(i)+4*rq)} offset:{rq*CS}")
    a("s_waitcnt lgkmcnt(0)")
    a("s_barrier")
    R = S[0]
    for kq in range(4):
        base = T[6] if kq < 2 else T[7]
        for h in range(2):
            a(f"ds_read_b128 {r4(R+(kq*2+h)*4)}, v{base} offset:{(kq&1)*F2+h*512}")
    a("s_waitcnt lgkmcnt(4)")
    for k in range(8): a(f"v_add_f32 v{R+k}, v{R+k}, v{R+8+k}")
    a("s_waitcnt lgkmcnt(0)")
    for k in range(8): a(f"v_add_f32 v{R+16+k}, v{R+16+k}, v{R+24+k}")
    for k in range(8): a(f"v_add_f32 v{R+k}, v{R+k}, v{R+16+k}")
    for k in range(4): a(f"v_cvt_pk_bf16_f32 v{Y+k}, v{R+2*k}, v{R+2*k+1}")
    a(f"buffer_store_dwordx4 {r4(Y)}, v{T[5]}, s[{sOUT}:{sOUT+3}], s{sT3} offen")
    ts_mark(a, MK[7])
    if TS: a("s_waitcnt lgkmcnt(0)")
    ts_end(a, 1, sWS, sW, MK[:4])
    if TS:
        a("s_mov_b64 exec, -1")
        for i in range(4): a(f"v_mov_b32 v{i}, s{MK[4+i]}")
        a(f"s_add_u32 s4, s4, 0x20000")
        a("s_mov_b64 exec, 1")
        a(f"buffer_store_dwordx4 v[0:3], v8, s[{sWS}:{sWS+3}], s4 offen offset:16")
    a("s_endpgm")

    a.label("K2_SLOW")
    M = T[2]
    CI = 65535.0 / 1024.0
    a(f"v_mov_b32 v{M}, 0xff800000")
    a(f"s_mov_b32 s{sT0}, {WS_KF}")
    a(f"s_mov_b32 s{sCnt}, 64")
    a.label("K2_SL1")
    a(f"buffer_load_dwordx4 {r4(KF)}, v{vL16}, {W}, s{sT0} offen")
    a(f"s_add_u32 s{sT0}, s{sT0}, 1024")
    a("s_waitcnt vmcnt(0)")
    a(f"v_mfma_f32_32x32x16_bf16 {r16(S[0])}, {r4(KF)}, {r4(Q)}, 0")
    for r in range(0, 16, 2):
        a(f"v_max3_f32 v{M}, v{S[0]+r}, v{S[0]+r+1}, v{M}")
    a(f"s_sub_u32 s{sCnt}, s{sCnt}, 1")
    a(f"s_cmp_lg_u32 s{sCnt}, 0")
    a("s_cbranch_scc1 K2_SL1")
    a(f"v_mov_b32 v{T[3]}, v{M}")
    a(f"v_permlane32_swap_b32 v{M}, v{T[3]}")
    a(f"v_max_f32 v{M}, v{M}, v{T[3]}")
    a(f"v_mul_f32 v{M}, {f32hex(-CI)}, v{M}")
    a(f"v_mov_b32 v{T[3]}, {f32hex(CI)}")
    a(f"v_and_b32 v{T[4]}, 15, v{vLane}")
    a(f"v_lshlrev_b32 v{T[4]}, 4, v{T[4]}")
    a(f"v_lshrrev_b32 v{T[5]}, 5, v{vLane}")
    a(f"v_lshl_add_u32 v{T[4]}, v{T[5]}, 8, v{T[4]}")
    a(f"v_and_b32 v{T[5]}, 16, v{vLane}")
    a(f"v_cmp_eq_u32 s[40:41], 0, v{T[5]}")
    a(f"v_mov_b32 v{T[5]}, 0x3f803f80")
    for r in range(16): a(f"v_mov_b32 v{O+r}, 0")
    a(f"s_mov_b32 s{sT0}, {WS_KF}")
    a(f"s_mov_b32 s{sT1}, {WS_VB}")
    a(f"s_mov_b32 s{sCnt}, 64")
    a.label("K2_SL2")
    a(f"buffer_load_dwordx4 {r4(KF)}, v{vL16}, {W}, s{sT0} offen")
    a(f"buffer_load_dwordx4 {r4(V0)}, v{T[4]}, {W}, s{sT1} offen")
    a(f"buffer_load_dwordx4 {r4(S[1])}, v{T[4]}, {W}, s{sT1} offen offset:512")
    a(f"s_add_u32 s{sT0}, s{sT0}, 1024")
    a(f"s_add_u32 s{sT1}, s{sT1}, 1024")
    a("s_waitcnt vmcnt(0)")
    a(f"v_mfma_f32_32x32x16_bf16 {r16(S[0])}, {r4(KF)}, {r4(Q)}, 0")
    for r in range(4):
        a(f"v_cndmask_b32 v{V0+r}, v{T[5]}, v{V0+r}, s[40:41]")
        a(f"v_cndmask_b32 v{S[1]+r}, v{T[5]}, v{S[1]+r}, s[40:41]")
    for r in range(16):
        a(f"v_fma_f32 v{S[0]+r}, v{S[0]+r}, v{T[3]}, v{M}")
        a(f"v_exp_f32 v{S[0]+r}, v{S[0]+r}")
    for k in range(8):
        a(f"v_cvt_pk_bf16_f32 v{Y+k}, v{S[0]+2*k}, v{S[0]+2*k+1}")
    a(f"v_mfma_f32_32x32x16_bf16 {r16(O)}, {r4(V0)}, {r4(Y)}, {r16(O)}")
    a(f"v_mfma_f32_32x32x16_bf16 {r16(O)}, {r4(S[1])}, {r4(Y+4)}, {r16(O)}")
    a(f"s_sub_u32 s{sCnt}, s{sCnt}, 1")
    a(f"s_cmp_lg_u32 s{sCnt}, 0")
    a("s_cbranch_scc1 K2_SL2")
    a(f"v_mov_b32 v{V1}, v{O+8}")
    a("s_branch K2_NORM")
    a.label("K2_END")
    a("s_endpgm")
    return a
```

```python
import sys, os
sys.path.insert(0, os.path.dirname(os.path.abspath(__file__)))
from asmlib import Asm
import gen
from gen import *
from gen3 import VQ, map_wg, r4, r2, r16

class LQ:
    def __init__(self, a):
        self.a = a; self.q = []; self.done = 0
    def issue(self, tag, text):
        self.a(text); self.q.append(tag)
    def wait(self, tag):
        idx = max(i for i, t in enumerate(self.q) if t == tag)
        if idx < self.done: return
        n = len(self.q) - 1 - idx
        assert n <= 15, n
        self.a(f"s_waitcnt lgkmcnt({n})")
        self.done = idx + 1
    def wait_all(self):
        self.a("s_waitcnt lgkmcnt(0)")
        self.done = len(self.q)

L_K, L_V, L_ONES = 0, 65536, 131072
K2P_LDS = 163840
CS = 2048 + 64
F2 = 8 * CS
POS = [int(x) for x in os.environ.get("POS", "2,8,14,20").split(",")]
TBITS = 29.75 * 1024
PM = int(os.environ.get("PM", "0"))
LMIN_BITS = 0x43000000
POLL1 = os.environ.get("POLL1", "sc1")
ORD = [int(x) for x in os.environ.get("ORD", "0,1,2,3").split(",")]
ZROW = int(os.environ.get("ZROW", "1"))
KILL = os.environ.get("KILL", "").split(",")
PRIO = int(os.environ.get("PRIO", "0"))
NOBAR = int(os.environ.get("NOBAR", "0"))
FSH = int(os.environ.get("FSH", "4"))

def gen_k2p(name, mapmode='simple'):
    a = Asm()
    vq = VQ(a)
    lq = LQ(a)
    a.label(name)
    sWS, sOUT, sWO = 8, 12, 60
    sW, sTB, sHG, sT0, sT1, sCnt, sXB, sHD = 16, 17, 18, 19, 20, 21, 22, 23
    sA = [24, 25]; sB = [26, 27]
    sW3, sNS, sTS, sKM, sOff, sT2, sPoll, sKQ, sOf, sT3, sWoS, sVM, sRED = 28, 29, 30, 31, 32, 33, 34, 35, 36, 37, 38, 39, 42
    vLane, vRW, vV, vVi, vL16, vGF, vGT = 1, 2, 3, 4, 5, 6, 7
    T = list(range(8, 16))
    Q = 16; vWo = 20; vRR = 21
    KF, V0, V1 = 24, 28, 32
    Y = 36; Y2 = 44; cA, cM = 48, 49
    CB = 52; S = [68, 84]; O = 100; X1 = 116; ACC = 132; FB = 196; SP = 228
    def acc(i): return ACC + 16 * i
    W = f"s[{sWS}:{sWS+3}]"
    MK = [64, 66, 68, 70, 72, 74, 76, 78]

    a("s_cmp_ge_u32 s2, 256")
    a("s_cbranch_scc1 K2_END")
    ts_begin(a)
    a("s_load_dwordx2 s[4:5], s[0:1], 88")
    a("s_load_dwordx2 s[6:7], s[0:1], 72")
    a("s_load_dwordx2 s[44:45], s[0:1], 32")
    a(f"v_lshrrev_b32 v{T[0]}, 6, v0")
    a(f"v_and_b32 v{vLane}, 63, v0")
    a(f"v_readfirstlane_b32 s{sW}, v{T[0]}")
    map_wg(a, 2, sTB, sHG, sT0, mapmode)
    a(f"v_lshlrev_b32 v{vL16}, 4, v{vLane}")
    a(f"s_lshr_b32 s{sXB}, s{sW}, 2")
    a(f"s_and_b32 s{sW3}, s{sW}, 3")
    a(f"s_and_b32 s{sTS}, s{sW}, 1")
    a(f"s_bfe_u32 s{sNS}, s{sW}, 0x10001")
    a(f"s_lshr_b32 s{sKQ}, s{sW}, 1")
    a(f"s_lshl_b32 s{sHD}, s{sHG}, 2")
    a(f"s_add_u32 s{sHD}, s{sHD}, s{sW3}")
    a(f"s_lshl_b32 s{sT0}, s{sW}, 10")
    a(f"s_mov_b32 m0, s{sT0}")
    a(f"s_add_u32 s{sOff}, s{sT0}, {WS_KF}")
    a(f"s_lshl_b32 s{sT2}, s{sTB}, 1")
    a(f"s_add_u32 s{sT2}, s{sT2}, s{sXB}")
    a(f"s_lshl_b32 s{sT2}, s{sT2}, 5")
    a(f"s_add_u32 s{sT2}, s{sT2}, s{sHD}")
    a(f"s_lshl_b32 s{sT2}, s{sT2}, 10")
    a(f"s_add_u32 s{sT3}, s{sT2}, {WS_OF}")
    a(f"s_mov_b32 s{sKM}, {WS_KMAX}")
    a(f"s_mul_i32 s{sT0}, s{sW}, 14")
    a(f"s_lshl_b32 s{sT1}, s{sHG}, 1")
    a(f"s_add_u32 s{sT1}, s{sT1}, s{sNS}")
    a(f"s_mul_i32 s{sA[0]}, s{sT1}, 112")
    a(f"s_xor_b32 s{sT1}, s{sT1}, 1")
    a(f"s_mul_i32 s{sA[1]}, s{sT1}, 112")
    a(f"s_lshl_b32 s{sT1}, s{sTB}, 1")
    a(f"s_add_u32 s{sT1}, s{sT1}, s{sTS}")
    a(f"s_mul_i32 s{sB[0]}, s{sT1}, 112")
    a(f"s_xor_b32 s{sT1}, s{sT1}, 1")
    a(f"s_mul_i32 s{sB[1]}, s{sT1}, 112")
    for s_, base in ((sA[0], WS_W2F), (sA[1], WS_W2F), (sB[0], WS_HF), (sB[1], WS_HF)):
        a(f"s_add_u32 s{s_}, s{s_}, s{sT0}")
        a(f"s_lshl_b32 s{s_}, s{s_}, 10")
        a(f"s_add_u32 s{s_}, s{s_}, {base}")
    a("s_waitcnt lgkmcnt(0)")
    if PM == 1: ts_mark(a, MK[0])
    srd(a, sWS, 4, WS_SIZE)
    dcount = [0]
    def kv_dma():
        j = dcount[0]; dcount[0] += 1
        r, kv = j >> 1, j & 1
        vq.issue(f"D{r}{'KV'[kv]}", f"buffer_load_dwordx4 v{vL16}, {W}, s{sOff} offen lds")
        if j < 15:
            d = 65536 if kv == 0 else -57344
            if d > 0:
                a(f"s_add_u32 m0, m0, {d}"); a(f"s_add_u32 s{sOff}, s{sOff}, {d}")
            else:
                a(f"s_sub_u32 m0, m0, {-d}"); a(f"s_sub_u32 s{sOff}, s{sOff}, {-d}")
    fstep = {}
    def ffn_load(which, st):
        buf = FB + 16 * (st & 1)
        reg = {0: buf, 3: buf + 4, 1: buf + 8, 2: buf + 12}[which]
        s_ = {0: sA[0], 3: sA[1], 1: sB[0], 2: sB[1]}[which]
        base = fstep.get(which, 0)
        if st - base >= 4:
            a(f"s_add_u32 s{s_}, s{s_}, {4096}")
            base += 4; fstep[which] = base
        vq.issue(f"F{st}.{which}", f"buffer_load_dwordx4 {r4(reg)}, v{vL16}, {W}, s{s_} offen offset:{(st-base)*1024}")
    kv_dma()
    vq.issue("Q", f"buffer_load_dwordx4 {r4(Q)}, v{vL16}, {W}, s{sT2} offen")
    vq.issue("KM", f"buffer_load_dwordx4 {r4(S[1])}, v{vL16}, {W}, s{sKM} offen")
    kv_dma()
    for wh in (0, 1, 2, 3): ffn_load(wh, 0)
    srd(a, sOUT, 6, 0x200000)
    srd(a, sWO, 44, 0x80000)
    a(f"v_and_b32 v{T[0]}, 31, v{vLane}")
    a(f"v_lshrrev_b32 v{T[1]}, 5, v{vLane}")
    if ZROW:
        a(f"v_and_b32 v{T[2]}, 11, v0")
        a(f"v_cmp_eq_u32 vcc, 0, v{T[2]}")
        a(f"v_mov_b32 v{T[2]}, 0x3c003c00")
        a(f"v_cndmask_b32 v{S[0]}, 0, v{T[2]}, vcc")
        for r in range(1, 4): a(f"v_mov_b32 v{S[0]+r}, v{S[0]}")
    else:
        for r in range(4): a(f"v_mov_b32 v{S[0]+r}, 0x3c003c00")
    a(f"v_lshlrev_b32 v{T[2]}, 4, v0")
    a(f"v_add_u32 v{T[2]}, {L_ONES}, v{T[2]}")
    lq.issue("ONES", f"ds_write_b128 v{T[2]}, {r4(S[0])}")
    a(f"v_lshlrev_b32 v{T[2]}, 8, v{T[1]}")
    a(f"v_lshl_add_u32 v{T[2]}, v{T[0]}, 4, v{T[2]}")
    a(f"v_add_u32 v{T[2]}, {L_V}, v{T[2]}")
    a(f"v_subrev_u32 v{T[3]}, 20, v{T[0]}")
    a(f"v_cmp_gt_u32 vcc, 8, v{T[3]}")
    a(f"v_mov_b32 v{T[3]}, {L_ONES}")
    a(f"v_mov_b32 v{T[4]}, {L_ONES + 64}")
    a(f"v_cndmask_b32 v{T[3]}, v{T[3]}, v{T[4]}, vcc")
    if ZROW:
        a(f"v_and_b32 v{T[4]}, 11, v{T[0]}")
        a(f"v_cmp_ne_u32 vcc, 0, v{T[4]}")
        a(f"v_add_u32 v{T[4]}, 16, v{T[3]}")
        a(f"v_cndmask_b32 v{T[3]}, v{T[3]}, v{T[4]}, vcc")
    a(f"v_cmp_gt_u32 vcc, 16, v{T[0]}")
    a(f"v_cndmask_b32 v{vV}, v{T[3]}, v{T[2]}, vcc")
    a(f"v_mov_b32 v{T[3]}, 8192")
    a(f"v_cndmask_b32 v{vVi}, 0, v{T[3]}, vcc")
    a(f"v_lshlrev_b32 v{vGF}, 2, v{T[0]}")
    for r in range(16): a(f"v_mov_b32 v{O+r}, 0")
    for r in range(64): a(f"v_mov_b32 v{ACC+r}, 0")
    a(f"v_mov_b32 v{cA}, 0x02000200")
    a(f"v_mov_b32 v{cM}, 0x39a839a8")
    def red_slot(dst, wreg):
        a(f"s_lshl_b32 s{dst}, s{wreg}, 13")
        a(f"s_add_u32 s{dst}, s{dst}, 32768")
        a(f"s_cmp_ge_u32 s{wreg}, 3")
        a(f"s_cselect_b32 s{sT1}, 40960, 0")
        a(f"s_add_u32 s{dst}, s{dst}, s{sT1}")
        a(f"s_cmp_ge_u32 s{wreg}, 6")
        a(f"s_cselect_b32 s{sT1}, 16384, 0")
        a(f"s_add_u32 s{dst}, s{dst}, s{sT1}")
    red_slot(sT0, sW)
    a(f"v_add_u32 v{vRW}, s{sT0}, v{vL16}")
    a(f"s_xor_b32 s{sRED}, s{sW}, 1")
    red_slot(sT0, sRED)
    a(f"v_add_u32 v{vRR}, s{sT0}, v{vL16}")
    a(f"s_lshl_b32 s{sT1}, s{sTB}, 1")
    a(f"s_add_u32 s{sT1}, s{sT1}, s{sTS}")
    a(f"s_lshl_b32 s{sT1}, s{sT1}, 5")
    a(f"s_lshl_b32 s{sT0}, s{sKQ}, 3")
    a(f"s_add_u32 s{sT1}, s{sT1}, s{sT0}")
    a(f"s_lshl_b32 s{sT1}, s{sT1}, 10")
    a(f"s_add_u32 s{sOf}, s{sT1}, {WS_OF}")
    a(f"s_lshl_b32 s{sT0}, s{sW}, 16")
    a(f"s_lshl_b32 s{sT1}, s{sHG}, 7")
    a(f"s_add_u32 s{sWoS}, s{sT0}, s{sT1}")
    a(f"v_lshrrev_b32 v{T[6]}, 3, v{vLane}")
    a(f"v_and_b32 v{vWo}, 7, v{vLane}")
    a(f"v_bfe_u32 v{T[5]}, v{T[6]}, 1, 1")
    a(f"v_lshlrev_b32 v{T[5]}, 2, v{T[5]}")
    a(f"v_xor_b32 v{vWo}, v{vWo}, v{T[5]}")
    a(f"v_lshlrev_b32 v{vWo}, 4, v{vWo}")
    a(f"v_lshl_add_u32 v{vWo}, v{T[6]}, 10, v{vWo}")
    if PM == 1: ts_mark(a, MK[1])
    vq.wait("KM")
    km = S[1]
    a(f"v_max_u32 v{km}, v{km}, v{km+1}")
    a(f"v_max3_u32 v{km}, v{km}, v{km+2}, v{km+3}")
    for sh in (1, 2, 4, 8):
        a(f"v_max_u32_dpp v{km}, v{km}, v{km} row_shr:{sh} row_mask:0xf bank_mask:0xf")
    a(f"v_max_u32_dpp v{km}, v{km}, v{km} row_bcast:15 row_mask:0xa bank_mask:0xf")
    a(f"v_readlane_b32 s{sKM}, v{km}, 31")
    a(f"v_readlane_b32 s{sVM}, v{km}, 63")
    a(f"v_mov_b32 v{T[2]}, 0")
    for r in range(4):
        a(f"v_dot2_f32_bf16 v{T[2]}, v{Q+r}, v{Q+r}, v{T[2]}")
    a(f"v_mov_b32 v{T[5]}, v{T[2]}")
    a(f"v_permlane32_swap_b32 v{T[2]}, v{T[5]}")
    a(f"v_add_f32 v{T[2]}, v{T[2]}, v{T[5]}")
    a(f"v_mul_f32 v{T[2]}, s{sKM}, v{T[2]}")
    a(f"v_sqrt_f32 v{T[2]}, v{T[2]}")
    a(f"s_sub_u32 s{sT0}, s{sVM}, 0x3c800000")
    a(f"s_cmp_le_u32 s{sT0}, {0x47000000 - 0x3c800000}")
    a(f"s_cselect_b32 s{sT0}, 0, 0x7f800000")
    a(f"v_add_f32 v{T[2]}, s{sT0}, v{T[2]}")
    a(f"v_sub_f32 v{CB}, {f32hex(TBITS / 65535.0)}, v{T[2]}")
    for r in range(1, 16): a(f"v_mov_b32 v{CB+r}, v{CB}")
    vq.wait("D0V")
    lq.wait_all()
    a("s_barrier")
    if PM != 2: ts_mark(a, MK[2] if PM else MK[0])
    if PRIO == 1:
        a(f"s_cmp_lt_u32 s{sW}, 4")
        a("s_cbranch_scc1 K2_NOPRIO")
        a("s_setprio 1")
        a.label("K2_NOPRIO")
    lq.issue("K0", f"ds_read_b128 {r4(KF)}, v{vL16}")
    lq.issue("K1", f"ds_read_b128 {r4(V1)}, v{vL16} offset:1024")
    lq.issue("VA0", f"ds_read_b128 {r4(V0)}, v{vV}")

    def valu3(Sx):
        seq = []
        for k in range(10):
            if k < 8: seq.append(f"v_cvt_pknorm_u16_f32 v{Y+k}, v{Sx+2*k}, v{Sx+2*k+1}")
            if 0 <= k - 1 < 8: seq.append(f"v_add_u32 v{Y2+(k-1)%4}, v{cA}, v{Y+k-1}")
            if 0 <= k - 2 < 8: seq.append(f"v_pk_fma_f16 v{Y+k-2}, v{Y2+(k-2)%4}, v{cM}, v{Y+k-2}")
        return seq

    aux = {}
    def at(t, pos, fn): aux.setdefault(t, {}).setdefault(pos, []).append(fn)
    at(0, 0, kv_dma); at(0, 5, kv_dma)
    for i, t in enumerate((1, 2, 3, 4)): at(t, 5, kv_dma)
    for t in (8, 10, 12, 15): at(t, 5, kv_dma)
    for t in (24, 26, 28, 31): at(t, 5, kv_dma)
    def g_loads():
        a(f"s_lshl_b32 s{sT0}, s{sTB}, 8")
        a(f"s_add_u32 s{sT0}, s{sT0}, {WS_G}")
        a(f"s_lshl_b32 s{sT1}, s{sTS}, 7")
        a(f"s_add_u32 s{sT1}, s{sT1}, s{sT0}")
        vq.issue("G", f"buffer_load_dword v{vGT}, v{vGF}, {W}, s{sT1} offen")
        a(f"s_lshl_b32 s{sT1}, s{sXB}, 7")
        a(f"s_add_u32 s{sT1}, s{sT1}, s{sT0}")
        vq.issue("G", f"buffer_load_dword v{vGF}, v{vGF}, {W}, s{sT1} offen")
    at(20, 5, g_loads)
    wo_n = [0]
    def wo_dma():
        i = wo_n[0]; wo_n[0] += 1
        if i == 0:
            a(f"s_lshl_b32 s{sT0}, s{sNS}, 14")
            a(f"s_lshl_b32 s{sT1}, s{sXB}, 16")
            a(f"s_add_u32 s{sT0}, s{sT0}, s{sT1}")
            a(f"s_lshl_b32 s{sT1}, s{sTS}, 13")
            a(f"s_add_u32 m0, s{sT0}, s{sT1}")
        vq.issue("WO", f"buffer_load_dwordx4 v{vWo}, s[{sWO}:{sWO+3}], s{sWoS} offen lds")
        if i < 7:
            a(f"s_add_u32 m0, m0, 1024")
            a(f"s_add_u32 s{sWoS}, s{sWoS}, 8192")
    for t in range(47, 55): at(t, 5, wo_dma)
    bars = {6: "D1V", 14: "D3V", 30: "D5V", 46: "D7V", 58: None}
    if NOBAR: bars = {6: "D1V", 14: "D3V", 30: "D5V", 38: "D7V"}

    def unit(t):
        n0 = len(a.ins)
        unit_(t)
        if KILL != [""] and 1 <= t < 60:
            keep = []
            for ins in a.ins[n0:]:
                tx = ins.text
                kill = False
                if "ffnm" in KILL and tx.startswith("v_mfma") and any(tx.split()[1].startswith(f"v[{acc(i)}:") for i in range(4)): kill = True
                if "ffnl" in KILL and tx.startswith("buffer_load") and "lds" not in tx and "dwordx4" in tx: kill = True
                if "valu" in KILL and tx.startswith(("v_cvt_pknorm", "v_add_u32 v4", "v_pk_fma")): kill = True
                if "half" in KILL and tx.startswith(("v_add_u32 v4", "v_pk_fma")): kill = True
                if "pv" in KILL and tx.startswith("v_mfma_f32_32x32x16_f16"): kill = True
                if "s" in KILL and tx.startswith("v_mfma") and any(tx.split()[1].startswith(f"v[{S[i]}:") for i in range(2)): kill = True
                if "lds" in KILL and tx.startswith("ds_read"): kill = True
                if not kill: keep.append(ins)
            a.ins[n0:] = keep
    def unit_(t):
        x = t & 1; y = 1 - x
        Sx, Sy = S[x], S[y]
        tl = t & 7
        seq = valu3(Sx)
        if t in bars:
            if bars[t]: vq.wait(bars[t])
            a("s_barrier")
        def slot0():
            if t > 0:
                lq.wait(f"VB{t-1}")
                a(f"v_mfma_f32_32x32x16_f16 {r16(O)}, {r4(V1)}, {r4(Y+4)}, {r16(O)}")
                lq.issue(f"VB{t}", f"ds_read_b128 {r4(V1)}, v{vV} offset:{tl*1024+512}")
        def slot1():
            if t == 0:
                lq.wait("K1")
                a(f"v_mfma_f32_32x32x16_bf16 {r16(Sy)}, {r4(V1)}, {r4(Q)}, {r16(CB)}")
                lq.issue("VB0", f"ds_read_b128 {r4(V1)}, v{vV} offset:512")
                lq.issue("K2", f"ds_read_b128 {r4(KF)}, v{vL16} offset:2048")
            elif t < 63:
                lq.wait(f"K{t+1}")
                a(f"v_mfma_f32_32x32x16_bf16 {r16(Sy)}, {r4(KF)}, {r4(Q)}, {r16(CB)}")
                if t + 2 <= 63: lq.issue(f"K{t+2}", f"ds_read_b128 {r4(KF)}, v{vL16} offset:{(t+2)*1024}")
        def slot2():
            u = t - FSH
            if t < FSH:
                if t < 4: ffn_load(t, 1)
                return
            st, m = u >> 2, u & 3
            if st < 14:
                buf = FB + (st & 1) * 16
                A0, A1, B0, B1 = buf, buf + 4, buf + 8, buf + 12
                pre = st + 2 < 14
                if m == 0:
                    vq.wait(f"F{st}.1")
                    a(f"v_mfma_f32_32x32x16_bf16 {r16(acc(0))}, {r4(A0)}, {r4(B0)}, {r16(acc(0))}")
                elif m == 1:
                    vq.wait(f"F{st}.2")
                    a(f"v_mfma_f32_32x32x16_bf16 {r16(acc(2))}, {r4(A0)}, {r4(B1)}, {r16(acc(2))}")
                    if pre: ffn_load(0, st + 2)
                elif m == 2:
                    vq.wait(f"F{st}.3")
                    a(f"v_mfma_f32_32x32x16_bf16 {r16(acc(1))}, {r4(A1)}, {r4(B0)}, {r16(acc(1))}")
                    if pre: ffn_load(1, st + 2)
                else:
                    a(f"v_mfma_f32_32x32x16_bf16 {r16(acc(3))}, {r4(A1)}, {r4(B1)}, {r16(acc(3))}")
                    if pre:
                        ffn_load(2, st + 2); ffn_load(3, st + 2)
            else:
                k = u - 56
                nrem = 64 - FSH - 56
                per = (8 + nrem - 1) // nrem
                for qd in range(k * per, min(8, (k + 1) * per)):
                    i, rq = qd >> 2, qd & 3
                    lq.issue("RW", f"ds_write_b128 v{vRW}, {r4(acc(2+i)+4*rq)} offset:{i*4096+rq*1024}")
        def slot3():
            lq.wait(f"VA{t}")
            a(f"v_mfma_f32_32x32x16_f16 {r16(O)}, {r4(V0)}, {r4(Y)}, {r16(O)}")
            if t < 63:
                if (t + 1) & 7 == 0: a(f"v_add_u32 v{vV}, v{vVi}, v{vV}")
                lq.issue(f"VA{t+1}", f"ds_read_b128 {r4(V0)}, v{vV} offset:{((t+1)&7)*1024}")
        slots = [(slot0, slot1, slot2, slot3)[i] for i in ORD]
        if t == 0 and ORD[0] == 1: pass
        mi = 0
        for i, s_ in enumerate(seq):
            for fn in aux.get(t, {}).get(i, []): fn()
            while mi < 4 and POS[mi] == i:
                slots[mi](); mi += 1
            a(s_)
        while mi < 4:
            slots[mi](); mi += 1

    lq.wait("K0")
    a(f"v_mfma_f32_32x32x16_bf16 {r16(S[0])}, {r4(KF)}, {r4(Q)}, {r16(CB)}")
    for t in range(64):
        unit(t)
        if t == 7 and PM != 2: ts_mark(a, MK[3] if PM else MK[1])
        if t == 55 and PM != 2: ts_mark(a, MK[4] if PM else MK[2])
    ts_mark(a, MK[0] if PM == 2 else MK[5] if PM else MK[3])
    lq.wait("VB63")
    a(f"v_mfma_f32_32x32x16_f16 {r16(O)}, {r4(V1)}, {r4(Y+4)}, {r16(O)}")
    a(f"v_lshrrev_b32 v{T[0]}, 5, v{vLane}")
    a(f"v_bfe_u32 v{T[1]}, v{vLane}, 2, 2")
    a(f"v_lshl_add_u32 v{T[0]}, v{T[0]}, 2, v{T[1]}")
    a(f"v_lshlrev_b32 v{T[0]}, 7, v{T[0]}")
    a(f"v_bfe_u32 v{T[1]}, v{vLane}, 3, 1")
    a(f"v_lshl_add_u32 v{T[0]}, v{T[1]}, 6, v{T[0]}")
    a(f"v_bfe_u32 v{T[1]}, v{vLane}, 4, 1")
    a(f"v_lshl_add_u32 v{T[0]}, v{T[1]}, 5, v{T[0]}")
    a(f"v_and_b32 v{T[1]}, 3, v{vLane}")
    a(f"v_lshl_add_u32 v{T[0]}, v{T[1]}, 3, v{T[0]}")
    a(f"s_lshl_b32 s{sT0}, s{sNS}, 14")
    a(f"s_lshl_b32 s{sT1}, s{sXB}, 16")
    a(f"s_add_u32 s{sT0}, s{sT0}, s{sT1}")
    a(f"s_lshl_b32 s{sT1}, s{sNS}, 6")
    a(f"v_add_u32 v{T[0]}, s{sT0}, v{T[0]}")
    a(f"v_xor_b32 v{T[0]}, s{sT1}, v{T[0]}")
    a(f"v_xor_b32 v{T[1]}, 64, v{T[0]}")
    vq.wait("WO")
    a(f"v_mov_b32 v{V1}, v{O+8}")
    a(f"v_subrev_u32 v{T[2]}, {LMIN_BITS}, v{V1}")
    a(f"v_cmp_gt_u32 vcc, {0x7f800000 - LMIN_BITS}, v{T[2]}")
    a("s_cmp_eq_u64 vcc, -1")
    a("s_cbranch_scc0 K2_SLOW")
    a.label("K2_NORM")
    a(f"v_rcp_f32 v{V1}, v{V1}")
    a(f"v_mul_f32 v{V1}, v{V1}, v{vGF}")
    for r in range(8): a(f"v_mul_f32 v{O+r}, v{O+r}, v{V1}")
    for r in range(4): a(f"v_cvt_pk_bf16_f32 v{Y+r}, v{O+2*r}, v{O+2*r+1}")
    a(f"buffer_store_dwordx4 {r4(Y)}, v{vL16}, {W}, s{sT3} offen sc1")
    if not PM: ts_mark(a, MK[4])
    if PM == 2: ts_mark(a, MK[1])
    OFR = [FB + 4 * i for i in range(8)]
    def of_loads(lo, hi, pol="sc1"):
        for i in range(lo, hi):
            a(f"buffer_load_dwordx4 {r4(OFR[i])}, v{vL16}, {W}, s{sOf if i < 4 else sT2} offen offset:{(i%4)*1024} {pol}")
    a(f"s_add_u32 s{sT2}, s{sOf}, 4096")
    EARLY = int(os.environ.get("EARLY", "0"))
    if EARLY: of_loads(0, 8, POLL1)
    if PM == 2: ts_mark(a, MK[2])
    a("s_waitcnt lgkmcnt(0)")
    a("s_barrier")
    if PM == 2: ts_mark(a, MK[3])
    for i in range(2):
        for rq in range(4):
            a(f"ds_read_b128 {r4(S[0]+16*i+4*rq)}, v{vRR} offset:{i*4096+rq*1024}")
    WOA = [acc(2) + 4 * i for i in range(8)]
    WOB = [X1 + 4 * i for i in range(4)] + [SP + 4 * i for i in range(4)]
    a(f"v_sub_f32 v{vGT}, 1.0, v{vGT}")
    for h in range(8):
        for t in range(2):
            a(f"ds_read_b64_tr_b16 {r2(WOA[h]+2*t)}, v{T[0]} offset:{h*2048+t*1024}")
        if h == 3:
            a("s_waitcnt lgkmcnt(8)")
            for r in range(32):
                a(f"v_add_f32 v{ACC+r}, v{ACC+r}, v{S[0]+r}")
    for h in range(8):
        for t in range(2):
            a(f"ds_read_b64_tr_b16 {r2(WOB[h]+2*t)}, v{T[1]} offset:{h*2048+t*1024}")
    for r in range(32):
        a(f"v_mul_f32 v{ACC+r}, v{ACC+r}, v{vGT}")
    if PM == 2: ts_mark(a, MK[4])
    a(f"s_mul_i32 s{sT0}, s{sKQ}, {F2}")
    a(f"s_lshl_b32 s{sT1}, s{sTS}, 10")
    a(f"s_add_u32 s{sT0}, s{sT0}, s{sT1}")
    a(f"s_mul_i32 s{sT1}, s{sNS}, {4*CS}")
    a(f"s_add_u32 s{sT1}, s{sT1}, s{sT0}")
    a(f"v_add_u32 v{T[2]}, s{sT1}, v{vL16}")
    a(f"s_xor_b32 s{sT1}, s{sNS}, 1")
    a(f"s_mul_i32 s{sT1}, s{sT1}, {4*CS}")
    a(f"s_add_u32 s{sT1}, s{sT1}, s{sT0}")
    a(f"v_add_u32 v{T[3]}, s{sT1}, v{vL16}")
    a(f"v_and_b32 v{T[4]}, 7, v{vLane}")
    a(f"v_lshrrev_b32 v{T[5]}, 3, v{vLane}")
    a(f"v_mul_u32_u24 v{T[6]}, {CS}, v{T[4]}")
    a(f"v_lshl_add_u32 v{T[6]}, v{T[5]}, 4, v{T[6]}")
    a(f"s_lshl_b32 s{sT0}, s{sXB}, 10")
    a(f"s_lshl_b32 s{sT1}, s{sW3}, 7")
    a(f"s_add_u32 s{sT0}, s{sT0}, s{sT1}")
    a(f"v_add_u32 v{T[6]}, s{sT0}, v{T[6]}")
    a(f"v_add_u32 v{T[7]}, {2*F2}, v{T[6]}")
    a(f"v_lshlrev_b32 v{T[5]}, 10, v{T[5]}")
    a(f"v_lshl_add_u32 v{T[5]}, v{T[4]}, 4, v{T[5]}")
    a(f"s_lshl_b32 s{sT0}, s{sTB}, 16")
    a(f"s_lshl_b32 s{sT1}, s{sW}, 13")
    a(f"s_add_u32 s{sT0}, s{sT0}, s{sT1}")
    a(f"s_lshl_b32 s{sT1}, s{sHG}, 7")
    a(f"s_add_u32 s{sT3}, s{sT0}, s{sT1}")
    a("s_waitcnt lgkmcnt(0)")
    a("s_barrier")
    if PM in (0, 2): ts_mark(a, MK[5])
    else: ts_mark(a, MK[6])
    if not EARLY: of_loads(0, 8, POLL1)
    for g in range(4):
        a(f"s_mov_b32 s{sPoll}, 4096")
        a(f"s_waitcnt vmcnt({6 - 2*g})")
        a.label(f"K2_POLL{g}")
        rr = [OFR[i] + k for i in (2 * g, 2 * g + 1) for k in range(4)]
        a(f"v_max_u32 v{T[0]}, v{rr[0]}, v{rr[1]}")
        for k in range(2, 8, 2):
            a(f"v_max3_u32 v{T[0]}, v{rr[k]}, v{rr[k+1]}, v{T[0]}")
        a(f"v_cmp_eq_u32 vcc, -1, v{T[0]}")
        a(f"s_cbranch_vccz K2_GO{g}")
        a(f"s_sub_u32 s{sPoll}, s{sPoll}, 1")
        a(f"s_cmp_eq_u32 s{sPoll}, 0")
        a(f"s_cbranch_scc1 K2_GO{g}")
        of_loads(2 * g, 2 * g + 2)
        a("s_waitcnt vmcnt(0)")
        a(f"s_branch K2_POLL{g}")
        a.label(f"K2_GO{g}")
        for i in (2 * g, 2 * g + 1):
            a(f"v_mfma_f32_32x32x16_bf16 {r16(acc(0))}, {r4(WOA[i])}, {r4(OFR[i])}, {r16(acc(0))}")
            a(f"v_mfma_f32_32x32x16_bf16 {r16(acc(1))}, {r4(WOB[i])}, {r4(OFR[i])}, {r16(acc(1))}")
    if PM in (0, 2): ts_mark(a, MK[6])
    for i in range(2):
        for rq in range(4):
            a(f"ds_write_b128 v{T[2+i]}, {r4(acc(i)+4*rq)} offset:{rq*CS}")
    a("s_waitcnt lgkmcnt(0)")
    a("s_barrier")
    R = S[0]
    for kq in range(4):
        base = T[6] if kq < 2 else T[7]
        for h in range(2):
            a(f"ds_read_b128 {r4(R+(kq*2+h)*4)}, v{base} offset:{(kq&1)*F2+h*512}")
    a("s_waitcnt lgkmcnt(4)")
    for k in range(8): a(f"v_add_f32 v{R+k}, v{R+k}, v{R+8+k}")
    a("s_waitcnt lgkmcnt(0)")
    for k in range(8): a(f"v_add_f32 v{R+16+k}, v{R+16+k}, v{R+24+k}")
    for k in range(8): a(f"v_add_f32 v{R+k}, v{R+k}, v{R+16+k}")
    for k in range(4): a(f"v_cvt_pk_bf16_f32 v{Y+k}, v{R+2*k}, v{R+2*k+1}")
    a(f"buffer_store_dwordx4 {r4(Y)}, v{T[5]}, s[{sOUT}:{sOUT+3}], s{sT3} offen")
    ts_mark(a, MK[7])
    if TS: a("s_waitcnt lgkmcnt(0)")
    ts_end(a, 1, sWS, sW, MK[:4])
    if TS:
        a("s_mov_b64 exec, -1")
        for i in range(4): a(f"v_mov_b32 v{i}, s{MK[4+i]}")
        a(f"s_add_u32 s4, s4, 0x20000")
        a("s_mov_b64 exec, 1")
        a(f"buffer_store_dwordx4 v[0:3], v8, s[{sWS}:{sWS+3}], s4 offen offset:16")
    a("s_endpgm")

    a.label("K2_SLOW")
    M = T[2]
    CI = 65535.0 / 1024.0
    a(f"v_mov_b32 v{M}, 0xff800000")
    a(f"s_mov_b32 s{sT0}, {WS_KF}")
    a(f"s_mov_b32 s{sCnt}, 64")
    a.label("K2_SL1")
    a(f"buffer_load_dwordx4 {r4(KF)}, v{vL16}, {W}, s{sT0} offen")
    a(f"s_add_u32 s{sT0}, s{sT0}, 1024")
    a("s_waitcnt vmcnt(0)")
    a(f"v_mfma_f32_32x32x16_bf16 {r16(S[0])}, {r4(KF)}, {r4(Q)}, 0")
    for r in range(0, 16, 2):
        a(f"v_max3_f32 v{M}, v{S[0]+r}, v{S[0]+r+1}, v{M}")
    a(f"s_sub_u32 s{sCnt}, s{sCnt}, 1")
    a(f"s_cmp_lg_u32 s{sCnt}, 0")
    a("s_cbranch_scc1 K2_SL1")
    a(f"v_mov_b32 v{T[3]}, v{M}")
    a(f"v_permlane32_swap_b32 v{M}, v{T[3]}")
    a(f"v_max_f32 v{M}, v{M}, v{T[3]}")
    a(f"v_mul_f32 v{M}, {f32hex(-CI)}, v{M}")
    a(f"v_mov_b32 v{T[3]}, {f32hex(CI)}")
    a(f"v_and_b32 v{T[4]}, 15, v{vLane}")
    a(f"v_lshlrev_b32 v{T[4]}, 4, v{T[4]}")
    a(f"v_lshrrev_b32 v{T[5]}, 5, v{vLane}")
    a(f"v_lshl_add_u32 v{T[4]}, v{T[5]}, 8, v{T[4]}")
    a(f"v_and_b32 v{T[5]}, 16, v{vLane}")
    a(f"v_cmp_eq_u32 s[40:41], 0, v{T[5]}")
    a(f"v_mov_b32 v{T[5]}, 0x3f803f80")
    for r in range(16): a(f"v_mov_b32 v{O+r}, 0")
    a(f"s_mov_b32 s{sT0}, {WS_KF}")
    a(f"s_mov_b32 s{sT1}, {WS_VB}")
    a(f"s_mov_b32 s{sCnt}, 64")
    a.label("K2_SL2")
    a(f"buffer_load_dwordx4 {r4(KF)}, v{vL16}, {W}, s{sT0} offen")
    a(f"buffer_load_dwordx4 {r4(V0)}, v{T[4]}, {W}, s{sT1} offen")
    a(f"buffer_load_dwordx4 {r4(S[1])}, v{T[4]}, {W}, s{sT1} offen offset:512")
    a(f"s_add_u32 s{sT0}, s{sT0}, 1024")
    a(f"s_add_u32 s{sT1}, s{sT1}, 1024")
    a("s_waitcnt vmcnt(0)")
    a(f"v_mfma_f32_32x32x16_bf16 {r16(S[0])}, {r4(KF)}, {r4(Q)}, 0")
    for r in range(4):
        a(f"v_cndmask_b32 v{V0+r}, v{T[5]}, v{V0+r}, s[40:41]")
        a(f"v_cndmask_b32 v{S[1]+r}, v{T[5]}, v{S[1]+r}, s[40:41]")
    for r in range(16):
        a(f"v_fma_f32 v{S[0]+r}, v{S[0]+r}, v{T[3]}, v{M}")
        a(f"v_exp_f32 v{S[0]+r}, v{S[0]+r}")
    for k in range(8):
        a(f"v_cvt_pk_bf16_f32 v{Y+k}, v{S[0]+2*k}, v{S[0]+2*k+1}")
    a(f"v_mfma_f32_32x32x16_bf16 {r16(O)}, {r4(V0)}, {r4(Y)}, {r16(O)}")
    a(f"v_mfma_f32_32x32x16_bf16 {r16(O)}, {r4(S[1])}, {r4(Y+4)}, {r16(O)}")
    a(f"s_sub_u32 s{sCnt}, s{sCnt}, 1")
    a(f"s_cmp_lg_u32 s{sCnt}, 0")
    a("s_cbranch_scc1 K2_SL2")
    a(f"v_mov_b32 v{V1}, v{O+8}")
    a("s_branch K2_NORM")
    a.label("K2_END")
    a("s_endpgm")
    return a
```

```python
import sys, os
sys.path.insert(0, os.path.dirname(os.path.abspath(__file__)))
from asmlib import Asm
import gen
from gen import *
from gen3 import VQ, r4, r2, r16
from gen5 import LQ
from k1r import map_t8

E = os.environ.get
XIMG, RING, SLOT, HOFF = 0, 65536, 18432, 4096
KVW = RING + 4 * SLOT
GATE = KVW + 16384
W2P = GATE + 1024
QX = KVW
L_K, L_V, L_ONES = 0, 65536, GATE
M_LDS = 163840
CS = 2048 + 64
F2 = 8 * CS
WS_HFL = 0x223000
POS = [int(x) for x in E("POS", "2,8,14,20").split(",")]
TBITS = 29.75 * 1024
LMIN_BITS = 0x43000000
MINI_C = [int(x) for x in E("MINIC", "1,2,2,2").split(",")]
XW = [int(x) for x in E("XW", "1,1").split(",")]
CW2 = int(E("CW2", "2"))
CFLAG = int(E("CFLAG", "6"))
CRD = int(E("CRD", "3"))
CPOLL = int(E("CPOLL", "11"))
CCHK = int(E("CCHK", "13"))
WS_GFL = 0x228000
F0 = int(E("F0", "16"))
USET = int(E("USET", "5"))
UPOLL = int(E("UPOLL", "8"))
UCHK = int(E("UCHK", "11"))
CSET = int(E("CSET", "8"))
SC = " sc1"
MARKC = [int(x) for x in E("MARKC", "").split(",")] if E("MARKC") else None

def gen_m(name):
    a = Asm()
    a.label(name)
    P = "A_"
    sWS, sDBG = 8, 12
    W = f"s[{sWS}:{sWS+3}]"
    vLane, vL16 = 1, 5
    sX, sW1, sWQ, sKV, sW2, sGT = 36, 40, 44, 48, 56, 60
    sTB, sCG, sW, sT0, sT1, sSlot, sT2, sT3, sTYPE, sTT, sM = 64, 65, 66, 67, 68, 70, 73, 74, 75, 76, 77
    sSo, sSoQ, sSoH, sG, sCC, sXm = 72, 78, 79, 81, 82, 83
    MA = [84, 86, 88, 90]
    sLW, sI0, sW2s, sW2m = 92, 93, 94, 95
    T = list(range(8, 16))
    sOUT, sWO = 12, 60
    bW, bTB, bHG, bT0, bT1, sCnt, sXB, sHD = 16, 17, 18, 19, 20, 21, 22, 23
    sA = [24, 25]; sB = [26, 27]
    sW3, sNS, sTS, sKM, sOff, bT2, sPoll, sKQ, sOf, bT3, sWoS, sVM, sRED = 28, 29, 30, 31, 32, 33, 34, 35, 36, 37, 38, 39, 3
    sHFo, sHFi = 50, 51
    vRW, vV, vVi, vGF, vGT = 2, 3, 4, 6, 7
    Q = 16; vWo = 20; vRR = 21
    KF, V0, V1 = 24, 28, 32
    Y = 36; Y2 = 44; cA, cM = 48, 49
    CB = 52; S = [68, 84]; O = 100; X1 = 116; ACC = 132; FB = 196; SP = 228
    vKM = 244; vHP = 248; vHA = 249
    def acc(i): return ACC + 16 * i
    MK = [64, 66, 68, 70]

    a("s_cmp_ge_u32 s2, 256")
    a("s_cbranch_scc1 M_END")
    ts_begin(a)
    a("s_load_dwordx16 s[16:31], s[0:1], 0")
    a("s_load_dwordx4 s[32:35], s[0:1], 64")
    a("s_load_dwordx4 s[52:55], s[0:1], 80")
    map_t8(a, 2, sTB, sCG, sT0, E("MAP1", "T8"))
    a(f"v_lshrrev_b32 v{T[0]}, 6, v0")
    a(f"v_and_b32 v{vLane}, 63, v0")
    a(f"v_readfirstlane_b32 s{sW}, v{T[0]}")
    a(f"v_lshlrev_b32 v{vL16}, 4, v{vLane}")
    a(f"s_and_b32 s{sTYPE}, s{sCG}, 1")
    a(f"s_lshr_b32 s{sTT}, s{sCG}, 1")
    a(f"s_and_b32 s{sG}, s{sTB}, 3")
    vX0 = 16
    a(f"v_lshrrev_b32 v{T[3]}, 4, v{vLane}")
    a(f"v_and_b32 v{T[2]}, 15, v{vLane}")
    a(f"v_xor_b32 v{T[2]}, v{T[2]}, v{T[3]}")
    a(f"v_lshlrev_b32 v{T[2]}, 4, v{T[2]}")
    a(f"v_lshl_add_u32 v{vX0}, v{T[3]}, 10, v{T[2]}")
    for i in range(1, 4): a(f"v_xor_b32 v{vX0+i}, {64*i}, v{vX0}")
    a(f"s_and_b32 s{sLW}, s{sW}, 3")
    a(f"s_lshl_b32 s{sT0}, s{sTB}, 16")
    a(f"s_lshl_b32 s{sT1}, s{sLW}, 14")
    a(f"s_add_u32 s{sSo}, s{sT0}, s{sT1}")
    a(f"s_lshl_b32 s{sXm}, s{sLW}, 12")

    def xpos(vq, p):
        a(f"s_add_u32 s{sT0}, s{sG}, {p}")
        a(f"s_and_b32 s{sT0}, s{sT0}, 3")
        a(f"s_add_u32 m0, s{sXm}, {XIMG + p * 16384}")
        a(f"s_lshl_b32 s{sT0}, s{sT0}, 8")
        a(f"s_add_u32 s{sT0}, s{sT0}, s{sSo}")
        for i in range(4):
            if i:
                a(f"s_add_u32 m0, m0, 1024")
                a(f"s_add_u32 s{sT0}, s{sT0}, 4096")
            vq.issue(f"X{p}", f"buffer_load_dwordx4 v{vX0+i}, s[{sX}:{sX+3}], s{sT0} offen lds")

    def common_srds():
        srd(a, sWS, 54, WS_SIZE)
        srd(a, sDBG, 52, 256)
        a("s_mov_b64 s[4:5], s[24:25]")
        a("s_mov_b64 s[6:7], s[34:35]")

    dcount = [0]
    def kv_dma(vq):
        j = dcount[0]; dcount[0] += 1
        r, kv = j >> 1, j & 1
        vq.issue(f"D{r}{'KV'[kv]}", f"buffer_load_dwordx4 v{vL16}, {W}, s{sOff} offen{SC} lds")
        if j < 15:
            d = 65536 if kv == 0 else -57344
            if d > 0:
                a(f"s_add_u32 m0, m0, {d}"); a(f"s_add_u32 s{sOff}, s{sOff}, {d}")
            else:
                a(f"s_sub_u32 m0, m0, {-d}"); a(f"s_sub_u32 s{sOff}, s{sOff}, {-d}")
    fstep = {}
    def ffn_load(vq, which, st):
        buf = FB + 16 * (st & 1)
        reg = {0: buf, 3: buf + 4, 1: buf + 8, 2: buf + 12}[which]
        s_ = {0: sA[0], 3: sA[1], 1: sB[0], 2: sB[1]}[which]
        base = fstep.get(which, 0)
        if st - base >= 4:
            a(f"s_add_u32 s{s_}, s{s_}, {4096}")
            base += 4; fstep[which] = base
        vq.issue(f"F{st}.{which}", f"buffer_load_dwordx4 {r4(reg)}, v{vL16}, {W}, s{s_} offen offset:{(st-base)*1024}{SC}")

    def b_issue(vq):
        dcount[0] = 0; fstep.clear()
        a(f"s_mov_b32 m0, s{sOff}")
        a(f"s_add_u32 s{sOff}, s{sOff}, {WS_KF}")
        for _ in range(4): kv_dma(vq)
        a(f"s_mov_b32 s{sKM}, {WS_KMAX}")
        vq.issue("KM", f"buffer_load_dwordx4 {r4(vKM)}, v{vL16}, {W}, s{sKM} offen{SC}")
        for st in (0, 1):
            for wh in (0, 3): ffn_load(vq, wh, st)

    def b_setup():
        bt = [8, 9, 10, 11, 12, 13, 14, 15]
        a(f"s_mov_b32 s{bW}, s{sW}")
        a(f"s_mov_b32 s{bTB}, s{sTB}")
        a(f"s_mov_b32 s{bHG}, s{sCG}")
        a(f"s_lshl_b32 s{sOff}, s{bW}, 10")
        a(f"s_lshr_b32 s{sXB}, s{bW}, 2")
        a(f"s_and_b32 s{sW3}, s{bW}, 3")
        a(f"s_and_b32 s{sTS}, s{bW}, 1")
        a(f"s_bfe_u32 s{sNS}, s{bW}, 0x10001")
        a(f"s_lshr_b32 s{sKQ}, s{bW}, 1")
        a(f"s_lshl_b32 s{sHD}, s{bHG}, 2")
        a(f"s_add_u32 s{sHD}, s{sHD}, s{sW3}")
        a(f"s_lshl_b32 s{bT2}, s{bTB}, 1")
        a(f"s_add_u32 s{bT2}, s{bT2}, s{sXB}")
        a(f"s_lshl_b32 s{bT2}, s{bT2}, 5")
        a(f"s_add_u32 s{bT2}, s{bT2}, s{sHD}")
        a(f"s_lshl_b32 s{bT2}, s{bT2}, 10")
        a(f"s_add_u32 s{bT3}, s{bT2}, {WS_OF}")
        a(f"s_mul_i32 s{bT0}, s{bW}, 14")
        a(f"s_lshl_b32 s{bT1}, s{bHG}, 1")
        a(f"s_add_u32 s{bT1}, s{bT1}, s{sNS}")
        a(f"s_mul_i32 s{sA[0]}, s{bT1}, 112")
        a(f"s_xor_b32 s{bT1}, s{bT1}, 1")
        a(f"s_mul_i32 s{sA[1]}, s{bT1}, 112")
        a(f"s_lshl_b32 s{bT1}, s{bTB}, 1")
        a(f"s_add_u32 s{bT1}, s{bT1}, s{sTS}")
        a(f"s_mul_i32 s{sB[0]}, s{bT1}, 112")
        a(f"s_xor_b32 s{bT1}, s{bT1}, 1")
        a(f"s_mul_i32 s{sB[1]}, s{bT1}, 112")
        for s_, base in ((sA[0], WS_W2F), (sA[1], WS_W2F), (sB[0], WS_HF), (sB[1], WS_HF)):
            a(f"s_add_u32 s{s_}, s{s_}, s{bT0}")
            a(f"s_lshl_b32 s{s_}, s{s_}, 10")
            a(f"s_add_u32 s{s_}, s{s_}, {base}")
        a(f"s_lshl_b32 s{bT0}, s{bTB}, 8")
        a(f"s_add_u32 s{bT0}, s{bT0}, {WS_HFL}")
        a(f"s_lshl_b32 s{bT1}, s{bHG}, 5")
        a(f"s_add_u32 s{sHFo}, s{bT0}, s{bT1}")
        a(f"s_lshl_b32 s{bT1}, s{bW}, 2")
        a(f"s_add_u32 s{sHFo}, s{sHFo}, s{bT1}")
        a(f"s_lshl_b32 s{bT1}, s{bW}, 5")
        a(f"s_add_u32 s{sHFi}, s{bT0}, s{bT1}")
        a(f"v_and_b32 v{vHA}, 7, v{vLane}")
        a(f"v_lshlrev_b32 v{vHA}, 2, v{vHA}")
        a(f"v_and_b32 v{bt[0]}, 31, v{vLane}")
        a(f"v_lshrrev_b32 v{bt[1]}, 5, v{vLane}")
        a(f"v_and_b32 v{bt[2]}, 11, v{vLane}")
        a(f"v_cmp_eq_u32 vcc, 0, v{bt[2]}")
        a(f"v_mov_b32 v{bt[2]}, 0x3c003c00")
        a(f"v_cndmask_b32 v{acc(0)}, 0, v{bt[2]}, vcc")
        for r in range(1, 4): a(f"v_mov_b32 v{acc(0)+r}, v{acc(0)}")
        a(f"s_lshl_b32 s{bT0}, s{bW}, 10")
        a(f"s_add_u32 s{bT0}, s{bT0}, {L_ONES}")
        a(f"v_add_u32 v{bt[2]}, s{bT0}, v{vL16}")
        a(f"ds_write_b128 v{bt[2]}, {r4(acc(0))}")
        a(f"v_lshlrev_b32 v{bt[2]}, 8, v{bt[1]}")
        a(f"v_lshl_add_u32 v{bt[2]}, v{bt[0]}, 4, v{bt[2]}")
        a(f"v_add_u32 v{bt[2]}, {L_V}, v{bt[2]}")
        a(f"v_subrev_u32 v{bt[3]}, 20, v{bt[0]}")
        a(f"v_cmp_gt_u32 vcc, 8, v{bt[3]}")
        a(f"v_mov_b32 v{bt[3]}, {L_ONES}")
        a(f"v_mov_b32 v{bt[4]}, {L_ONES + 64}")
        a(f"v_cndmask_b32 v{bt[3]}, v{bt[3]}, v{bt[4]}, vcc")
        a(f"v_and_b32 v{bt[4]}, 11, v{bt[0]}")
        a(f"v_cmp_ne_u32 vcc, 0, v{bt[4]}")
        a(f"v_add_u32 v{bt[4]}, 16, v{bt[3]}")
        a(f"v_cndmask_b32 v{bt[3]}, v{bt[3]}, v{bt[4]}, vcc")
        a(f"v_cmp_gt_u32 vcc, 16, v{bt[0]}")
        a(f"v_cndmask_b32 v{vV}, v{bt[3]}, v{bt[2]}, vcc")
        a(f"v_mov_b32 v{bt[3]}, 8192")
        a(f"v_cndmask_b32 v{vVi}, 0, v{bt[3]}, vcc")
        a(f"v_lshlrev_b32 v{vGF}, 2, v{bt[0]}")
        for r in range(4, 64): a(f"v_mov_b32 v{ACC+r}, 0")
        for r in range(4): a(f"v_mov_b32 v{ACC+r}, 0")
        def red_slot(dst, wreg):
            a(f"s_lshl_b32 s{dst}, s{wreg}, 13")
            a(f"s_add_u32 s{dst}, s{dst}, 32768")
            a(f"s_cmp_ge_u32 s{wreg}, 3")
            a(f"s_cselect_b32 s{bT1}, 40960, 0")
            a(f"s_add_u32 s{dst}, s{dst}, s{bT1}")
            a(f"s_cmp_ge_u32 s{wreg}, 6")
            a(f"s_cselect_b32 s{bT1}, 16384, 0")
            a(f"s_add_u32 s{dst}, s{dst}, s{bT1}")
        red_slot(bT0, bW)
        a(f"v_add_u32 v{vRW}, s{bT0}, v{vL16}")
        a(f"s_xor_b32 s{sRED}, s{bW}, 1")
        red_slot(bT0, sRED)
        a(f"v_add_u32 v{vRR}, s{bT0}, v{vL16}")
        a(f"s_lshl_b32 s{bT1}, s{bTB}, 1")
        a(f"s_add_u32 s{bT1}, s{bT1}, s{sTS}")
        a(f"s_lshl_b32 s{bT1}, s{bT1}, 5")
        a(f"s_lshl_b32 s{bT0}, s{sKQ}, 3")
        a(f"s_add_u32 s{bT1}, s{bT1}, s{bT0}")
        a(f"s_lshl_b32 s{bT1}, s{bT1}, 10")
        a(f"s_add_u32 s{sOf}, s{bT1}, {WS_OF}")
        a(f"s_lshl_b32 s{bT0}, s{bW}, 16")
        a(f"s_lshl_b32 s{bT1}, s{bHG}, 7")
        a(f"s_add_u32 s{sWoS}, s{bT0}, s{bT1}")
        a(f"v_lshrrev_b32 v{bt[6]}, 3, v{vLane}")
        a(f"v_and_b32 v{vWo}, 7, v{vLane}")
        a(f"v_bfe_u32 v{bt[5]}, v{bt[6]}, 1, 1")
        a(f"v_lshlrev_b32 v{bt[5]}, 2, v{bt[5]}")
        a(f"v_xor_b32 v{vWo}, v{vWo}, v{bt[5]}")
        a(f"v_lshlrev_b32 v{vWo}, 4, v{vWo}")
        a(f"v_lshl_add_u32 v{vWo}, v{bt[6]}, 10, v{vWo}")

    def to_phase_b(vq):
        for r in range(16): a(f"v_mov_b32 v{O+r}, 0")
        vq.wait("KM")
        a(f"v_mov_b32 v{cA}, 0x02000200")
        a(f"v_mov_b32 v{cM}, 0x39a839a8")
        a("s_branch B_ENTRY")

    a(f"s_cmp_ge_u32 s{sW}, 4")
    a(f"s_cbranch_scc1 {P}LOADER")

    AF = [[32, 36], [40, 44]]
    BF = [[48, 52], [56, 60]]
    AACC = 64
    vAs = [228, 229, 230, 231]; vAt = [232, 233, 234, 235]; vBs = [236 + i for i in range(8)]
    def aacc(ct, ts): return AACC + (ct * 2 + ts) * 16
    a(f"v_lshrrev_b32 v{T[3]}, 1, v{vLane}")
    a(f"v_and_b32 v{T[4]}, 0x13, v{T[3]}")
    a(f"v_bfe_u32 v{T[5]}, v{T[3]}, 2, 1")
    a(f"v_bfe_u32 v{T[6]}, v{T[3]}, 3, 1")
    a(f"v_lshl_add_u32 v{T[4]}, v{T[5]}, 3, v{T[4]}")
    a(f"v_lshl_add_u32 v{T[4]}, v{T[6]}, 2, v{T[4]}")
    a(f"v_lshlrev_b32 v{T[4]}, 5, v{T[4]}")
    a(f"v_and_b32 v{T[5]}, 1, v{vLane}")
    a(f"v_lshl_add_u32 v{T[4]}, v{T[5]}, 4, v{T[4]}")
    a("s_waitcnt lgkmcnt(0)")
    srd(a, sX, 16, 0x200000)
    common_srds()
    vqb = VQ(a)
    a(f"s_lshl_b32 s{sT0}, s2, 3")
    a(f"s_add_u32 s{sI0}, s{sT0}, s{sW}")
    a(f"s_cmp_eq_u32 s{sI0}, 1")
    a(f"s_cbranch_scc0 {P}NORST")
    for r in range(4): a(f"v_mov_b32 v{32+r}, 0")
    a(f"s_mov_b32 s{sT0}, {WS_GFL}")
    for j in range(4):
        a(f"buffer_store_dwordx4 v[32:35], v{vL16}, {W}, s{sT0} offen offset:{j*1024}{SC}")
    a.label(f"{P}NORST")
    xpos(vqb, 0)
    a(f"s_cmp_eq_u32 s{sTYPE}, 0")
    a(f"s_cselect_b32 s{sKV}, s20, s22")
    a(f"s_cselect_b32 s{sKV+1}, s21, s23")
    a(f"s_mov_b32 s{sKV+2}, 16384")
    a(f"s_mov_b32 s{sKV+3}, 0x00020000")
    a(f"s_lshl_b32 s{sT0}, s{sW}, 12")
    a(f"s_add_u32 m0, s{sT0}, {KVW}")
    for i in range(4):
        vqb.issue("KVW", f"buffer_load_dwordx4 v{T[4]}, s[{sKV}:{sKV+3}], s{sT0} offen offset:{i*1024} lds")
    srd(a, sGT, 32, 1024)
    a(f"s_mov_b32 m0, {GATE}")
    vqb.issue("KVW", f"buffer_load_dwordx4 v{vL16}, s[{sGT}:{sGT+3}], 0 offen lds")
    xpos(vqb, 2)
    xpos(vqb, 3)
    a(f"s_cmp_eq_u32 s{sI0}, 1")
    a(f"s_cbranch_scc0 {P}NORST2")
    a(f"s_waitcnt vmcnt({len(vqb.q)})")
    a(f"v_mov_b32 v36, 1")
    a(f"buffer_store_dword v36, off, s[{sDBG}:{sDBG+3}], 0{SC}")
    a.label(f"{P}NORST2")
    a(f"v_lshrrev_b32 v{T[0]}, 5, v{vLane}")
    a(f"v_and_b32 v{T[1]}, 31, v{vLane}")
    a(f"v_and_b32 v{T[2]}, 15, v{T[1]}")
    a(f"v_xor_b32 v{T[2]}, v{T[2]}, v{T[0]}")
    a(f"v_lshlrev_b32 v{T[2]}, 4, v{T[2]}")
    a(f"v_lshl_add_u32 v{vBs[0]}, v{T[1]}, 8, v{T[2]}")
    for i in range(1, 8): a(f"v_xor_b32 v{vBs[i]}, {32*i}, v{vBs[0]}")
    a(f"v_bfe_u32 v{T[2]}, v{vLane}, 2, 2")
    a(f"v_lshl_add_u32 v{T[3]}, v{T[0]}, 3, v{T[2]}")
    a(f"v_bfe_u32 v{T[4]}, v{vLane}, 4, 1")
    a(f"v_lshlrev_b32 v{T[4]}, 5, v{T[4]}")
    a(f"v_and_b32 v{T[5]}, 3, v{vLane}")
    a(f"v_lshl_add_u32 v{T[4]}, v{T[5]}, 3, v{T[4]}")
    a(f"s_cmp_eq_u32 s{sW}, 0")
    a(f"s_cbranch_scc0 {P}HROLE")

    def store_frag(role, r, d, so, off, vq):
        for k in range(4):
            if role == 'Q':
                a(f"v_mul_f32 v{r+2*k}, {f32hex(QS2)}, v{r+2*k}")
                a(f"v_mul_f32 v{r+2*k+1}, {f32hex(QS2)}, v{r+2*k+1}")
            a(f"v_cvt_pk_bf16_f32 v{d+k}, v{r+2*k}, v{r+2*k+1}")
            if role != 'Q': a(f"v_pk_max_i16 v{d+k}, v{d+k}, 0")
        if role == 'Q': a(f"ds_write_b128 v{so}, {r4(d)} offset:{off}")
        else: vq.issue("HST", f"buffer_store_dwordx4 {r4(d)}, v{vL16}, {W}, s{so} offen offset:{off}{SC}")

    def big(role):
        import copy
        vq = VQ(a); vq.q = list(vqb.q); vq.done = vqb.done
        pitch = 128 if role == 'Q' else 448
        if role == 'Q':
            a(f"v_lshl_add_u32 v{vAs[0]}, v{T[3]}, 7, v{T[4]}")
            a(f"v_bfe_u32 v{T[5]}, v{vLane}, 3, 1")
            a(f"v_lshl_add_u32 v{vAs[0]}, v{T[5]}, 6, v{vAs[0]}")
            a(f"v_add_u32 v{vAs[0]}, {RING}, v{vAs[0]}")
            a(f"v_xor_b32 v{vAt[0]}, 64, v{vAs[0]}")
            for s_ in range(1, 4):
                a(f"v_add_u32 v{vAs[s_]}, {s_*SLOT}, v{vAs[0]}")
                a(f"v_add_u32 v{vAt[s_]}, {s_*SLOT}, v{vAt[0]}")
        else:
            a(f"v_mul_u32_u24 v{vAs[0]}, 448, v{T[3]}")
            a(f"v_add_u32 v{vAs[0]}, v{vAs[0]}, v{T[4]}")
            a(f"s_lshl_b32 s{sT0}, s{sW}, 7")
            a(f"s_add_u32 s{sT0}, s{sT0}, {RING + HOFF - 128}")
            a(f"v_add_u32 v{vAs[0]}, s{sT0}, v{vAs[0]}")
            for s_ in range(1, 4): a(f"v_add_u32 v{vAs[s_]}, {s_*SLOT}, v{vAs[0]}")
        for r in range(64): a(f"v_mov_b32 v{AACC+r}, 0")
        def reads(c, ksl):
            buf = ksl
            rd = []
            sl = c & 3
            for ct in range(2):
                for t in range(2):
                    if role == 'Q':
                        rd.append(f"ds_read_b64_tr_b16 {r2(AF[buf][ct]+2*t)}, v{vAs[sl] if ct == 0 else vAt[sl]} offset:{ksl*16*pitch + t*4*pitch}")
                    else:
                        rd.append(f"ds_read_b64_tr_b16 {r2(AF[buf][ct]+2*t)}, v{vAs[sl]} offset:{ksl*16*pitch + t*4*pitch + ct*64}")
            for ts in range(2):
                rd.append(f"ds_read_b128 {r4(BF[buf][ts])}, v{vBs[2*(c&3)+ksl]} offset:{(c>>2)*16384 + ts*8192}")
            return [rd[0], rd[1], rd[4], rd[5], rd[2], rd[3]]
        def mf(buf, i):
            ct, ts = [(0, 0), (0, 1), (1, 1), (1, 0)][i]
            return f"v_mfma_f32_32x32x16_bf16 {r16(aacc(ct,ts))}, {r4(AF[buf][ct])}, {r4(BF[buf][ts])}, {r16(aacc(ct,ts))}"
        vq.wait("X0")
        a("s_barrier")
        if not MARKC: ts_mark(a, MA[0])
        for l in reads(0, 0): a(l)
        for c in range(16):
            rd = reads(c, 1)
            a("s_waitcnt lgkmcnt(3)")
            a(mf(0, 0)); a(rd[0]); a(rd[1]); a(rd[2])
            a("s_waitcnt lgkmcnt(5)")
            a(mf(0, 1)); a(rd[3])
            a("s_waitcnt lgkmcnt(4)")
            a(mf(0, 2)); a(rd[4]); a(rd[5])
            a(mf(0, 3))
            a("s_waitcnt lgkmcnt(3)")
            a(mf(1, 0))
            if c == 15: break
            if c == MINI_C[0] - 1: vq.wait("KVW")
            if c == XW[0]: vq.wait("X2")
            if c == XW[1]: vq.wait("X3")
            a("s_waitcnt lgkmcnt(0)")
            a("s_barrier")
            if MARKC:
                if c in MARKC: ts_mark(a, MA[MARKC.index(c)])
            elif c == CCHK: ts_mark(a, MA[1])
            rd = reads(c + 1, 0)
            a(rd[0]); a(rd[1]); a(rd[2])
            a(mf(1, 1)); a(rd[3]); a(rd[4]); a(rd[5])
            a(mf(1, 2)); a(mf(1, 3))
            if c == CCHK: b_issue(vq)
            if c == CSET - 1:
                b_setup()
                a("s_waitcnt lgkmcnt(0)")
        a("s_waitcnt lgkmcnt(0)")
        a(mf(1, 1)); a(mf(1, 2)); a(mf(1, 3))
        if not MARKC: ts_mark(a, MA[2])
        if role == 'Q':
            a(f"v_add_u32 v{T[0]}, {QX}, v{vL16}")
            d = 32
            for ts in range(2):
                for ct in range(2):
                    for f in range(2):
                        store_frag('Q', aacc(ct, ts) + 8 * f, d, T[0], (4 * ts + 2 * ct + f) * 1024, vq)
                        d = 32 + ((d - 32 + 4) % 32)
        else:
            a(f"s_mul_i32 s{sT0}, s{sTB}, 224")
            a(f"s_mul_i32 s{sT1}, s{sCG}, 14")
            a(f"s_add_u32 s{sT0}, s{sT0}, s{sT1}")
            a(f"s_lshl_b32 s{sT1}, s{sW}, 2")
            a(f"s_add_u32 s{sT0}, s{sT0}, s{sT1}")
            a(f"s_lshl_b32 s{sT0}, s{sT0}, 10")
            a(f"s_add_u32 s{sT0}, s{sT0}, {WS_HF - 4096}")
            a(f"s_add_u32 s{sT1}, s{sT0}, {112*1024}")
            d = 32
            for ts in range(2):
                for ct in range(2):
                    for f in range(2):
                        store_frag('H', aacc(ct, ts) + 8 * f, d, sT0 if ts == 0 else sT1, (ct * 2 + f) * 1024, vq)
                        d = 32 + ((d - 32 + 4) % 32)
        to_phase_b(vq)

    big('Q')
    a.label(f"{P}HROLE")
    big('H')

    a.label(f"{P}LOADER")
    vQs = 250; vHs = [251, 252, 253, 254]; vW2 = 255
    a(f"v_lshrrev_b32 v{T[0]}, 3, v{vLane}")
    a(f"v_bfe_u32 v{T[1]}, v{T[0]}, 1, 1")
    a(f"v_lshlrev_b32 v{T[1]}, 2, v{T[1]}")
    a(f"v_and_b32 v{T[2]}, 7, v{vLane}")
    a(f"v_xor_b32 v{T[2]}, v{T[2]}, v{T[1]}")
    a(f"v_lshlrev_b32 v{T[2]}, 4, v{T[2]}")
    a(f"v_lshl_add_u32 v{vQs}, v{T[0]}, 10, v{T[2]}")
    a(f"s_lshl_b32 s{sT0}, s{sLW}, 13")
    a(f"s_lshl_b32 s{sT1}, s{sCG}, 7")
    a(f"s_add_u32 s{sSoQ}, s{sT0}, s{sT1}")
    a(f"s_mul_i32 s{sI0}, s{sLW}, 3")
    a(f"s_lshr_b32 s{sT0}, s{sLW}, 1")
    a(f"s_and_b32 s{sT0}, s{sT0}, s{sLW}")
    a(f"s_add_u32 s{sI0}, s{sI0}, s{sT0}")
    a(f"s_lshl_b32 s{sT0}, s{sI0}, 6")
    for e in range(4):
        a(f"v_add_u32 v{T[0]}, s{sT0}, v{vLane}")
        if e: a(f"v_add_u32 v{T[0]}, {64*e}, v{T[0]}")
        a(f"v_mul_u32_u24 v{T[1]}, 2341, v{T[0]}")
        a(f"v_lshrrev_b32 v{T[1]}, 16, v{T[1]}")
        a(f"v_mul_u32_u24 v{T[2]}, 28, v{T[1]}")
        a(f"v_sub_u32 v{T[2]}, v{T[0]}, v{T[2]}")
        a(f"v_mul_u32_u24 v{T[1]}, 3584, v{T[1]}")
        a(f"v_lshl_add_u32 v{vHs[e]}, v{T[2]}, 4, v{T[1]}")
    a(f"s_mul_i32 s{sSoH}, s{sCG}, 448")
    a(f"s_lshl_b32 s{sI0}, s{sI0}, 10")
    a(f"s_add_u32 s{sI0}, s{sI0}, {HOFF}")
    a(f"s_lshl_b32 s{sCC}, s{sG}, 2")
    a(f"v_lshrrev_b32 v{T[5]}, 2, v{vLane}")
    a(f"v_lshlrev_b32 v{T[5]}, 10, v{T[5]}")
    a(f"v_and_b32 v{T[6]}, 3, v{vLane}")
    a(f"v_lshl_add_u32 v{vW2}, v{T[6]}, 4, v{T[5]}")
    a(f"s_lshl_b32 s{sW2s}, s{sTB}, 3")
    a(f"s_add_u32 s{sW2s}, s{sW2s}, s{sCG}")
    a(f"s_and_b32 s{sT1}, s{sW2s}, 15")
    a(f"s_lshl_b32 s{sT1}, s{sT1}, 6")
    a(f"s_lshr_b32 s{sW2s}, s{sW2s}, 4")
    a(f"s_mul_i32 s{sW2s}, s{sW2s}, {112*1024}")
    a(f"s_add_u32 s{sW2s}, s{sW2s}, s{sT1}")
    a("s_waitcnt lgkmcnt(0)")
    srd(a, sWQ, 18, 0x80000)
    srd(a, sW1, 28, 512 * 3584)
    srd(a, sX, 16, 0x200000)

    def chunk_dma(vq, c, n):
        sl = RING + (c & 3) * SLOT
        a(f"s_lshl_b32 s{sT0}, s{sLW}, 10")
        a(f"s_add_u32 m0, s{sT0}, {sl}")
        a(f"s_lshl_b32 s{sT0}, s{sCC}, 15")
        a(f"s_add_u32 s{sT0}, s{sT0}, s{sSoQ}")
        vq.issue(f"C{c}", f"buffer_load_dwordx4 v{vQs}, s[{sWQ}:{sWQ+3}], s{sT0} offen lds")
        a(f"s_add_u32 m0, s{sI0}, {sl}")
        a(f"s_mul_i32 s{sT0}, s{sCC}, {32*3584}")
        a(f"s_add_u32 s{sT0}, s{sT0}, s{sSoH}")
        for e in range(n - 1):
            vq.issue(f"C{c}", f"buffer_load_dwordx4 v{vHs[e]}, s[{sW1}:{sW1+3}], s{sT0} offen lds")
            if e < n - 2: a("s_add_u32 m0, m0, 1024")
        a(f"s_add_u32 s{sCC}, s{sCC}, 1")
        a(f"s_and_b32 s{sCC}, s{sCC}, 15")

    def loader(role):
        L = f"{P}{role}"
        vq = VQ(a)
        n = 4 if role == 'C' else 5
        chunk_dma(vq, 0, n); chunk_dma(vq, 1, n)
        xpos(vq, 1)
        chunk_dma(vq, 2, n)
        if role == 'W':
            srd(a, sW2, 30, 1792 * 1024)
            a(f"s_mov_b32 m0, {W2P}")
            a(f"s_mov_b32 s{sT0}, s{sW2s}")
            for i in range(7):
                vq.issue("W2", f"buffer_load_dwordx4 v{vW2}, s[{sW2}:{sW2+3}], s{sT0} offen lds")
                if i < 6:
                    a("s_add_u32 m0, m0, 1024")
                    a(f"s_add_u32 s{sT0}, s{sT0}, 16384")
        chunk_dma(vq, 3, n)
        common_srds()
        R = {'C': c8_role, 'M': mini_role, 'W': w2_role}[role](vq)
        R['pre']()
        vq.wait("C0")
        a("s_barrier")
        if not MARKC: ts_mark(a, MA[0])
        for c in range(16):
            R['work1'](c)
            if 1 <= c <= 12: chunk_dma(vq, c + 3, n)
            if c == CCHK + 1: b_issue(vq)
            if c == CSET: b_setup()
            R['work2'](c)
            if c == 15: break
            vq.wait(f"C{c+1}")
            R['endit'](c)
            a("s_waitcnt lgkmcnt(0)")
            a("s_barrier")
            if MARKC:
                if c in MARKC: ts_mark(a, MA[MARKC.index(c)])
            elif c == CCHK: ts_mark(a, MA[1])
        if not MARKC: ts_mark(a, MA[2])
        R['post']()
        to_phase_b(vq)

    nop = lambda *x: None
    def c8_role(vq):
        vA = [26, 27, 28, 29]; vB8 = [236 + i for i in range(8)]
        AFc = [32, 36]; BFc = [40, 44]; CACC = 64
        def pre():
            a(f"v_lshrrev_b32 v{T[0]}, 5, v{vLane}")
            a(f"v_and_b32 v{T[1]}, 31, v{vLane}")
            a(f"v_and_b32 v{T[2]}, 15, v{T[1]}")
            a(f"v_xor_b32 v{T[2]}, v{T[2]}, v{T[0]}")
            a(f"v_lshlrev_b32 v{T[2]}, 4, v{T[2]}")
            a(f"v_lshl_add_u32 v{vB8[0]}, v{T[1]}, 8, v{T[2]}")
            a(f"s_lshl_b32 s{sT0}, s{sLW}, 13")
            a(f"v_add_u32 v{vB8[0]}, s{sT0}, v{vB8[0]}")
            for i in range(1, 8): a(f"v_xor_b32 v{vB8[i]}, {32*i}, v{vB8[0]}")
            a(f"v_bfe_u32 v{T[2]}, v{vLane}, 2, 2")
            a(f"v_lshl_add_u32 v{T[3]}, v{T[0]}, 3, v{T[2]}")
            a(f"v_bfe_u32 v{T[4]}, v{vLane}, 4, 1")
            a(f"v_lshlrev_b32 v{T[4]}, 5, v{T[4]}")
            a(f"v_and_b32 v{T[5]}, 3, v{vLane}")
            a(f"v_lshl_add_u32 v{T[4]}, v{T[5]}, 3, v{T[4]}")
            a(f"v_mul_u32_u24 v{vA[0]}, 448, v{T[3]}")
            a(f"v_add_u32 v{vA[0]}, v{vA[0]}, v{T[4]}")
            a(f"v_add_u32 v{vA[0]}, {RING + HOFF + 6*64}, v{vA[0]}")
            for s_ in range(1, 4): a(f"v_add_u32 v{vA[s_]}, {s_*SLOT}, v{vA[0]}")
            for r in range(16): a(f"v_mov_b32 v{CACC+r}, 0")
        def work1(c):
            for ksl in range(2):
                for t in range(2):
                    a(f"ds_read_b64_tr_b16 {r2(AFc[ksl]+2*t)}, v{vA[c&3]} offset:{ksl*16*448 + t*4*448}")
                a(f"ds_read_b128 {r4(BFc[ksl])}, v{vB8[2*(c&3)+ksl]} offset:{(c>>2)*16384}")
        def work2(c):
            a("s_waitcnt lgkmcnt(3)" if c != CSET else "s_waitcnt lgkmcnt(0)")
            a(f"v_mfma_f32_32x32x16_bf16 {r16(CACC)}, {r4(AFc[0])}, {r4(BFc[0])}, {r16(CACC)}")
            a("s_waitcnt lgkmcnt(0)")
            a(f"v_mfma_f32_32x32x16_bf16 {r16(CACC)}, {r4(AFc[1])}, {r4(BFc[1])}, {r16(CACC)}")
        def post():
            a(f"s_lshl_b32 s{sT0}, s{sTB}, 1")
            a(f"s_add_u32 s{sT0}, s{sT0}, s{sLW}")
            a(f"s_mul_i32 s{sT0}, s{sT0}, 112")
            a(f"s_mul_i32 s{sT1}, s{sCG}, 14")
            a(f"s_add_u32 s{sT0}, s{sT0}, s{sT1}")
            a(f"s_lshl_b32 s{sT0}, s{sT0}, 10")
            a(f"s_add_u32 s{sT0}, s{sT0}, {WS_HF + 12*1024}")
            for f in range(2): store_frag('H', CACC + 8 * f, 32 + 4 * f, sT0, f * 1024, vq)
        return dict(pre=pre, work1=work1, work2=work2, endit=nop, post=post)

    def mini_role(vq):
        vXa = [26, 27, 28, 29]; vWm, vGm, vWt, vGt = 30, 31, 64, 65
        XF = [128 + 4 * j for j in range(4)]; WF = [144 + 4 * j for j in range(4)]; GF = [160 + 4 * j for j in range(4)]
        D = 56; DG = 60
        L = f"{P}M"
        def pre():
            a(f"v_and_b32 v{T[0]}, 15, v{vLane}")
            a(f"v_lshrrev_b32 v{T[1]}, 4, v{vLane}")
            a(f"v_xor_b32 v{T[2]}, v{T[0]}, v{T[1]}")
            a(f"v_lshlrev_b32 v{T[2]}, 4, v{T[2]}")
            a(f"v_lshl_add_u32 v{vXa[0]}, v{T[0]}, 8, v{T[2]}")
            a(f"s_lshl_b32 s{sT0}, s{sTT}, 12")
            a(f"v_add_u32 v{vXa[0]}, s{sT0}, v{vXa[0]}")
            for j in range(1, 4): a(f"v_xor_b32 v{vXa[j]}, {64*j}, v{vXa[0]}")
            a(f"v_lshrrev_b32 v{T[2]}, 1, v{T[1]}")
            a(f"v_lshlrev_b32 v{T[2]}, 4, v{T[2]}")
            a(f"v_and_b32 v{T[3]}, 1, v{T[1]}")
            a(f"v_lshl_add_u32 v{T[2]}, v{T[3]}, 2, v{T[2]}")
            a(f"v_lshrrev_b32 v{T[3]}, 2, v{T[0]}")
            a(f"v_add_u32 v{T[2]}, v{T[2]}, v{T[3]}")
            a(f"v_lshlrev_b32 v{T[2]}, 5, v{T[2]}")
            a(f"v_and_b32 v{T[3]}, 3, v{T[0]}")
            a(f"v_lshl_add_u32 v{T[2]}, v{T[3]}, 3, v{T[2]}")
            a(f"v_add_u32 v{vWm}, {KVW}, v{T[2]}")
            a(f"v_lshlrev_b32 v{vGm}, 4, v{T[1]}")
            a(f"v_add_u32 v{vGm}, {GATE}, v{vGm}")
            for r in range(8): a(f"v_mov_b32 v{D+r}, 0")
        def work1(c): pass
        def work2(c):
            ps = [p for p in range(4) if MINI_C[p] == c]
            for p in ps:
                a(f"s_add_u32 s{sT0}, s{sG}, {p}")
                a(f"s_and_b32 s{sT0}, s{sT0}, 3")
                a(f"s_lshl_b32 s{sT1}, s{sT0}, 12")
                a(f"v_add_u32 v{vWt}, s{sT1}, v{vWm}")
                a(f"s_lshl_b32 s{sT1}, s{sT0}, 8")
                a(f"v_add_u32 v{vGt}, s{sT1}, v{vGm}")
                for j in range(4):
                    a(f"ds_read_b128 {r4(XF[j])}, v{vXa[j]} offset:{p*16384}")
                    for t in range(2):
                        a(f"ds_read_b64_tr_b16 {r2(WF[j]+2*t)}, v{vWt} offset:{j*1024 + t*256}")
                    a(f"ds_read_b128 {r4(GF[j])}, v{vGt} offset:{j*64}")
                a("s_waitcnt lgkmcnt(0)")
                a(f"s_cmp_eq_u32 s{sTYPE}, 0")
                a(f"s_cbranch_scc0 {L}_V{p}")
                for j in range(4):
                    a(f"v_mfma_f32_16x16x32_bf16 {r4(D)}, {r4(WF[j])}, {r4(XF[j])}, {r4(D)}")
                    a(f"v_mfma_f32_16x16x32_bf16 {r4(DG)}, {r4(GF[j])}, {r4(XF[j])}, {r4(DG)}")
                a(f"s_branch {L}_S{p}")
                a.label(f"{L}_V{p}")
                for j in range(4):
                    a(f"v_mfma_f32_16x16x32_bf16 {r4(D)}, {r4(XF[j])}, {r4(WF[j])}, {r4(D)}")
                a.label(f"{L}_S{p}")
                if p == 3: fin()
        def fin():
            Ee = 32
            a(f"v_and_b32 v{T[0]}, 15, v{vLane}")
            a(f"v_lshrrev_b32 v{T[1]}, 4, v{vLane}")
            a(f"v_cvt_pk_bf16_f32 v{Ee}, v{D}, v{D+1}")
            a(f"v_cvt_pk_bf16_f32 v{Ee+1}, v{D+2}, v{D+3}")
            a(f"v_and_b32 v{T[2]}, 1, v{T[1]}")
            a(f"v_lshrrev_b32 v{T[3]}, 1, v{T[1]}")
            a(f"v_lshlrev_b32 v{T[3]}, 3, v{T[3]}")
            a(f"v_lshl_add_u32 v{T[3]}, v{T[0]}, 4, v{T[3]}")
            a(f"s_lshl_b32 s{sT0}, s{sTB}, 1")
            a(f"s_lshr_b32 s{sT1}, s{sTT}, 1")
            a(f"s_add_u32 s{sT0}, s{sT0}, s{sT1}")
            a(f"s_lshl_b32 s{sT0}, s{sT0}, 10")
            a(f"s_and_b32 s{sT1}, s{sTT}, 1")
            a(f"s_lshl_b32 s{sT2}, s{sTB}, 2")
            a(f"s_add_u32 s{sT2}, s{sT2}, s{sTT}")
            a(f"s_lshl_b32 s{sT2}, s{sT2}, 2")
            for q in range(2):
                a(f"v_lshlrev_b32 v{Ee+4+2*q}, 16, v{Ee+q}")
                a(f"v_and_b32 v{Ee+5+2*q}, 0xffff0000, v{Ee+q}")
            a(f"s_cmp_eq_u32 s{sTYPE}, 0")
            a(f"s_cbranch_scc0 {L}_VST")
            a(f"v_lshl_add_u32 v{T[3]}, v{T[2]}, 9, v{T[3]}")
            a(f"s_lshl_b32 s{sT1}, s{sT1}, 8")
            a(f"s_add_u32 s{sT0}, s{sT0}, s{sT1}")
            a(f"s_add_u32 s{sT0}, s{sT0}, {WS_KF}")
            a(f"buffer_store_dwordx2 {r2(Ee)}, v{T[3]}, {W}, s{sT0} offen{SC}")
            a(f"v_mul_f32 v{Ee+8}, v{Ee+4}, v{Ee+4}")
            for k in range(1, 4): a(f"v_fmac_f32 v{Ee+8}, v{Ee+4+k}, v{Ee+4+k}")
            a(f"v_mov_b32 v{Ee+9}, v{Ee+8}")
            a(f"v_permlane32_swap_b32 v{Ee+8}, v{Ee+9}")
            a(f"v_add_f32 v{Ee+8}, v{Ee+8}, v{Ee+9}")
            a(f"v_mov_b32 v{Ee+9}, v{Ee+8}")
            a(f"v_permlane16_swap_b32 v{Ee+8}, v{Ee+9}")
            a(f"v_add_f32 v{Ee+8}, v{Ee+8}, v{Ee+9}")
            for sh in (1, 2, 4, 8):
                a(f"v_max_u32_dpp v{Ee+8}, v{Ee+8}, v{Ee+8} row_shr:{sh} row_mask:0xf bank_mask:0xf")
            a(f"v_readlane_b32 s{sT3}, v{Ee+8}, 15")
            a(f"v_mul_f32 v{DG}, {f32hex(-1.4426950408889634)}, v{DG}")
            a(f"v_exp_f32 v{DG}, v{DG}")
            a(f"v_add_f32 v{DG}, 1.0, v{DG}")
            a(f"v_rcp_f32 v{DG}, v{DG}")
            a(f"v_lshlrev_b32 v{T[4]}, 2, v{vLane}")
            a(f"s_lshl_b32 s{sT0}, s{sT2}, 4")
            a(f"s_add_u32 s{sT0}, s{sT0}, {WS_G}")
            a(f"s_add_u32 s{sT2}, s{sT2}, {WS_KMAX}")
            a("s_mov_b64 exec, 0xffff")
            a(f"buffer_store_dword v{DG}, v{T[4]}, {W}, s{sT0} offen{SC}")
            a(f"s_branch {L}_MX")
            a.label(L + "_VST")
            a(f"v_lshl_add_u32 v{T[3]}, v{T[2]}, 8, v{T[3]}")
            a(f"s_lshl_b32 s{sT1}, s{sT1}, 9")
            a(f"s_add_u32 s{sT0}, s{sT0}, s{sT1}")
            a(f"s_add_u32 s{sT1}, s{sT0}, {WS_VB}")
            a(f"s_add_u32 s{sT0}, s{sT0}, {WS_VF}")
            a(f"buffer_store_dwordx2 {r2(Ee)}, v{T[3]}, {W}, s{sT1} offen{SC}")
            for q in range(2):
                a(f"v_cvt_pkrtz_f16_f32 v{Ee+8+q}, v{Ee+4+2*q}, v{Ee+5+2*q}")
            a(f"buffer_store_dwordx2 {r2(Ee+8)}, v{T[3]}, {W}, s{sT0} offen{SC}")
            for q in range(4): a(f"v_and_b32 v{Ee+4+q}, 0x7fffffff, v{Ee+4+q}")
            a(f"v_max_u32 v{Ee+4}, v{Ee+4}, v{Ee+5}")
            a(f"v_max3_u32 v{Ee+4}, v{Ee+4}, v{Ee+6}, v{Ee+7}")
            a(f"v_mov_b32 v{Ee+5}, v{Ee+4}")
            a(f"v_permlane32_swap_b32 v{Ee+4}, v{Ee+5}")
            a(f"v_max_u32 v{Ee+4}, v{Ee+4}, v{Ee+5}")
            a(f"v_mov_b32 v{Ee+5}, v{Ee+4}")
            a(f"v_permlane16_swap_b32 v{Ee+4}, v{Ee+5}")
            a(f"v_max_u32 v{Ee+4}, v{Ee+4}, v{Ee+5}")
            for sh in (1, 2, 4, 8):
                a(f"v_max_u32_dpp v{Ee+4}, v{Ee+4}, v{Ee+4} row_shr:{sh} row_mask:0xf bank_mask:0xf")
            a(f"v_readlane_b32 s{sT3}, v{Ee+4}, 15")
            a(f"s_add_u32 s{sT2}, s{sT2}, {WS_VMAX}")
            a.label(L + "_MX")
            a("s_mov_b64 exec, 1")
            a(f"v_mov_b32 v{Ee+10}, s{sT3}")
            a(f"v_mov_b32 v{Ee+11}, 0")
            vq.q.append("MST"); vq.q.append("MST")
            vq.issue("MST", f"buffer_store_dword v{Ee+10}, v{Ee+11}, {W}, s{sT2} offen{SC}")
            a("s_mov_b64 exec, -1")
        def endit(c):
            if c == CFLAG - 1: vq.wait("MST")
        return dict(pre=pre, work1=work1, work2=work2, endit=endit, post=nop)

    def w2_role(vq):
        vR = 28; F = 32; vFl = 26; vFa = 27
        def pre():
            a(f"v_lshrrev_b32 v{T[0]}, 5, v{vLane}")
            a(f"v_bfe_u32 v{T[2]}, v{vLane}, 2, 2")
            a(f"v_lshl_add_u32 v{T[3]}, v{T[0]}, 2, v{T[2]}")
            a(f"v_lshlrev_b32 v{T[3]}, 6, v{T[3]}")
            a(f"v_bfe_u32 v{T[4]}, v{vLane}, 4, 1")
            a(f"v_lshl_add_u32 v{T[3]}, v{T[4]}, 5, v{T[3]}")
            a(f"v_and_b32 v{T[5]}, 3, v{vLane}")
            a(f"v_lshl_add_u32 v{T[3]}, v{T[5]}, 3, v{T[3]}")
            a(f"v_add_u32 v{vR}, {W2P}, v{T[3]}")
            a(f"s_lshl_b32 s{sT0}, s{sTB}, 3")
            a(f"s_add_u32 s{sT0}, s{sT0}, s{sCG}")
            a(f"s_lshl_b32 s{sT2}, s{sT0}, 5")
            a(f"s_add_u32 s{sT2}, s{sT2}, {WS_HFL}")
            a(f"s_and_b32 s{sT1}, s{sT0}, 15")
            a(f"s_mul_i32 s{sT1}, s{sT1}, 112")
            a(f"s_lshr_b32 s{sT0}, s{sT0}, 4")
            a(f"s_mul_i32 s{sT0}, s{sT0}, 7")
            a(f"s_add_u32 s{sT0}, s{sT0}, s{sT1}")
            a(f"s_lshl_b32 s{sT0}, s{sT0}, 10")
            a(f"s_add_u32 s{sM}, s{sT0}, {WS_W2F}")
            a(f"s_lshl_b32 s{sW2m}, s2, 13")
            a(f"s_add_u32 s{sW2m}, s{sW2m}, {WS_OF}")
            for r in range(4): a(f"v_mov_b32 v{F+8+r}, -1")
            for r in range(4): a(f"v_mov_b32 v{F+4+r}, 0")
            a("s_mov_b64 exec, 3")
            vq.issue("WST", f"buffer_store_dwordx4 {r4(F+4)}, v{vL16}, {W}, s{sT2} offen{SC}")
            a("s_mov_b64 exec, -1")
            for i in range(8):
                vq.issue("WST", f"buffer_store_dwordx4 {r4(F+8)}, v{vL16}, {W}, s{sW2m} offen offset:{(i%4)*1024}{SC}")
                if i == 3: a(f"s_add_u32 s{sW2m}, s{sW2m}, 4096")
        def spin(tag, regs, reload_, want):
            a(f"s_mov_b32 s{sT0}, 8192")
            a.label(f"{P}{tag}")
            if len(regs) > 1:
                a(f"v_and_b32 v{regs[0]}, v{regs[0]}, v{regs[1]}")
                a(f"v_and_b32 v{regs[2]}, v{regs[2]}, v{regs[3]}")
                a(f"v_and_b32 v{regs[0]}, v{regs[0]}, v{regs[2]}")
            a(f"v_cmp_ne_u32 vcc, {want}, v{regs[0]}")
            a(f"s_cbranch_vccz {P}{tag}OK")
            a(f"s_sub_u32 s{sT0}, s{sT0}, 1")
            a(f"s_cmp_eq_u32 s{sT0}, 0")
            a(f"s_cbranch_scc1 {P}{tag}OK")
            reload_()
            a("s_waitcnt vmcnt(0)")
            a(f"s_branch {P}{tag}")
            a.label(f"{P}{tag}OK")
        PR = [32, 33, 34, 35]
        def work1(c):
            if c == CW2:
                for i in range(7):
                    for t in range(2):
                        a(f"ds_read_b64_tr_b16 {r2(F+12+4*i+2*t)}, v{vR} offset:{i*1024+t*512}")
            if c == CRD:
                vq.issue("RD", f"buffer_load_dword v{vFa}, off, s[{sDBG}:{sDBG+3}], 0{SC}")
            if c == CFLAG:
                a(f"v_mov_b32 v{vFl}, 1")
                a(f"s_and_b32 s{sT0}, s2, 63")
                a(f"s_lshl_b32 s{sT0}, s{sT0}, 4")
                a(f"s_lshr_b32 s{sT1}, s2, 6")
                a(f"s_lshl_b32 s{sT1}, s{sT1}, 10")
                a(f"s_add_u32 s{sT0}, s{sT0}, s{sT1}")
                a(f"s_add_u32 s{sT0}, s{sT0}, {WS_GFL}")
                vq.issue("FLG", f"buffer_store_dword v{vFl}, off, {W}, s{sT0}{SC}")
            if c == CPOLL:
                a(f"s_mov_b32 s{sM}, {WS_GFL}")
                for j in range(4):
                    vq.issue("POLL", f"buffer_load_dword v{PR[j]}, v{vL16}, {W}, s{sM} offen offset:{j*1024}{SC}")
        def work2(c):
            if c == CW2:
                for i in range(7):
                    a(f"s_waitcnt lgkmcnt({12-2*i})")
                    vq.issue("WST", f"buffer_store_dwordx4 {r4(F+12+4*i)}, v{vL16}, {W}, s{sM} offen{SC}")
                    a(f"s_add_u32 s{sM}, s{sM}, 1024")
        def endit(c):
            if c == CW2 - 1: vq.wait("W2")
            if c == CFLAG - 1:
                vq.wait("WST"); vq.wait("RD")
                spin("RDW", [vFa], lambda: a(f"buffer_load_dword v{vFa}, off, s[{sDBG}:{sDBG+3}], 0{SC}"), 1)
            if c == CCHK:
                vq.wait("POLL")
                def rl():
                    for j in range(4):
                        a(f"buffer_load_dword v{PR[j]}, v{vL16}, {W}, s{sM} offen offset:{j*1024}{SC}")
                spin("POLL", PR, rl, 1)
        return dict(pre=pre, work1=work1, work2=work2, endit=endit, post=nop)

    a(f"s_cmp_ge_u32 s{sW}, 6")
    a(f"s_cbranch_scc1 {P}L67")
    loader('C')
    a.label(f"{P}L67")
    a(f"s_cmp_eq_u32 s{sW}, 7")
    a(f"s_cbranch_scc1 {P}L7")
    loader('M')
    a.label(f"{P}L7")
    loader('W')

    a.label("B_ENTRY")
    vq = VQ(a); lq = LQ(a)
    vq.q += ["F0.0", "F0.3", "F1.0", "F1.3", "HST"]
    dcount[0] = 4; fstep.clear()
    sW, sTB, sHG, sT0, sT1, sT2, sT3 = bW, bTB, bHG, bT0, bT1, bT2, bT3
    srd(a, sOUT, 6, 0x200000)
    srd(a, sWO, 4, 0x80000)
    km = vKM
    a(f"v_max_u32 v{km}, v{km}, v{km+1}")
    a(f"v_max3_u32 v{km}, v{km}, v{km+2}, v{km+3}")
    for sh in (1, 2, 4, 8):
        a(f"v_max_u32_dpp v{km}, v{km}, v{km} row_shr:{sh} row_mask:0xf bank_mask:0xf")
    a(f"v_max_u32_dpp v{km}, v{km}, v{km} row_bcast:15 row_mask:0xa bank_mask:0xf")
    a(f"v_readlane_b32 s{sKM}, v{km}, 31")
    a(f"v_readlane_b32 s{sVM}, v{km}, 63")
    a(f"s_lshl_b32 s{sT0}, s{sW}, 10")
    a(f"s_add_u32 s{sT0}, s{sT0}, {QX}")
    a(f"v_add_u32 v{T[0]}, s{sT0}, v{vL16}")
    a(f"s_sub_u32 s{sT0}, s{sVM}, 0x3c800000")
    a(f"s_cmp_le_u32 s{sT0}, {0x47000000 - 0x3c800000}")
    a(f"s_cselect_b32 s{sT0}, 0, 0x7f800000")
    a("s_waitcnt lgkmcnt(0)")
    a("s_barrier")
    lq.issue("Q", f"ds_read_b128 {r4(Q)}, v{T[0]}")
    lq.issue("K0", f"ds_read_b128 {r4(KF)}, v{vL16}")
    lq.issue("K1", f"ds_read_b128 {r4(V1)}, v{vL16} offset:1024")
    lq.issue("VA0", f"ds_read_b128 {r4(V0)}, v{vV}")
    lq.wait("Q")
    a(f"v_mov_b32 v{T[2]}, 0")
    for r in range(4):
        a(f"v_dot2_f32_bf16 v{T[2]}, v{Q+r}, v{Q+r}, v{T[2]}")
    a(f"v_mov_b32 v{T[5]}, v{T[2]}")
    a(f"v_permlane32_swap_b32 v{T[2]}, v{T[5]}")
    a(f"v_add_f32 v{T[2]}, v{T[2]}, v{T[5]}")
    a(f"v_mul_f32 v{T[2]}, s{sKM}, v{T[2]}")
    a(f"v_sqrt_f32 v{T[2]}, v{T[2]}")
    a(f"v_add_f32 v{T[2]}, s{sT0}, v{T[2]}")
    a(f"v_sub_f32 v{CB}, {f32hex(TBITS / 65535.0)}, v{T[2]}")
    for r in range(1, 16): a(f"v_mov_b32 v{CB+r}, v{CB}")
    if not MARKC: ts_mark(a, MA[3])

    def valu3(Sx):
        seq = []
        for k in range(10):
            if k < 8: seq.append(f"v_cvt_pknorm_u16_f32 v{Y+k}, v{Sx+2*k}, v{Sx+2*k+1}")
            if 0 <= k - 1 < 8: seq.append(f"v_add_u32 v{Y2+(k-1)%4}, v{cA}, v{Y+k-1}")
            if 0 <= k - 2 < 8: seq.append(f"v_pk_fma_f16 v{Y+k-2}, v{Y2+(k-2)%4}, v{cM}, v{Y+k-2}")
        return seq

    aux = {}
    def at(t, pos, fn): aux.setdefault(t, {}).setdefault(pos, []).append(fn)
    kd = lambda: kv_dma(vq)
    for t in (0, 1, 2, 3): at(t, 5, kd)
    for t in (8, 10, 12, 15): at(t, 5, kd)
    for t in (24, 26, 28, 31): at(t, 5, kd)
    def g_loads():
        a(f"s_lshl_b32 s{sT0}, s{sTB}, 8")
        a(f"s_add_u32 s{sT0}, s{sT0}, {WS_G}")
        a(f"s_lshl_b32 s{sT1}, s{sTS}, 7")
        a(f"s_add_u32 s{sT1}, s{sT1}, s{sT0}")
        vq.issue("G", f"buffer_load_dword v{vGT}, v{vGF}, {W}, s{sT1} offen{SC}")
        a(f"s_lshl_b32 s{sT1}, s{sXB}, 7")
        a(f"s_add_u32 s{sT1}, s{sT1}, s{sT0}")
        vq.issue("G", f"buffer_load_dword v{vGF}, v{vGF}, {W}, s{sT1} offen{SC}")
    at(20, 5, g_loads)
    def hflag_set():
        vq.wait("HST")
        a(f"v_mov_b32 v{vHP}, 1")
        vq.issue("HFS", f"buffer_store_dword v{vHP}, off, {W}, s{sHFo}{SC}")
    at(USET, 1, hflag_set)
    def hflag_load():
        vq.issue("HFL", f"buffer_load_dword v{vHP}, v{vHA}, {W}, s{sHFi} offen{SC}")
    at(UPOLL, 1, hflag_load)
    def hflag_check():
        vq.wait("HFL")
        a(f"s_mov_b32 s{sPoll}, 8192")
        a.label("B_HP")
        a(f"v_cmp_ne_u32 vcc, 1, v{vHP}")
        a("s_cbranch_vccz B_HPOK")
        a(f"s_sub_u32 s{sPoll}, s{sPoll}, 1")
        a(f"s_cmp_eq_u32 s{sPoll}, 0")
        a("s_cbranch_scc1 B_HPOK")
        a(f"buffer_load_dword v{vHP}, v{vHA}, {W}, s{sHFi} offen{SC}")
        a("s_waitcnt vmcnt(0)")
        a("s_branch B_HP")
        a.label("B_HPOK")
        for st in (0, 1):
            for wh in (1, 2): ffn_load(vq, wh, st)
    at(UCHK, 1, hflag_check)
    wo_n = [0]
    def wo_dma():
        i = wo_n[0]; wo_n[0] += 1
        if i == 0:
            a(f"s_lshl_b32 s{sT0}, s{sNS}, 14")
            a(f"s_lshl_b32 s{sT1}, s{sXB}, 16")
            a(f"s_add_u32 s{sT0}, s{sT0}, s{sT1}")
            a(f"s_lshl_b32 s{sT1}, s{sTS}, 13")
            a(f"s_add_u32 m0, s{sT0}, s{sT1}")
        vq.issue("WO", f"buffer_load_dwordx4 v{vWo}, s[{sWO}:{sWO+3}], s{sWoS} offen lds")
        if i < 7:
            a(f"s_add_u32 m0, m0, 1024")
            a(f"s_add_u32 s{sWoS}, s{sWoS}, 8192")
    for t in range(47, 55): at(t, 5, wo_dma)
    bars = {14: "D3V", 30: "D5V", 46: "D7V", 58: None}
    nF = 60 - F0
    fsched = {}
    for i in range(56): fsched.setdefault(F0 + (i * nF) // 56, []).append(i)

    def ffn_mfma(i):
        st, m = i >> 2, i & 3
        buf = FB + (st & 1) * 16
        A0, A1, B0, B1 = buf, buf + 4, buf + 8, buf + 12
        pre = st + 2 < 14
        if m == 0:
            vq.wait(f"F{st}.1")
            a(f"v_mfma_f32_32x32x16_bf16 {r16(acc(0))}, {r4(A0)}, {r4(B0)}, {r16(acc(0))}")
        elif m == 1:
            vq.wait(f"F{st}.2")
            a(f"v_mfma_f32_32x32x16_bf16 {r16(acc(2))}, {r4(A0)}, {r4(B1)}, {r16(acc(2))}")
            if pre: ffn_load(vq, 0, st + 2)
        elif m == 2:
            vq.wait(f"F{st}.3")
            a(f"v_mfma_f32_32x32x16_bf16 {r16(acc(1))}, {r4(A1)}, {r4(B0)}, {r16(acc(1))}")
            if pre: ffn_load(vq, 1, st + 2)
        else:
            a(f"v_mfma_f32_32x32x16_bf16 {r16(acc(3))}, {r4(A1)}, {r4(B1)}, {r16(acc(3))}")
            if pre:
                ffn_load(vq, 2, st + 2); ffn_load(vq, 3, st + 2)

    def unit(t):
        x = t & 1; y = 1 - x
        Sx, Sy = S[x], S[y]
        tl = t & 7
        seq = valu3(Sx)
        if t in bars:
            if bars[t]: vq.wait(bars[t])
            a("s_barrier")
        fl = list(fsched.get(t, []))
        def slot0():
            if t > 0:
                lq.wait(f"VB{t-1}")
                a(f"v_mfma_f32_32x32x16_f16 {r16(O)}, {r4(V1)}, {r4(Y+4)}, {r16(O)}")
                lq.issue(f"VB{t}", f"ds_read_b128 {r4(V1)}, v{vV} offset:{tl*1024+512}")
            if len(fl) > 1: ffn_mfma(fl.pop(0))
        def slot1():
            if t == 0:
                lq.wait("K1")
                a(f"v_mfma_f32_32x32x16_bf16 {r16(Sy)}, {r4(V1)}, {r4(Q)}, {r16(CB)}")
                lq.issue("VB0", f"ds_read_b128 {r4(V1)}, v{vV} offset:512")
                lq.issue("K2", f"ds_read_b128 {r4(KF)}, v{vL16} offset:2048")
            elif t < 63:
                lq.wait(f"K{t+1}")
                a(f"v_mfma_f32_32x32x16_bf16 {r16(Sy)}, {r4(KF)}, {r4(Q)}, {r16(CB)}")
                if t + 2 <= 63: lq.issue(f"K{t+2}", f"ds_read_b128 {r4(KF)}, v{vL16} offset:{(t+2)*1024}")
        def slot2():
            while fl: ffn_mfma(fl.pop(0))
            if t >= 60:
                k = t - 60
                for qd in range(2 * k, 2 * k + 2):
                    i, rq = qd >> 2, qd & 3
                    lq.issue("RW", f"ds_write_b128 v{vRW}, {r4(acc(2+i)+4*rq)} offset:{i*4096+rq*1024}")
        def slot3():
            lq.wait(f"VA{t}")
            a(f"v_mfma_f32_32x32x16_f16 {r16(O)}, {r4(V0)}, {r4(Y)}, {r16(O)}")
            if t < 63:
                if (t + 1) & 7 == 0: a(f"v_add_u32 v{vV}, v{vVi}, v{vV}")
                lq.issue(f"VA{t+1}", f"ds_read_b128 {r4(V0)}, v{vV} offset:{((t+1)&7)*1024}")
        slots = [slot0, slot1, slot2, slot3]
        mi = 0
        for i, s_ in enumerate(seq):
            for fn in aux.get(t, {}).get(i, []): fn()
            while mi < 4 and POS[mi] == i:
                slots[mi](); mi += 1
            a(s_)
        while mi < 4:
            slots[mi](); mi += 1

    lq.wait("K0")
    a(f"v_mfma_f32_32x32x16_bf16 {r16(S[0])}, {r4(KF)}, {r4(Q)}, {r16(CB)}")
    for t in range(64): unit(t)
    ts_mark(a, MK[0])
    lq.wait("VB63")
    a(f"v_mfma_f32_32x32x16_f16 {r16(O)}, {r4(V1)}, {r4(Y+4)}, {r16(O)}")
    a(f"v_lshrrev_b32 v{T[0]}, 5, v{vLane}")
    a(f"v_bfe_u32 v{T[1]}, v{vLane}, 2, 2")
    a(f"v_lshl_add_u32 v{T[0]}, v{T[0]}, 2, v{T[1]}")
    a(f"v_lshlrev_b32 v{T[0]}, 7, v{T[0]}")
    a(f"v_bfe_u32 v{T[1]}, v{vLane}, 3, 1")
    a(f"v_lshl_add_u32 v{T[0]}, v{T[1]}, 6, v{T[0]}")
    a(f"v_bfe_u32 v{T[1]}, v{vLane}, 4, 1")
    a(f"v_lshl_add_u32 v{T[0]}, v{T[1]}, 5, v{T[0]}")
    a(f"v_and_b32 v{T[1]}, 3, v{vLane}")
    a(f"v_lshl_add_u32 v{T[0]}, v{T[1]}, 3, v{T[0]}")
    a(f"s_lshl_b32 s{sT0}, s{sNS}, 14")
    a(f"s_lshl_b32 s{sT1}, s{sXB}, 16")
    a(f"s_add_u32 s{sT0}, s{sT0}, s{sT1}")
    a(f"s_lshl_b32 s{sT1}, s{sNS}, 6")
    a(f"v_add_u32 v{T[0]}, s{sT0}, v{T[0]}")
    a(f"v_xor_b32 v{T[0]}, s{sT1}, v{T[0]}")
    a(f"v_xor_b32 v{T[1]}, 64, v{T[0]}")
    vq.wait("WO")
    a(f"v_mov_b32 v{V1}, v{O+8}")
    a(f"v_subrev_u32 v{T[2]}, {LMIN_BITS}, v{V1}")
    a(f"v_cmp_gt_u32 vcc, {0x7f800000 - LMIN_BITS}, v{T[2]}")
    a("s_cmp_eq_u64 vcc, -1")
    a("s_cbranch_scc0 B_SLOW")
    a.label("B_NORM")
    a(f"v_rcp_f32 v{V1}, v{V1}")
    a(f"v_mul_f32 v{V1}, v{V1}, v{vGF}")
    for r in range(8): a(f"v_mul_f32 v{O+r}, v{O+r}, v{V1}")
    for r in range(4): a(f"v_cvt_pk_bf16_f32 v{Y+r}, v{O+2*r}, v{O+2*r+1}")
    a(f"buffer_store_dwordx4 {r4(Y)}, v{vL16}, {W}, s{sT3} offen sc1")
    OFR = [FB + 4 * i for i in range(8)]
    def of_loads(lo, hi, pol="sc1"):
        for i in range(lo, hi):
            a(f"buffer_load_dwordx4 {r4(OFR[i])}, v{vL16}, {W}, s{sOf if i < 4 else sT2} offen offset:{(i%4)*1024} {pol}")
    a(f"s_add_u32 s{sT2}, s{sOf}, 4096")
    a("s_waitcnt lgkmcnt(0)")
    a("s_barrier")
    for i in range(2):
        for rq in range(4):
            a(f"ds_read_b128 {r4(S[0]+16*i+4*rq)}, v{vRR} offset:{i*4096+rq*1024}")
    WOA = [acc(2) + 4 * i for i in range(8)]
    WOB = [X1 + 4 * i for i in range(4)] + [SP + 4 * i for i in range(4)]
    a(f"v_sub_f32 v{vGT}, 1.0, v{vGT}")
    for h in range(8):
        for t in range(2):
            a(f"ds_read_b64_tr_b16 {r2(WOA[h]+2*t)}, v{T[0]} offset:{h*2048+t*1024}")
        if h == 3:
            a("s_waitcnt lgkmcnt(8)")
            for r in range(32):
                a(f"v_add_f32 v{ACC+r}, v{ACC+r}, v{S[0]+r}")
    for h in range(8):
        for t in range(2):
            a(f"ds_read_b64_tr_b16 {r2(WOB[h]+2*t)}, v{T[1]} offset:{h*2048+t*1024}")
    for r in range(32):
        a(f"v_mul_f32 v{ACC+r}, v{ACC+r}, v{vGT}")
    a(f"s_mul_i32 s{sT0}, s{sKQ}, {F2}")
    a(f"s_lshl_b32 s{sT1}, s{sTS}, 10")
    a(f"s_add_u32 s{sT0}, s{sT0}, s{sT1}")
    a(f"s_mul_i32 s{sT1}, s{sNS}, {4*CS}")
    a(f"s_add_u32 s{sT1}, s{sT1}, s{sT0}")
    a(f"v_add_u32 v{T[2]}, s{sT1}, v{vL16}")
    a(f"s_xor_b32 s{sT1}, s{sNS}, 1")
    a(f"s_mul_i32 s{sT1}, s{sT1}, {4*CS}")
    a(f"s_add_u32 s{sT1}, s{sT1}, s{sT0}")
    a(f"v_add_u32 v{T[3]}, s{sT1}, v{vL16}")
    a(f"v_and_b32 v{T[4]}, 7, v{vLane}")
    a(f"v_lshrrev_b32 v{T[5]}, 3, v{vLane}")
    a(f"v_mul_u32_u24 v{T[6]}, {CS}, v{T[4]}")
    a(f"v_lshl_add_u32 v{T[6]}, v{T[5]}, 4, v{T[6]}")
    a(f"s_lshl_b32 s{sT0}, s{sXB}, 10")
    a(f"s_lshl_b32 s{sT1}, s{sW3}, 7")
    a(f"s_add_u32 s{sT0}, s{sT0}, s{sT1}")
    a(f"v_add_u32 v{T[6]}, s{sT0}, v{T[6]}")
    a(f"v_add_u32 v{T[7]}, {2*F2}, v{T[6]}")
    a(f"v_lshlrev_b32 v{T[5]}, 10, v{T[5]}")
    a(f"v_lshl_add_u32 v{T[5]}, v{T[4]}, 4, v{T[5]}")
    a(f"s_lshl_b32 s{sT0}, s{sTB}, 16")
    a(f"s_lshl_b32 s{sT1}, s{sW}, 13")
    a(f"s_add_u32 s{sT0}, s{sT0}, s{sT1}")
    a(f"s_lshl_b32 s{sT1}, s{sHG}, 7")
    a(f"s_add_u32 s{sT3}, s{sT0}, s{sT1}")
    a("s_waitcnt lgkmcnt(0)")
    a("s_barrier")
    ts_mark(a, MK[1])
    of_loads(0, 8)
    for g in range(4):
        a(f"s_mov_b32 s{sPoll}, 4096")
        a(f"s_waitcnt vmcnt({6 - 2*g})")
        a.label(f"B_POLL{g}")
        rr = [OFR[i] + k for i in (2 * g, 2 * g + 1) for k in range(4)]
        a(f"v_max_u32 v{T[0]}, v{rr[0]}, v{rr[1]}")
        for k in range(2, 8, 2):
            a(f"v_max3_u32 v{T[0]}, v{rr[k]}, v{rr[k+1]}, v{T[0]}")
        a(f"v_cmp_eq_u32 vcc, -1, v{T[0]}")
        a(f"s_cbranch_vccz B_GO{g}")
        a(f"s_sub_u32 s{sPoll}, s{sPoll}, 1")
        a(f"s_cmp_eq_u32 s{sPoll}, 0")
        a(f"s_cbranch_scc1 B_GO{g}")
        of_loads(2 * g, 2 * g + 2)
        a("s_waitcnt vmcnt(0)")
        a(f"s_branch B_POLL{g}")
        a.label(f"B_GO{g}")
        for i in (2 * g, 2 * g + 1):
            a(f"v_mfma_f32_32x32x16_bf16 {r16(acc(0))}, {r4(WOA[i])}, {r4(OFR[i])}, {r16(acc(0))}")
            a(f"v_mfma_f32_32x32x16_bf16 {r16(acc(1))}, {r4(WOB[i])}, {r4(OFR[i])}, {r16(acc(1))}")
    ts_mark(a, MK[2])
    for i in range(2):
        for rq in range(4):
            a(f"ds_write_b128 v{T[2+i]}, {r4(acc(i)+4*rq)} offset:{rq*CS}")
    a("s_waitcnt lgkmcnt(0)")
    a("s_barrier")
    R = S[0]
    for kq in range(4):
        base = T[6] if kq < 2 else T[7]
        for h in range(2):
            a(f"ds_read_b128 {r4(R+(kq*2+h)*4)}, v{base} offset:{(kq&1)*F2+h*512}")
    a("s_waitcnt lgkmcnt(4)")
    for k in range(8): a(f"v_add_f32 v{R+k}, v{R+k}, v{R+8+k}")
    a("s_waitcnt lgkmcnt(0)")
    for k in range(8): a(f"v_add_f32 v{R+16+k}, v{R+16+k}, v{R+24+k}")
    for k in range(8): a(f"v_add_f32 v{R+k}, v{R+k}, v{R+16+k}")
    for k in range(4): a(f"v_cvt_pk_bf16_f32 v{Y+k}, v{R+2*k}, v{R+2*k+1}")
    a(f"buffer_store_dwordx4 {r4(Y)}, v{T[5]}, s[{sOUT}:{sOUT+3}], s{sT3} offen")
    ts_mark(a, MK[3])
    if TS: a("s_waitcnt lgkmcnt(0)")
    ts_end(a, 0, sWS, sW, MA)
    if TS:
        a("s_mov_b64 exec, -1")
        for i in range(4): a(f"v_mov_b32 v{i}, s{MK[i]}")
        a(f"s_add_u32 s4, s4, 0x20000")
        a("s_mov_b64 exec, 1")
        a(f"buffer_store_dwordx4 v[0:3], v8, s[{sWS}:{sWS+3}], s4 offen offset:16")
    a("s_endpgm")

    a.label("B_SLOW")
    M = T[2]
    CI = 65535.0 / 1024.0
    a(f"v_mov_b32 v{M}, 0xff800000")
    a(f"s_mov_b32 s{sT0}, {WS_KF}")
    a(f"s_mov_b32 s{sCnt}, 64")
    a.label("B_SL1")
    a(f"buffer_load_dwordx4 {r4(KF)}, v{vL16}, {W}, s{sT0} offen{SC}")
    a(f"s_add_u32 s{sT0}, s{sT0}, 1024")
    a("s_waitcnt vmcnt(0)")
    a(f"v_mfma_f32_32x32x16_bf16 {r16(S[0])}, {r4(KF)}, {r4(Q)}, 0")
    for r in range(0, 16, 2):
        a(f"v_max3_f32 v{M}, v{S[0]+r}, v{S[0]+r+1}, v{M}")
    a(f"s_sub_u32 s{sCnt}, s{sCnt}, 1")
    a(f"s_cmp_lg_u32 s{sCnt}, 0")
    a("s_cbranch_scc1 B_SL1")
    a(f"v_mov_b32 v{T[3]}, v{M}")
    a(f"v_permlane32_swap_b32 v{M}, v{T[3]}")
    a(f"v_max_f32 v{M}, v{M}, v{T[3]}")
    a(f"v_mul_f32 v{M}, {f32hex(-CI)}, v{M}")
    a(f"v_mov_b32 v{T[3]}, {f32hex(CI)}")
    a(f"v_and_b32 v{T[4]}, 15, v{vLane}")
    a(f"v_lshlrev_b32 v{T[4]}, 4, v{T[4]}")
    a(f"v_lshrrev_b32 v{T[5]}, 5, v{vLane}")
    a(f"v_lshl_add_u32 v{T[4]}, v{T[5]}, 8, v{T[4]}")
    a(f"v_and_b32 v{T[5]}, 16, v{vLane}")
    a(f"v_cmp_eq_u32 s[40:41], 0, v{T[5]}")
    a(f"v_mov_b32 v{T[5]}, 0x3f803f80")
    for r in range(16): a(f"v_mov_b32 v{O+r}, 0")
    a(f"s_mov_b32 s{sT0}, {WS_KF}")
    a(f"s_mov_b32 s{sT1}, {WS_VB}")
    a(f"s_mov_b32 s{sCnt}, 64")
    a.label("B_SL2")
    a(f"buffer_load_dwordx4 {r4(KF)}, v{vL16}, {W}, s{sT0} offen{SC}")
    a(f"buffer_load_dwordx4 {r4(V0)}, v{T[4]}, {W}, s{sT1} offen{SC}")
    a(f"buffer_load_dwordx4 {r4(S[1])}, v{T[4]}, {W}, s{sT1} offen offset:512{SC}")
    a(f"s_add_u32 s{sT0}, s{sT0}, 1024")
    a(f"s_add_u32 s{sT1}, s{sT1}, 1024")
    a("s_waitcnt vmcnt(0)")
    a(f"v_mfma_f32_32x32x16_bf16 {r16(S[0])}, {r4(KF)}, {r4(Q)}, 0")
    for r in range(4):
        a(f"v_cndmask_b32 v{V0+r}, v{T[5]}, v{V0+r}, s[40:41]")
        a(f"v_cndmask_b32 v{S[1]+r}, v{T[5]}, v{S[1]+r}, s[40:41]")
    for r in range(16):
        a(f"v_fma_f32 v{S[0]+r}, v{S[0]+r}, v{T[3]}, v{M}")
        a(f"v_exp_f32 v{S[0]+r}, v{S[0]+r}")
    for k in range(8):
        a(f"v_cvt_pk_bf16_f32 v{Y+k}, v{S[0]+2*k}, v{S[0]+2*k+1}")
    a(f"v_mfma_f32_32x32x16_bf16 {r16(O)}, {r4(V0)}, {r4(Y)}, {r16(O)}")
    a(f"v_mfma_f32_32x32x16_bf16 {r16(O)}, {r4(S[1])}, {r4(Y+4)}, {r16(O)}")
    a(f"s_sub_u32 s{sCnt}, s{sCnt}, 1")
    a(f"s_cmp_lg_u32 s{sCnt}, 0")
    a("s_cbranch_scc1 B_SL2")
    a(f"v_mov_b32 v{V1}, v{O+8}")
    a("s_branch B_NORM")
    a.label("M_END")
    a("s_endpgm")
    return a

if __name__ == "__main__":
    out = sys.argv[1] if len(sys.argv) > 1 else "m1.s"
    a = gen_m("m_kernel")
    txt = HEADER + f"; @launch kernel=m_kernel grid=(256,1,1) block=(512,1,1) lds={M_LDS}\n"
    txt += '.amdgcn_target "amdgcn-amd-amdhsa--gfx950"\n.text\n'
    a.fix()
    txt += kernel_header("m_kernel") + a.text()
    txt += '.section .rodata,"a"\n' + kernel_desc("m_kernel", 256, 256)
    open(out, "w").write(txt)
```

```python
import sys, os
sys.path.insert(0, os.path.dirname(os.path.abspath(__file__)))
from asmlib import Asm
import gen
from gen import *
from gen3 import VQ, r4, r2, r16
from gen5 import LQ
from k1r import map_t8

E = os.environ.get
XIMG, RING, SLOT, HOFF = 0, 65536, 18432, 4096
KVW = RING + 4 * SLOT
GATE = KVW + 16384
W2P = GATE + 1024
QX = KVW
L_K, L_V, L_ONES = 0, 65536, GATE
M_LDS = 163840
CS = 2048 + 64
F2 = 8 * CS
WS_HFL = 0x223000
POS = [int(x) for x in E("POS", "2,8,14,20").split(",")]
TBITS = 29.75 * 1024
LMIN_BITS = 0x43000000
MINI_C = [int(x) for x in E("MINIC", "1,2,2,2").split(",")]
XW = [int(x) for x in E("XW", "1,1").split(",")]
CW2 = int(E("CW2", "2"))
CFLAG = int(E("CFLAG", "6"))
CRD = int(E("CRD", "3"))
CPOLL = int(E("CPOLL", "11"))
CCHK = int(E("CCHK", "13"))
WS_GFL = 0x228000
F0 = int(E("F0", "16"))
USET = int(E("USET", "5"))
UPOLL = int(E("UPOLL", "8"))
UCHK = int(E("UCHK", "11"))
CSET = int(E("CSET", "8"))
NB = int(E("NB", "4"))
UA = int(E("UA", "0"))
SC = " sc1"
XS = int(E("XS", "2"))
MAXI = int(E("MAXI", "2"))
def ring_schedule():
    slots = [RING + i * SLOT for i in range(4)] + [KVW, XIMG]
    avail = [0, 0, 0, 0, max(max(MINI_C), CW2) + 1, 8][:4 + XS]
    last = [CCHK, 15, 15, 15, 14, CCHK][:4 + XS]
    hold = [0, 1, 2, 3] + [-1] * XS
    slot_of = {k: slots[k] for k in range(4)}
    iss = {c: [] for c in range(16)}
    nxt = 4
    for c in range(1, 16):
        while nxt < 16 and len(iss[c]) < MAXI:
            cand = [i for i in range(len(hold)) if hold[i] < c and c >= avail[i] and nxt <= last[i]]
            if not cand: break
            i = min(cand, key=lambda i: last[i])
            hold[i] = nxt; slot_of[nxt] = slots[i]; iss[c].append(nxt); nxt += 1
    assert nxt == 16
    for c in range(16):
        for k in iss[c]: assert k > c
    return slot_of, iss
SLOT_OF, ISS = ring_schedule()
BM = [int(x) for x in E("BM", "").split(",")] if E("BM") else None
MARKC = [int(x) for x in E("MARKC", "").split(",")] if E("MARKC") else None

def gen_m(name):
    a = Asm()
    a.label(name)
    P = "A_"
    sWS, sDBG = 8, 12
    W = f"s[{sWS}:{sWS+3}]"
    vLane, vL16 = 1, 5
    sX, sW1, sWQ, sKV, sW2, sGT = 36, 40, 44, 48, 56, 60
    sTB, sCG, sW, sT0, sT1, sSlot, sT2, sT3, sTYPE, sTT, sM = 64, 65, 66, 67, 68, 70, 73, 74, 75, 76, 77
    sSo, sSoQ, sSoH, sG, sCC, sXm = 72, 78, 79, 81, 82, 83
    MA = [84, 86, 88, 90]
    sLW, sI0, sW2s, sW2m = 92, 93, 94, 95
    T = list(range(8, 16))
    sOUT, sWO = 12, 60
    bW, bTB, bHG, bT0, bT1, sCnt, sXB, sHD = 16, 17, 18, 19, 20, 21, 22, 23
    sA = [24, 25]; sB = [26, 27]
    sW3, sNS, sTS, sKM, sOff, bT2, sPoll, sKQ, sOf, bT3, sWoS, sVM, sRED = 28, 29, 30, 31, 32, 33, 34, 35, 36, 37, 38, 39, 3
    sHFo, sHFi = 50, 51
    vRW, vV, vVi, vGF, vGT = 2, 3, 4, 6, 7
    Q = 16; vWo = 20; vRR = 21
    KF, V0, V1 = 24, 28, 32
    Y = 36; Y2 = 44; cA, cM = 48, 49
    CB = 52; S = [68, 84]; O = 100; X1 = 116; ACC = 132; FB = 196; SP = 228
    vKM = 244; vHP = 248; vHA = 249
    def acc(i): return ACC + 16 * i
    FBS = [FB, FB + 16, SP, X1]
    MK = [64, 66, 68, 70]

    a("s_cmp_ge_u32 s2, 256")
    a("s_cbranch_scc1 M_END")
    ts_begin(a)
    a("s_load_dwordx16 s[16:31], s[0:1], 0")
    a("s_load_dwordx4 s[32:35], s[0:1], 64")
    a("s_load_dwordx4 s[52:55], s[0:1], 80")
    map_t8(a, 2, sTB, sCG, sT0, E("MAP1", "T8"))
    a(f"v_lshrrev_b32 v{T[0]}, 6, v0")
    a(f"v_and_b32 v{vLane}, 63, v0")
    a(f"v_readfirstlane_b32 s{sW}, v{T[0]}")
    a(f"v_lshlrev_b32 v{vL16}, 4, v{vLane}")
    a(f"s_and_b32 s{sTYPE}, s{sCG}, 1")
    a(f"s_lshr_b32 s{sTT}, s{sCG}, 1")
    a(f"s_and_b32 s{sG}, s{sTB}, 3")
    vX0 = 16
    a(f"v_lshrrev_b32 v{T[3]}, 4, v{vLane}")
    a(f"v_and_b32 v{T[2]}, 15, v{vLane}")
    a(f"v_xor_b32 v{T[2]}, v{T[2]}, v{T[3]}")
    a(f"v_lshlrev_b32 v{T[2]}, 4, v{T[2]}")
    a(f"v_lshl_add_u32 v{vX0}, v{T[3]}, 10, v{T[2]}")
    for i in range(1, 4): a(f"v_xor_b32 v{vX0+i}, {64*i}, v{vX0}")
    a(f"s_and_b32 s{sLW}, s{sW}, 3")
    a(f"s_lshl_b32 s{sT0}, s{sTB}, 16")
    a(f"s_lshl_b32 s{sT1}, s{sLW}, 14")
    a(f"s_add_u32 s{sSo}, s{sT0}, s{sT1}")
    a(f"s_lshl_b32 s{sXm}, s{sLW}, 12")

    def xpos(vq, p):
        a(f"s_add_u32 s{sT0}, s{sG}, {p}")
        a(f"s_and_b32 s{sT0}, s{sT0}, 3")
        a(f"s_add_u32 m0, s{sXm}, {XIMG + p * 16384}")
        a(f"s_lshl_b32 s{sT0}, s{sT0}, 8")
        a(f"s_add_u32 s{sT0}, s{sT0}, s{sSo}")
        for i in range(4):
            if i:
                a(f"s_add_u32 m0, m0, 1024")
                a(f"s_add_u32 s{sT0}, s{sT0}, 4096")
            vq.issue(f"X{p}", f"buffer_load_dwordx4 v{vX0+i}, s[{sX}:{sX+3}], s{sT0} offen lds")

    def common_srds():
        srd(a, sWS, 54, WS_SIZE)
        srd(a, sDBG, 52, 256)
        a("s_mov_b64 s[4:5], s[24:25]")
        a("s_mov_b64 s[6:7], s[34:35]")

    dcount = [0]
    def kv_dma(vq):
        j = dcount[0]; dcount[0] += 1
        r, kv = j >> 1, j & 1
        vq.issue(f"D{r}{'KV'[kv]}", f"buffer_load_dwordx4 v{vL16}, {W}, s{sOff} offen{SC} lds")
        if j < 15:
            d = 65536 if kv == 0 else -57344
            if d > 0:
                a(f"s_add_u32 m0, m0, {d}"); a(f"s_add_u32 s{sOff}, s{sOff}, {d}")
            else:
                a(f"s_sub_u32 m0, m0, {-d}"); a(f"s_sub_u32 s{sOff}, s{sOff}, {-d}")
    fstep = {}
    def ffn_load(vq, which, st):
        buf = FBS[st % NB]
        reg = {0: buf, 3: buf + 4, 1: buf + 8, 2: buf + 12}[which]
        s_ = {0: sA[0], 3: sA[1], 1: sB[0], 2: sB[1]}[which]
        base = fstep.get(which, 0)
        if st - base >= 4:
            a(f"s_add_u32 s{s_}, s{s_}, {4096}")
            base += 4; fstep[which] = base
        if E("NOFL") and str(which) in E("NOFL"): return
        vq.issue(f"F{st}.{which}", f"buffer_load_dwordx4 {r4(reg)}, v{vL16}, {W}, s{s_} offen offset:{(st-base)*1024}{SC}")

    def b_issue(vq):
        dcount[0] = 0; fstep.clear()
        a(f"s_mov_b32 m0, s{sOff}")
        a(f"s_add_u32 s{sOff}, s{sOff}, {WS_KF}")
        for _ in range(4): kv_dma(vq)
        a(f"s_mov_b32 s{sKM}, {WS_KMAX}")
        vq.issue("KM", f"buffer_load_dwordx4 {r4(vKM)}, v{vL16}, {W}, s{sKM} offen{SC}")
        for st in (0, 1):
            for wh in (0, 3): ffn_load(vq, wh, st)

    def b_setup():
        bt = [8, 9, 10, 11, 12, 13, 14, 15]
        a(f"s_mov_b32 s{bW}, s{sW}")
        a(f"s_mov_b32 s{bTB}, s{sTB}")
        a(f"s_mov_b32 s{bHG}, s{sCG}")
        a(f"s_lshl_b32 s{sOff}, s{bW}, 10")
        a(f"s_lshr_b32 s{sXB}, s{bW}, 2")
        a(f"s_and_b32 s{sW3}, s{bW}, 3")
        a(f"s_and_b32 s{sTS}, s{bW}, 1")
        a(f"s_bfe_u32 s{sNS}, s{bW}, 0x10001")
        a(f"s_lshr_b32 s{sKQ}, s{bW}, 1")
        a(f"s_lshl_b32 s{sHD}, s{bHG}, 2")
        a(f"s_add_u32 s{sHD}, s{sHD}, s{sW3}")
        a(f"s_lshl_b32 s{bT2}, s{bTB}, 1")
        a(f"s_add_u32 s{bT2}, s{bT2}, s{sXB}")
        a(f"s_lshl_b32 s{bT2}, s{bT2}, 5")
        a(f"s_add_u32 s{bT2}, s{bT2}, s{sHD}")
        a(f"s_lshl_b32 s{bT2}, s{bT2}, 10")
        a(f"s_add_u32 s{bT3}, s{bT2}, {WS_OF}")
        a(f"s_mul_i32 s{bT0}, s{bW}, 14")
        a(f"s_lshl_b32 s{bT1}, s{bHG}, 1")
        a(f"s_add_u32 s{bT1}, s{bT1}, s{sNS}")
        a(f"s_mul_i32 s{sA[0]}, s{bT1}, 112")
        a(f"s_xor_b32 s{bT1}, s{bT1}, 1")
        a(f"s_mul_i32 s{sA[1]}, s{bT1}, 112")
        a(f"s_lshl_b32 s{bT1}, s{bTB}, 1")
        a(f"s_add_u32 s{bT1}, s{bT1}, s{sTS}")
        a(f"s_mul_i32 s{sB[0]}, s{bT1}, 112")
        a(f"s_xor_b32 s{bT1}, s{bT1}, 1")
        a(f"s_mul_i32 s{sB[1]}, s{bT1}, 112")
        for s_, base in ((sA[0], WS_W2F), (sA[1], WS_W2F), (sB[0], WS_HF), (sB[1], WS_HF)):
            a(f"s_add_u32 s{s_}, s{s_}, s{bT0}")
            a(f"s_lshl_b32 s{s_}, s{s_}, 10")
            a(f"s_add_u32 s{s_}, s{s_}, {base}")
        a(f"s_lshl_b32 s{bT0}, s{bTB}, 8")
        a(f"s_add_u32 s{bT0}, s{bT0}, {WS_HFL}")
        a(f"s_lshl_b32 s{bT1}, s{bHG}, 5")
        a(f"s_add_u32 s{sHFo}, s{bT0}, s{bT1}")
        a(f"s_lshl_b32 s{bT1}, s{bW}, 2")
        a(f"s_add_u32 s{sHFo}, s{sHFo}, s{bT1}")
        a(f"s_lshl_b32 s{bT1}, s{bW}, 5")
        a(f"s_add_u32 s{sHFi}, s{bT0}, s{bT1}")
        a(f"v_and_b32 v{vHA}, 7, v{vLane}")
        a(f"v_lshlrev_b32 v{vHA}, 2, v{vHA}")
        a(f"v_and_b32 v{bt[0]}, 31, v{vLane}")
        a(f"v_lshrrev_b32 v{bt[1]}, 5, v{vLane}")
        a(f"v_lshlrev_b32 v{bt[2]}, 8, v{bt[1]}")
        a(f"v_lshl_add_u32 v{bt[2]}, v{bt[0]}, 4, v{bt[2]}")
        a(f"v_add_u32 v{bt[2]}, {L_V}, v{bt[2]}")
        a(f"v_subrev_u32 v{bt[3]}, 20, v{bt[0]}")
        a(f"v_cmp_gt_u32 vcc, 8, v{bt[3]}")
        a(f"v_mov_b32 v{bt[3]}, {L_ONES}")
        a(f"v_mov_b32 v{bt[4]}, {L_ONES + 64}")
        a(f"v_cndmask_b32 v{bt[3]}, v{bt[3]}, v{bt[4]}, vcc")
        a(f"v_and_b32 v{bt[4]}, 11, v{bt[0]}")
        a(f"v_cmp_ne_u32 vcc, 0, v{bt[4]}")
        a(f"v_add_u32 v{bt[4]}, 16, v{bt[3]}")
        a(f"v_cndmask_b32 v{bt[3]}, v{bt[3]}, v{bt[4]}, vcc")
        a(f"v_cmp_gt_u32 vcc, 16, v{bt[0]}")
        a(f"v_cndmask_b32 v{vV}, v{bt[3]}, v{bt[2]}, vcc")
        a(f"v_mov_b32 v{bt[3]}, 8192")
        a(f"v_cndmask_b32 v{vVi}, 0, v{bt[3]}, vcc")
        a(f"v_lshlrev_b32 v{vGF}, 2, v{bt[0]}")
        for r in range(4, 64): a(f"v_mov_b32 v{ACC+r}, 0")
        for r in range(4): a(f"v_mov_b32 v{ACC+r}, 0")
        def red_slot(dst, wreg):
            a(f"s_lshl_b32 s{dst}, s{wreg}, 13")
            a(f"s_add_u32 s{dst}, s{dst}, 32768")
            a(f"s_cmp_ge_u32 s{wreg}, 3")
            a(f"s_cselect_b32 s{bT1}, 40960, 0")
            a(f"s_add_u32 s{dst}, s{dst}, s{bT1}")
            a(f"s_cmp_ge_u32 s{wreg}, 6")
            a(f"s_cselect_b32 s{bT1}, 16384, 0")
            a(f"s_add_u32 s{dst}, s{dst}, s{bT1}")
        red_slot(bT0, bW)
        a(f"v_add_u32 v{vRW}, s{bT0}, v{vL16}")
        a(f"s_xor_b32 s{sRED}, s{bW}, 1")
        red_slot(bT0, sRED)
        a(f"v_add_u32 v{vRR}, s{bT0}, v{vL16}")
        a(f"s_lshl_b32 s{bT1}, s{bTB}, 1")
        a(f"s_add_u32 s{bT1}, s{bT1}, s{sTS}")
        a(f"s_lshl_b32 s{bT1}, s{bT1}, 5")
        a(f"s_lshl_b32 s{bT0}, s{sKQ}, 3")
        a(f"s_add_u32 s{bT1}, s{bT1}, s{bT0}")
        a(f"s_lshl_b32 s{bT1}, s{bT1}, 10")
        a(f"s_add_u32 s{sOf}, s{bT1}, {WS_OF}")
        a(f"s_lshl_b32 s{bT0}, s{bW}, 16")
        a(f"s_lshl_b32 s{bT1}, s{bHG}, 7")
        a(f"s_add_u32 s{sWoS}, s{bT0}, s{bT1}")
        a(f"v_lshrrev_b32 v{bt[6]}, 3, v{vLane}")
        a(f"v_and_b32 v{vWo}, 7, v{vLane}")
        a(f"v_bfe_u32 v{bt[5]}, v{bt[6]}, 1, 1")
        a(f"v_lshlrev_b32 v{bt[5]}, 2, v{bt[5]}")
        a(f"v_xor_b32 v{vWo}, v{vWo}, v{bt[5]}")
        a(f"v_lshlrev_b32 v{vWo}, 4, v{vWo}")
        a(f"v_lshl_add_u32 v{vWo}, v{bt[6]}, 10, v{vWo}")

    def to_phase_b(vq):
        a(f"v_and_b32 v{O+4}, 11, v{vLane}")
        a(f"v_cmp_eq_u32 vcc, 0, v{O+4}")
        a(f"v_mov_b32 v{O+4}, 0x3c003c00")
        a(f"v_cndmask_b32 v{O}, 0, v{O+4}, vcc")
        for r in range(1, 4): a(f"v_mov_b32 v{O+r}, v{O}")
        a(f"s_lshl_b32 s{bT0}, s{bW}, 10")
        a(f"s_add_u32 s{bT0}, s{bT0}, {L_ONES}")
        a(f"v_add_u32 v{O+4}, s{bT0}, v{vL16}")
        a(f"ds_write_b128 v{O+4}, {r4(O)}")
        for r in range(16): a(f"v_mov_b32 v{O+r}, 0")
        vq.wait("KM")
        a(f"v_mov_b32 v{cA}, 0x02000200")
        a(f"v_mov_b32 v{cM}, 0x39a839a8")
        a("s_branch B_ENTRY")

    a(f"s_cmp_ge_u32 s{sW}, 4")
    a(f"s_cbranch_scc1 {P}LOADER")

    AF = [[32, 36], [40, 44]]
    BF = [[48, 52], [56, 60]]
    AACC = 64
    vAs = [228, 229, 230, 231]; vAt = [232, 233, 234, 235]; vBs = [236 + i for i in range(8)]
    def aacc(ct, ts): return AACC + (ct * 2 + ts) * 16
    a(f"v_lshrrev_b32 v{T[3]}, 1, v{vLane}")
    a(f"v_and_b32 v{T[4]}, 0x13, v{T[3]}")
    a(f"v_bfe_u32 v{T[5]}, v{T[3]}, 2, 1")
    a(f"v_bfe_u32 v{T[6]}, v{T[3]}, 3, 1")
    a(f"v_lshl_add_u32 v{T[4]}, v{T[5]}, 3, v{T[4]}")
    a(f"v_lshl_add_u32 v{T[4]}, v{T[6]}, 2, v{T[4]}")
    a(f"v_lshlrev_b32 v{T[4]}, 5, v{T[4]}")
    a(f"v_and_b32 v{T[5]}, 1, v{vLane}")
    a(f"v_lshl_add_u32 v{T[4]}, v{T[5]}, 4, v{T[4]}")
    a("s_waitcnt lgkmcnt(0)")
    srd(a, sX, 16, 0x200000)
    common_srds()
    vqb = VQ(a)
    a(f"s_lshl_b32 s{sT0}, s2, 3")
    a(f"s_add_u32 s{sI0}, s{sT0}, s{sW}")
    a(f"s_cmp_eq_u32 s{sI0}, 1")
    a(f"s_cbranch_scc0 {P}NORST")
    for r in range(4): a(f"v_mov_b32 v{32+r}, 0")
    a(f"s_mov_b32 s{sT0}, {WS_GFL}")
    for j in range(4):
        a(f"buffer_store_dwordx4 v[32:35], v{vL16}, {W}, s{sT0} offen offset:{j*1024}{SC}")
    a.label(f"{P}NORST")
    xpos(vqb, 0)
    a(f"s_cmp_eq_u32 s{sTYPE}, 0")
    a(f"s_cselect_b32 s{sKV}, s20, s22")
    a(f"s_cselect_b32 s{sKV+1}, s21, s23")
    a(f"s_mov_b32 s{sKV+2}, 16384")
    a(f"s_mov_b32 s{sKV+3}, 0x00020000")
    a(f"s_lshl_b32 s{sT0}, s{sW}, 12")
    a(f"s_add_u32 m0, s{sT0}, {KVW}")
    for i in range(4):
        vqb.issue("KVW", f"buffer_load_dwordx4 v{T[4]}, s[{sKV}:{sKV+3}], s{sT0} offen offset:{i*1024} lds")
    srd(a, sGT, 32, 1024)
    a(f"s_mov_b32 m0, {GATE}")
    vqb.issue("KVW", f"buffer_load_dwordx4 v{vL16}, s[{sGT}:{sGT+3}], 0 offen lds")
    xpos(vqb, 2)
    xpos(vqb, 3)
    a(f"s_cmp_eq_u32 s{sI0}, 1")
    a(f"s_cbranch_scc0 {P}NORST2")
    a(f"s_waitcnt vmcnt({len(vqb.q)})")
    a(f"v_mov_b32 v36, 1")
    a(f"buffer_store_dword v36, off, s[{sDBG}:{sDBG+3}], 0{SC}")
    a.label(f"{P}NORST2")
    a(f"v_lshrrev_b32 v{T[0]}, 5, v{vLane}")
    a(f"v_and_b32 v{T[1]}, 31, v{vLane}")
    a(f"v_and_b32 v{T[2]}, 15, v{T[1]}")
    a(f"v_xor_b32 v{T[2]}, v{T[2]}, v{T[0]}")
    a(f"v_lshlrev_b32 v{T[2]}, 4, v{T[2]}")
    a(f"v_lshl_add_u32 v{vBs[0]}, v{T[1]}, 8, v{T[2]}")
    for i in range(1, 8): a(f"v_xor_b32 v{vBs[i]}, {32*i}, v{vBs[0]}")
    a(f"v_bfe_u32 v{T[2]}, v{vLane}, 2, 2")
    a(f"v_lshl_add_u32 v{T[3]}, v{T[0]}, 3, v{T[2]}")
    a(f"v_bfe_u32 v{T[4]}, v{vLane}, 4, 1")
    a(f"v_lshlrev_b32 v{T[4]}, 5, v{T[4]}")
    a(f"v_and_b32 v{T[5]}, 3, v{vLane}")
    a(f"v_lshl_add_u32 v{T[4]}, v{T[5]}, 3, v{T[4]}")
    a(f"s_cmp_eq_u32 s{sW}, 0")
    a(f"s_cbranch_scc0 {P}HROLE")

    def store_frag(role, r, d, so, off, vq):
        for k in range(4):
            if role == 'Q':
                a(f"v_mul_f32 v{r+2*k}, {f32hex(QS2)}, v{r+2*k}")
                a(f"v_mul_f32 v{r+2*k+1}, {f32hex(QS2)}, v{r+2*k+1}")
            a(f"v_cvt_pk_bf16_f32 v{d+k}, v{r+2*k}, v{r+2*k+1}")
            if role != 'Q': a(f"v_pk_max_i16 v{d+k}, v{d+k}, 0")
        if role == 'Q': a(f"ds_write_b128 v{so}, {r4(d)} offset:{off}")
        else: vq.issue("HST", f"buffer_store_dwordx4 {r4(d)}, v{vL16}, {W}, s{so} offen offset:{off}{SC}")

    def big(role):
        import copy
        vq = VQ(a); vq.q = list(vqb.q); vq.done = vqb.done
        pitch = 128 if role == 'Q' else 448
        vA0, vA1 = vAs[2], vAt[2]
        if role == 'Q':
            a(f"v_lshl_add_u32 v{vA0}, v{T[3]}, 7, v{T[4]}")
            a(f"v_bfe_u32 v{T[5]}, v{vLane}, 3, 1")
            a(f"v_lshl_add_u32 v{vA0}, v{T[5]}, 6, v{vA0}")
            a(f"v_xor_b32 v{vA1}, 64, v{vA0}")
        else:
            a(f"v_mul_u32_u24 v{vA0}, 448, v{T[3]}")
            a(f"v_add_u32 v{vA0}, v{vA0}, v{T[4]}")
            a(f"s_lshl_b32 s{sT0}, s{sW}, 7")
            a(f"s_add_u32 s{sT0}, s{sT0}, {HOFF - 128}")
            a(f"v_add_u32 v{vA0}, s{sT0}, v{vA0}")
        def setaddr(c):
            a(f"v_add_u32 v{vAs[c&1]}, {SLOT_OF[c]}, v{vA0}")
            if role == 'Q': a(f"v_add_u32 v{vAt[c&1]}, {SLOT_OF[c]}, v{vA1}")
        setaddr(0)
        for r in range(64): a(f"v_mov_b32 v{AACC+r}, 0")
        def reads(c, ksl):
            buf = ksl
            rd = []
            sl = c & 1
            for ct in range(2):
                for t in range(2):
                    if role == 'Q':
                        rd.append(f"ds_read_b64_tr_b16 {r2(AF[buf][ct]+2*t)}, v{vAs[sl] if ct == 0 else vAt[sl]} offset:{ksl*16*pitch + t*4*pitch}")
                    else:
                        rd.append(f"ds_read_b64_tr_b16 {r2(AF[buf][ct]+2*t)}, v{vAs[sl]} offset:{ksl*16*pitch + t*4*pitch + ct*64}")
            for ts in range(2):
                rd.append(f"ds_read_b128 {r4(BF[buf][ts])}, v{vBs[2*(c&3)+ksl]} offset:{(c>>2)*16384 + ts*8192}")
            return [rd[0], rd[1], rd[4], rd[5], rd[2], rd[3]]
        def mf(buf, i):
            ct, ts = [(0, 0), (0, 1), (1, 1), (1, 0)][i]
            return f"v_mfma_f32_32x32x16_bf16 {r16(aacc(ct,ts))}, {r4(AF[buf][ct])}, {r4(BF[buf][ts])}, {r16(aacc(ct,ts))}"
        vq.wait("X0")
        a("s_barrier")
        if not MARKC: ts_mark(a, MA[0])
        for l in reads(0, 0): a(l)
        for c in range(16):
            rd = reads(c, 1)
            a("s_waitcnt lgkmcnt(3)")
            a(mf(0, 0)); a(rd[0]); a(rd[1]); a(rd[2])
            if c < 15: setaddr(c + 1)
            a("s_waitcnt lgkmcnt(5)")
            a(mf(0, 1)); a(rd[3])
            a("s_waitcnt lgkmcnt(4)")
            a(mf(0, 2)); a(rd[4]); a(rd[5])
            a(mf(0, 3))
            a("s_waitcnt lgkmcnt(3)")
            a(mf(1, 0))
            if c == 15: break
            if c == MINI_C[0] - 1: vq.wait("KVW")
            if c == XW[0]: vq.wait("X2")
            if c == XW[1]: vq.wait("X3")
            a("s_waitcnt lgkmcnt(0)")
            a("s_barrier")
            if MARKC:
                if c in MARKC: ts_mark(a, MA[MARKC.index(c)])
            elif c == CCHK: ts_mark(a, MA[1])
            rd = reads(c + 1, 0)
            a(rd[0]); a(rd[1]); a(rd[2])
            a(mf(1, 1)); a(rd[3]); a(rd[4]); a(rd[5])
            a(mf(1, 2)); a(mf(1, 3))
            if c == CCHK: b_issue(vq)
            if c == CSET - 1:
                b_setup()
        a("s_waitcnt lgkmcnt(0)")
        a(mf(1, 1)); a(mf(1, 2)); a(mf(1, 3))
        if not MARKC: ts_mark(a, MA[2])
        if role == 'Q':
            a(f"v_add_u32 v{T[0]}, {QX}, v{vL16}")
            d = 32
            for ts in range(2):
                for ct in range(2):
                    for f in range(2):
                        store_frag('Q', aacc(ct, ts) + 8 * f, d, T[0], (4 * ts + 2 * ct + f) * 1024, vq)
                        d = 32 + ((d - 32 + 4) % 32)
        else:
            a(f"s_mul_i32 s{sT0}, s{sTB}, 224")
            a(f"s_mul_i32 s{sT1}, s{sCG}, 14")
            a(f"s_add_u32 s{sT0}, s{sT0}, s{sT1}")
            a(f"s_lshl_b32 s{sT1}, s{sW}, 2")
            a(f"s_add_u32 s{sT0}, s{sT0}, s{sT1}")
            a(f"s_lshl_b32 s{sT0}, s{sT0}, 10")
            a(f"s_add_u32 s{sT0}, s{sT0}, {WS_HF - 4096}")
            a(f"s_add_u32 s{sT1}, s{sT0}, {112*1024}")
            d = 32
            for ts in range(2):
                for ct in range(2):
                    for f in range(2):
                        store_frag('H', aacc(ct, ts) + 8 * f, d, sT0 if ts == 0 else sT1, (ct * 2 + f) * 1024, vq)
                        d = 32 + ((d - 32 + 4) % 32)
        to_phase_b(vq)

    big('Q')
    a.label(f"{P}HROLE")
    big('H')

    a.label(f"{P}LOADER")
    vQs = 250; vHs = [251, 252, 253, 254]; vW2 = 255
    a(f"v_lshrrev_b32 v{T[0]}, 3, v{vLane}")
    a(f"v_bfe_u32 v{T[1]}, v{T[0]}, 1, 1")
    a(f"v_lshlrev_b32 v{T[1]}, 2, v{T[1]}")
    a(f"v_and_b32 v{T[2]}, 7, v{vLane}")
    a(f"v_xor_b32 v{T[2]}, v{T[2]}, v{T[1]}")
    a(f"v_lshlrev_b32 v{T[2]}, 4, v{T[2]}")
    a(f"v_lshl_add_u32 v{vQs}, v{T[0]}, 10, v{T[2]}")
    a(f"s_lshl_b32 s{sT0}, s{sLW}, 13")
    a(f"s_lshl_b32 s{sT1}, s{sCG}, 7")
    a(f"s_add_u32 s{sSoQ}, s{sT0}, s{sT1}")
    a(f"s_mul_i32 s{sI0}, s{sLW}, 3")
    a(f"s_lshr_b32 s{sT0}, s{sLW}, 1")
    a(f"s_and_b32 s{sT0}, s{sT0}, s{sLW}")
    a(f"s_add_u32 s{sI0}, s{sI0}, s{sT0}")
    a(f"s_lshl_b32 s{sT0}, s{sI0}, 6")
    for e in range(4):
        a(f"v_add_u32 v{T[0]}, s{sT0}, v{vLane}")
        if e: a(f"v_add_u32 v{T[0]}, {64*e}, v{T[0]}")
        a(f"v_mul_u32_u24 v{T[1]}, 2341, v{T[0]}")
        a(f"v_lshrrev_b32 v{T[1]}, 16, v{T[1]}")
        a(f"v_mul_u32_u24 v{T[2]}, 28, v{T[1]}")
        a(f"v_sub_u32 v{T[2]}, v{T[0]}, v{T[2]}")
        a(f"v_mul_u32_u24 v{T[1]}, 3584, v{T[1]}")
        a(f"v_lshl_add_u32 v{vHs[e]}, v{T[2]}, 4, v{T[1]}")
    a(f"s_mul_i32 s{sSoH}, s{sCG}, 448")
    a(f"s_lshl_b32 s{sI0}, s{sI0}, 10")
    a(f"s_add_u32 s{sI0}, s{sI0}, {HOFF}")
    a(f"s_lshl_b32 s{sCC}, s{sG}, 2")
    a(f"v_lshrrev_b32 v{T[5]}, 2, v{vLane}")
    a(f"v_lshlrev_b32 v{T[5]}, 10, v{T[5]}")
    a(f"v_and_b32 v{T[6]}, 3, v{vLane}")
    a(f"v_lshl_add_u32 v{vW2}, v{T[6]}, 4, v{T[5]}")
    a(f"s_lshl_b32 s{sW2s}, s{sTB}, 3")
    a(f"s_add_u32 s{sW2s}, s{sW2s}, s{sCG}")
    a(f"s_and_b32 s{sT1}, s{sW2s}, 15")
    a(f"s_lshl_b32 s{sT1}, s{sT1}, 6")
    a(f"s_lshr_b32 s{sW2s}, s{sW2s}, 4")
    a(f"s_mul_i32 s{sW2s}, s{sW2s}, {112*1024}")
    a(f"s_add_u32 s{sW2s}, s{sW2s}, s{sT1}")
    a("s_waitcnt lgkmcnt(0)")
    srd(a, sWQ, 18, 0x80000)
    srd(a, sW1, 28, 512 * 3584)
    srd(a, sX, 16, 0x200000)

    def chunk_dma(vq, c, n):
        sl = SLOT_OF[c]
        a(f"s_lshl_b32 s{sT0}, s{sLW}, 10")
        a(f"s_add_u32 m0, s{sT0}, {sl}")
        a(f"s_lshl_b32 s{sT0}, s{sCC}, 15")
        a(f"s_add_u32 s{sT0}, s{sT0}, s{sSoQ}")
        vq.issue(f"C{c}", f"buffer_load_dwordx4 v{vQs}, s[{sWQ}:{sWQ+3}], s{sT0} offen lds")
        a(f"s_add_u32 m0, s{sI0}, {sl}")
        a(f"s_mul_i32 s{sT0}, s{sCC}, {32*3584}")
        a(f"s_add_u32 s{sT0}, s{sT0}, s{sSoH}")
        for e in range(n - 1):
            vq.issue(f"C{c}", f"buffer_load_dwordx4 v{vHs[e]}, s[{sW1}:{sW1+3}], s{sT0} offen lds")
            if e < n - 2: a("s_add_u32 m0, m0, 1024")
        a(f"s_add_u32 s{sCC}, s{sCC}, 1")
        a(f"s_and_b32 s{sCC}, s{sCC}, 15")

    def loader(role):
        L = f"{P}{role}"
        vq = VQ(a)
        n = 4 if role == 'C' else 5
        chunk_dma(vq, 0, n); chunk_dma(vq, 1, n)
        xpos(vq, 1)
        chunk_dma(vq, 2, n)
        if role == 'W':
            srd(a, sW2, 30, 1792 * 1024)
            a(f"s_mov_b32 m0, {W2P}")
            a(f"s_mov_b32 s{sT0}, s{sW2s}")
            for i in range(7):
                vq.issue("W2", f"buffer_load_dwordx4 v{vW2}, s[{sW2}:{sW2+3}], s{sT0} offen lds")
                if i < 6:
                    a("s_add_u32 m0, m0, 1024")
                    a(f"s_add_u32 s{sT0}, s{sT0}, 16384")
        chunk_dma(vq, 3, n)
        common_srds()
        R = {'C': c8_role, 'M': mini_role, 'W': w2_role}[role](vq)
        R['pre']()
        vq.wait("C0")
        a("s_barrier")
        if not MARKC: ts_mark(a, MA[0])
        for c in range(16):
            R['work1'](c)
            for k in ISS[c]: chunk_dma(vq, k, n)
            if c == CCHK + 1: b_issue(vq)
            if c == CSET: b_setup()
            R['work2'](c)
            if c == 15: break
            vq.wait(f"C{c+1}")
            R['endit'](c)
            a("s_waitcnt lgkmcnt(0)")
            a("s_barrier")
            if MARKC:
                if c in MARKC: ts_mark(a, MA[MARKC.index(c)])
            elif c == CCHK: ts_mark(a, MA[1])
        if not MARKC: ts_mark(a, MA[2])
        R['post']()
        to_phase_b(vq)

    nop = lambda *x: None
    def c8_role(vq):
        vA = [26, 27, 28, 29]; vB8 = [236 + i for i in range(8)]
        AFc = [32, 36]; BFc = [40, 44]; CACC = 64
        def pre():
            a(f"v_lshrrev_b32 v{T[0]}, 5, v{vLane}")
            a(f"v_and_b32 v{T[1]}, 31, v{vLane}")
            a(f"v_and_b32 v{T[2]}, 15, v{T[1]}")
            a(f"v_xor_b32 v{T[2]}, v{T[2]}, v{T[0]}")
            a(f"v_lshlrev_b32 v{T[2]}, 4, v{T[2]}")
            a(f"v_lshl_add_u32 v{vB8[0]}, v{T[1]}, 8, v{T[2]}")
            a(f"s_lshl_b32 s{sT0}, s{sLW}, 13")
            a(f"v_add_u32 v{vB8[0]}, s{sT0}, v{vB8[0]}")
            for i in range(1, 8): a(f"v_xor_b32 v{vB8[i]}, {32*i}, v{vB8[0]}")
            a(f"v_bfe_u32 v{T[2]}, v{vLane}, 2, 2")
            a(f"v_lshl_add_u32 v{T[3]}, v{T[0]}, 3, v{T[2]}")
            a(f"v_bfe_u32 v{T[4]}, v{vLane}, 4, 1")
            a(f"v_lshlrev_b32 v{T[4]}, 5, v{T[4]}")
            a(f"v_and_b32 v{T[5]}, 3, v{vLane}")
            a(f"v_lshl_add_u32 v{T[4]}, v{T[5]}, 3, v{T[4]}")
            a(f"v_mul_u32_u24 v{vA[0]}, 448, v{T[3]}")
            a(f"v_add_u32 v{vA[0]}, v{vA[0]}, v{T[4]}")
            a(f"v_add_u32 v{vA[0]}, {HOFF + 6*64}, v{vA[0]}")
            for r in range(16): a(f"v_mov_b32 v{CACC+r}, 0")
        def work1(c):
            a(f"v_add_u32 v{vA[1]}, {SLOT_OF[c]}, v{vA[0]}")
            for ksl in range(2):
                for t in range(2):
                    a(f"ds_read_b64_tr_b16 {r2(AFc[ksl]+2*t)}, v{vA[1]} offset:{ksl*16*448 + t*4*448}")
                a(f"ds_read_b128 {r4(BFc[ksl])}, v{vB8[2*(c&3)+ksl]} offset:{(c>>2)*16384}")
        def work2(c):
            a("s_waitcnt lgkmcnt(3)")
            a(f"v_mfma_f32_32x32x16_bf16 {r16(CACC)}, {r4(AFc[0])}, {r4(BFc[0])}, {r16(CACC)}")
            a("s_waitcnt lgkmcnt(0)")
            a(f"v_mfma_f32_32x32x16_bf16 {r16(CACC)}, {r4(AFc[1])}, {r4(BFc[1])}, {r16(CACC)}")
        def post():
            a(f"s_lshl_b32 s{sT0}, s{sTB}, 1")
            a(f"s_add_u32 s{sT0}, s{sT0}, s{sLW}")
            a(f"s_mul_i32 s{sT0}, s{sT0}, 112")
            a(f"s_mul_i32 s{sT1}, s{sCG}, 14")
            a(f"s_add_u32 s{sT0}, s{sT0}, s{sT1}")
            a(f"s_lshl_b32 s{sT0}, s{sT0}, 10")
            a(f"s_add_u32 s{sT0}, s{sT0}, {WS_HF + 12*1024}")
            for f in range(2): store_frag('H', CACC + 8 * f, 32 + 4 * f, sT0, f * 1024, vq)
        return dict(pre=pre, work1=work1, work2=work2, endit=nop, post=post)

    def mini_role(vq):
        vXa = [26, 27, 28, 29]; vWm, vGm, vWt, vGt = 30, 31, 64, 65
        XF = [128 + 4 * j for j in range(4)]; WF = [144 + 4 * j for j in range(4)]; GF = [160 + 4 * j for j in range(4)]
        D = 56; DG = 60
        L = f"{P}M"
        def pre():
            a(f"v_and_b32 v{T[0]}, 15, v{vLane}")
            a(f"v_lshrrev_b32 v{T[1]}, 4, v{vLane}")
            a(f"v_xor_b32 v{T[2]}, v{T[0]}, v{T[1]}")
            a(f"v_lshlrev_b32 v{T[2]}, 4, v{T[2]}")
            a(f"v_lshl_add_u32 v{vXa[0]}, v{T[0]}, 8, v{T[2]}")
            a(f"s_lshl_b32 s{sT0}, s{sTT}, 12")
            a(f"v_add_u32 v{vXa[0]}, s{sT0}, v{vXa[0]}")
            for j in range(1, 4): a(f"v_xor_b32 v{vXa[j]}, {64*j}, v{vXa[0]}")
            a(f"v_lshrrev_b32 v{T[2]}, 1, v{T[1]}")
            a(f"v_lshlrev_b32 v{T[2]}, 4, v{T[2]}")
            a(f"v_and_b32 v{T[3]}, 1, v{T[1]}")
            a(f"v_lshl_add_u32 v{T[2]}, v{T[3]}, 2, v{T[2]}")
            a(f"v_lshrrev_b32 v{T[3]}, 2, v{T[0]}")
            a(f"v_add_u32 v{T[2]}, v{T[2]}, v{T[3]}")
            a(f"v_lshlrev_b32 v{T[2]}, 5, v{T[2]}")
            a(f"v_and_b32 v{T[3]}, 3, v{T[0]}")
            a(f"v_lshl_add_u32 v{T[2]}, v{T[3]}, 3, v{T[2]}")
            a(f"v_add_u32 v{vWm}, {KVW}, v{T[2]}")
            a(f"v_lshlrev_b32 v{vGm}, 4, v{T[1]}")
            a(f"v_add_u32 v{vGm}, {GATE}, v{vGm}")
            for r in range(8): a(f"v_mov_b32 v{D+r}, 0")
        def work1(c): pass
        def work2(c):
            ps = [p for p in range(4) if MINI_C[p] == c]
            for p in ps:
                a(f"s_add_u32 s{sT0}, s{sG}, {p}")
                a(f"s_and_b32 s{sT0}, s{sT0}, 3")
                a(f"s_lshl_b32 s{sT1}, s{sT0}, 12")
                a(f"v_add_u32 v{vWt}, s{sT1}, v{vWm}")
                a(f"s_lshl_b32 s{sT1}, s{sT0}, 8")
                a(f"v_add_u32 v{vGt}, s{sT1}, v{vGm}")
                for j in range(4):
                    a(f"ds_read_b128 {r4(XF[j])}, v{vXa[j]} offset:{p*16384}")
                    for t in range(2):
                        a(f"ds_read_b64_tr_b16 {r2(WF[j]+2*t)}, v{vWt} offset:{j*1024 + t*256}")
                    a(f"ds_read_b128 {r4(GF[j])}, v{vGt} offset:{j*64}")
                a("s_waitcnt lgkmcnt(0)")
                a(f"s_cmp_eq_u32 s{sTYPE}, 0")
                a(f"s_cbranch_scc0 {L}_V{p}")
                for j in range(4):
                    a(f"v_mfma_f32_16x16x32_bf16 {r4(D)}, {r4(WF[j])}, {r4(XF[j])}, {r4(D)}")
                    a(f"v_mfma_f32_16x16x32_bf16 {r4(DG)}, {r4(GF[j])}, {r4(XF[j])}, {r4(DG)}")
                a(f"s_branch {L}_S{p}")
                a.label(f"{L}_V{p}")
                for j in range(4):
                    a(f"v_mfma_f32_16x16x32_bf16 {r4(D)}, {r4(XF[j])}, {r4(WF[j])}, {r4(D)}")
                a.label(f"{L}_S{p}")
                if p == 3: fin()
        def fin():
            Ee = 32
            a(f"v_and_b32 v{T[0]}, 15, v{vLane}")
            a(f"v_lshrrev_b32 v{T[1]}, 4, v{vLane}")
            a(f"v_cvt_pk_bf16_f32 v{Ee}, v{D}, v{D+1}")
            a(f"v_cvt_pk_bf16_f32 v{Ee+1}, v{D+2}, v{D+3}")
            a(f"v_and_b32 v{T[2]}, 1, v{T[1]}")
            a(f"v_lshrrev_b32 v{T[3]}, 1, v{T[1]}")
            a(f"v_lshlrev_b32 v{T[3]}, 3, v{T[3]}")
            a(f"v_lshl_add_u32 v{T[3]}, v{T[0]}, 4, v{T[3]}")
            a(f"s_lshl_b32 s{sT0}, s{sTB}, 1")
            a(f"s_lshr_b32 s{sT1}, s{sTT}, 1")
            a(f"s_add_u32 s{sT0}, s{sT0}, s{sT1}")
            a(f"s_lshl_b32 s{sT0}, s{sT0}, 10")
            a(f"s_and_b32 s{sT1}, s{sTT}, 1")
            a(f"s_lshl_b32 s{sT2}, s{sTB}, 2")
            a(f"s_add_u32 s{sT2}, s{sT2}, s{sTT}")
            a(f"s_lshl_b32 s{sT2}, s{sT2}, 2")
            for q in range(2):
                a(f"v_lshlrev_b32 v{Ee+4+2*q}, 16, v{Ee+q}")
                a(f"v_and_b32 v{Ee+5+2*q}, 0xffff0000, v{Ee+q}")
            a(f"s_cmp_eq_u32 s{sTYPE}, 0")
            a(f"s_cbranch_scc0 {L}_VST")
            a(f"v_lshl_add_u32 v{T[3]}, v{T[2]}, 9, v{T[3]}")
            a(f"s_lshl_b32 s{sT1}, s{sT1}, 8")
            a(f"s_add_u32 s{sT0}, s{sT0}, s{sT1}")
            a(f"s_add_u32 s{sT0}, s{sT0}, {WS_KF}")
            a(f"buffer_store_dwordx2 {r2(Ee)}, v{T[3]}, {W}, s{sT0} offen{SC}")
            a(f"v_mul_f32 v{Ee+8}, v{Ee+4}, v{Ee+4}")
            for k in range(1, 4): a(f"v_fmac_f32 v{Ee+8}, v{Ee+4+k}, v{Ee+4+k}")
            a(f"v_mov_b32 v{Ee+9}, v{Ee+8}")
            a(f"v_permlane32_swap_b32 v{Ee+8}, v{Ee+9}")
            a(f"v_add_f32 v{Ee+8}, v{Ee+8}, v{Ee+9}")
            a(f"v_mov_b32 v{Ee+9}, v{Ee+8}")
            a(f"v_permlane16_swap_b32 v{Ee+8}, v{Ee+9}")
            a(f"v_add_f32 v{Ee+8}, v{Ee+8}, v{Ee+9}")
            for sh in (1, 2, 4, 8):
                a(f"v_max_u32_dpp v{Ee+8}, v{Ee+8}, v{Ee+8} row_shr:{sh} row_mask:0xf bank_mask:0xf")
            a(f"v_readlane_b32 s{sT3}, v{Ee+8}, 15")
            a(f"v_mul_f32 v{DG}, {f32hex(-1.4426950408889634)}, v{DG}")
            a(f"v_exp_f32 v{DG}, v{DG}")
            a(f"v_add_f32 v{DG}, 1.0, v{DG}")
            a(f"v_rcp_f32 v{DG}, v{DG}")
            a(f"v_lshlrev_b32 v{T[4]}, 2, v{vLane}")
            a(f"s_lshl_b32 s{sT0}, s{sT2}, 4")
            a(f"s_add_u32 s{sT0}, s{sT0}, {WS_G}")
            a(f"s_add_u32 s{sT2}, s{sT2}, {WS_KMAX}")
            a("s_mov_b64 exec, 0xffff")
            a(f"buffer_store_dword v{DG}, v{T[4]}, {W}, s{sT0} offen{SC}")
            a(f"s_branch {L}_MX")
            a.label(L + "_VST")
            a(f"v_lshl_add_u32 v{T[3]}, v{T[2]}, 8, v{T[3]}")
            a(f"s_lshl_b32 s{sT1}, s{sT1}, 9")
            a(f"s_add_u32 s{sT0}, s{sT0}, s{sT1}")
            a(f"s_add_u32 s{sT1}, s{sT0}, {WS_VB}")
            a(f"s_add_u32 s{sT0}, s{sT0}, {WS_VF}")
            a(f"buffer_store_dwordx2 {r2(Ee)}, v{T[3]}, {W}, s{sT1} offen{SC}")
            for q in range(2):
                a(f"v_cvt_pkrtz_f16_f32 v{Ee+8+q}, v{Ee+4+2*q}, v{Ee+5+2*q}")
            a(f"buffer_store_dwordx2 {r2(Ee+8)}, v{T[3]}, {W}, s{sT0} offen{SC}")
            for q in range(4): a(f"v_and_b32 v{Ee+4+q}, 0x7fffffff, v{Ee+4+q}")
            a(f"v_max_u32 v{Ee+4}, v{Ee+4}, v{Ee+5}")
            a(f"v_max3_u32 v{Ee+4}, v{Ee+4}, v{Ee+6}, v{Ee+7}")
            a(f"v_mov_b32 v{Ee+5}, v{Ee+4}")
            a(f"v_permlane32_swap_b32 v{Ee+4}, v{Ee+5}")
            a(f"v_max_u32 v{Ee+4}, v{Ee+4}, v{Ee+5}")
            a(f"v_mov_b32 v{Ee+5}, v{Ee+4}")
            a(f"v_permlane16_swap_b32 v{Ee+4}, v{Ee+5}")
            a(f"v_max_u32 v{Ee+4}, v{Ee+4}, v{Ee+5}")
            for sh in (1, 2, 4, 8):
                a(f"v_max_u32_dpp v{Ee+4}, v{Ee+4}, v{Ee+4} row_shr:{sh} row_mask:0xf bank_mask:0xf")
            a(f"v_readlane_b32 s{sT3}, v{Ee+4}, 15")
            a(f"s_add_u32 s{sT2}, s{sT2}, {WS_VMAX}")
            a.label(L + "_MX")
            a("s_mov_b64 exec, 1")
            a(f"v_mov_b32 v{Ee+10}, s{sT3}")
            a(f"v_mov_b32 v{Ee+11}, 0")
            vq.q.append("MST"); vq.q.append("MST")
            vq.issue("MST", f"buffer_store_dword v{Ee+10}, v{Ee+11}, {W}, s{sT2} offen{SC}")
            a("s_mov_b64 exec, -1")
        def endit(c):
            if c == CFLAG - 1: vq.wait("MST")
        return dict(pre=pre, work1=work1, work2=work2, endit=endit, post=nop)

    def w2_role(vq):
        vR = 28; F = 32; vFl = 26; vFa = 27
        def pre():
            a(f"v_lshrrev_b32 v{T[0]}, 5, v{vLane}")
            a(f"v_bfe_u32 v{T[2]}, v{vLane}, 2, 2")
            a(f"v_lshl_add_u32 v{T[3]}, v{T[0]}, 2, v{T[2]}")
            a(f"v_lshlrev_b32 v{T[3]}, 6, v{T[3]}")
            a(f"v_bfe_u32 v{T[4]}, v{vLane}, 4, 1")
            a(f"v_lshl_add_u32 v{T[3]}, v{T[4]}, 5, v{T[3]}")
            a(f"v_and_b32 v{T[5]}, 3, v{vLane}")
            a(f"v_lshl_add_u32 v{T[3]}, v{T[5]}, 3, v{T[3]}")
            a(f"v_add_u32 v{vR}, {W2P}, v{T[3]}")
            a(f"s_lshl_b32 s{sT0}, s{sTB}, 3")
            a(f"s_add_u32 s{sT0}, s{sT0}, s{sCG}")
            a(f"s_lshl_b32 s{sT2}, s{sT0}, 5")
            a(f"s_add_u32 s{sT2}, s{sT2}, {WS_HFL}")
            a(f"s_and_b32 s{sT1}, s{sT0}, 15")
            a(f"s_mul_i32 s{sT1}, s{sT1}, 112")
            a(f"s_lshr_b32 s{sT0}, s{sT0}, 4")
            a(f"s_mul_i32 s{sT0}, s{sT0}, 7")
            a(f"s_add_u32 s{sT0}, s{sT0}, s{sT1}")
            a(f"s_lshl_b32 s{sT0}, s{sT0}, 10")
            a(f"s_add_u32 s{sM}, s{sT0}, {WS_W2F}")
            a(f"s_lshl_b32 s{sW2m}, s2, 13")
            a(f"s_add_u32 s{sW2m}, s{sW2m}, {WS_OF}")
            for r in range(4): a(f"v_mov_b32 v{F+8+r}, -1")
            for r in range(4): a(f"v_mov_b32 v{F+4+r}, 0")
            a("s_mov_b64 exec, 3")
            vq.issue("WST", f"buffer_store_dwordx4 {r4(F+4)}, v{vL16}, {W}, s{sT2} offen{SC}")
            a("s_mov_b64 exec, -1")
            for i in range(8):
                vq.issue("WST", f"buffer_store_dwordx4 {r4(F+8)}, v{vL16}, {W}, s{sW2m} offen offset:{(i%4)*1024}{SC}")
                if i == 3: a(f"s_add_u32 s{sW2m}, s{sW2m}, 4096")
        def spin(tag, regs, reload_, want):
            a(f"s_mov_b32 s{sT0}, 8192")
            a.label(f"{P}{tag}")
            if len(regs) > 1:
                a(f"v_and_b32 v{regs[0]}, v{regs[0]}, v{regs[1]}")
                a(f"v_and_b32 v{regs[2]}, v{regs[2]}, v{regs[3]}")
                a(f"v_and_b32 v{regs[0]}, v{regs[0]}, v{regs[2]}")
            a(f"v_cmp_ne_u32 vcc, {want}, v{regs[0]}")
            a(f"s_cbranch_vccz {P}{tag}OK")
            a(f"s_sub_u32 s{sT0}, s{sT0}, 1")
            a(f"s_cmp_eq_u32 s{sT0}, 0")
            a(f"s_cbranch_scc1 {P}{tag}OK")
            reload_()
            a("s_waitcnt vmcnt(0)")
            a(f"s_branch {P}{tag}")
            a.label(f"{P}{tag}OK")
        PR = [32, 33, 34, 35]
        def work1(c):
            if c == CW2:
                for i in range(7):
                    for t in range(2):
                        a(f"ds_read_b64_tr_b16 {r2(F+12+4*i+2*t)}, v{vR} offset:{i*1024+t*512}")
            if c == CRD:
                vq.issue("RD", f"buffer_load_dword v{vFa}, off, s[{sDBG}:{sDBG+3}], 0{SC}")
            if c == CFLAG:
                a(f"v_mov_b32 v{vFl}, 1")
                a(f"s_and_b32 s{sT0}, s2, 63")
                a(f"s_lshl_b32 s{sT0}, s{sT0}, 4")
                a(f"s_lshr_b32 s{sT1}, s2, 6")
                a(f"s_lshl_b32 s{sT1}, s{sT1}, 10")
                a(f"s_add_u32 s{sT0}, s{sT0}, s{sT1}")
                a(f"s_add_u32 s{sT0}, s{sT0}, {WS_GFL}")
                vq.issue("FLG", f"buffer_store_dword v{vFl}, off, {W}, s{sT0}{SC}")
            if c == CPOLL:
                a(f"s_mov_b32 s{sM}, {WS_GFL}")
                for j in range(4):
                    vq.issue("POLL", f"buffer_load_dword v{PR[j]}, v{vL16}, {W}, s{sM} offen offset:{j*1024}{SC}")
        def work2(c):
            if c == CW2:
                for i in range(7):
                    a(f"s_waitcnt lgkmcnt({12-2*i})")
                    vq.issue("WST", f"buffer_store_dwordx4 {r4(F+12+4*i)}, v{vL16}, {W}, s{sM} offen{SC}")
                    a(f"s_add_u32 s{sM}, s{sM}, 1024")
        def endit(c):
            if c == CW2 - 1: vq.wait("W2")
            if c == CFLAG - 1:
                vq.wait("WST"); vq.wait("RD")
                spin("RDW", [vFa], lambda: a(f"buffer_load_dword v{vFa}, off, s[{sDBG}:{sDBG+3}], 0{SC}"), 1)
            if c == CCHK:
                vq.wait("POLL")
                def rl():
                    for j in range(4):
                        a(f"buffer_load_dword v{PR[j]}, v{vL16}, {W}, s{sM} offen offset:{j*1024}{SC}")
                spin("POLL", PR, rl, 1)
        return dict(pre=pre, work1=work1, work2=work2, endit=endit, post=nop)

    a(f"s_cmp_ge_u32 s{sW}, 6")
    a(f"s_cbranch_scc1 {P}L67")
    loader('C')
    a.label(f"{P}L67")
    a(f"s_cmp_eq_u32 s{sW}, 7")
    a(f"s_cbranch_scc1 {P}L7")
    loader('M')
    a.label(f"{P}L7")
    loader('W')

    a.label("B_ENTRY")
    vq = VQ(a); lq = LQ(a)
    vq.q += ([] if E("NOFL") else ["F0.0", "F0.3", "F1.0", "F1.3"]) + ["HST"]
    dcount[0] = 4; fstep.clear()
    sW, sTB, sHG, sT0, sT1, sT2, sT3 = bW, bTB, bHG, bT0, bT1, bT2, bT3
    srd(a, sOUT, 6, 0x200000)
    srd(a, sWO, 4, 0x80000)
    km = vKM
    a(f"v_max_u32 v{km}, v{km}, v{km+1}")
    a(f"v_max3_u32 v{km}, v{km}, v{km+2}, v{km+3}")
    for sh in (1, 2, 4, 8):
        a(f"v_max_u32_dpp v{km}, v{km}, v{km} row_shr:{sh} row_mask:0xf bank_mask:0xf")
    a(f"v_max_u32_dpp v{km}, v{km}, v{km} row_bcast:15 row_mask:0xa bank_mask:0xf")
    a(f"v_readlane_b32 s{sKM}, v{km}, 31")
    a(f"v_readlane_b32 s{sVM}, v{km}, 63")
    a(f"s_lshl_b32 s{sT0}, s{sW}, 10")
    a(f"s_add_u32 s{sT0}, s{sT0}, {QX}")
    a(f"v_add_u32 v{T[0]}, s{sT0}, v{vL16}")
    a(f"s_sub_u32 s{sT0}, s{sVM}, 0x3c800000")
    a(f"s_cmp_le_u32 s{sT0}, {0x47000000 - 0x3c800000}")
    a(f"s_cselect_b32 s{sT0}, 0, 0x7f800000")
    a("s_waitcnt lgkmcnt(0)")
    a("s_barrier")
    lq.issue("Q", f"ds_read_b128 {r4(Q)}, v{T[0]}")
    lq.issue("K0", f"ds_read_b128 {r4(KF)}, v{vL16}")
    lq.issue("K1", f"ds_read_b128 {r4(V1)}, v{vL16} offset:1024")
    lq.issue("VA0", f"ds_read_b128 {r4(V0)}, v{vV}")
    lq.wait("Q")
    a(f"v_mov_b32 v{T[2]}, 0")
    for r in range(4):
        a(f"v_dot2_f32_bf16 v{T[2]}, v{Q+r}, v{Q+r}, v{T[2]}")
    a(f"v_mov_b32 v{T[5]}, v{T[2]}")
    a(f"v_permlane32_swap_b32 v{T[2]}, v{T[5]}")
    a(f"v_add_f32 v{T[2]}, v{T[2]}, v{T[5]}")
    a(f"v_mul_f32 v{T[2]}, s{sKM}, v{T[2]}")
    a(f"v_sqrt_f32 v{T[2]}, v{T[2]}")
    a(f"v_add_f32 v{T[2]}, s{sT0}, v{T[2]}")
    a(f"v_sub_f32 v{CB}, {f32hex(TBITS / 65535.0)}, v{T[2]}")
    for r in range(1, 16): a(f"v_mov_b32 v{CB+r}, v{CB}")
    if not MARKC: ts_mark(a, MA[3])

    def valu3(Sx):
        seq = []
        for k in range(10):
            if k < 8: seq.append(f"v_cvt_pknorm_u16_f32 v{Y+k}, v{Sx+2*k}, v{Sx+2*k+1}")
            if 0 <= k - 1 < 8: seq.append(f"v_add_u32 v{Y2+(k-1)%4}, v{cA}, v{Y+k-1}")
            if 0 <= k - 2 < 8: seq.append(f"v_pk_fma_f16 v{Y+k-2}, v{Y2+(k-2)%4}, v{cM}, v{Y+k-2}")
        return seq

    aux = {}
    def at(t, pos, fn): aux.setdefault(t, {}).setdefault(pos, []).append(fn)
    kd = lambda: kv_dma(vq)
    for t in (0, 1, 2, 3): at(t, 5, kd)
    for t in (8, 10, 12, 15): at(t, 5, kd)
    for t in (24, 26, 28, 31): at(t, 5, kd)
    def g_loads():
        a(f"s_lshl_b32 s{sT0}, s{sTB}, 8")
        a(f"s_add_u32 s{sT0}, s{sT0}, {WS_G}")
        a(f"s_lshl_b32 s{sT1}, s{sTS}, 7")
        a(f"s_add_u32 s{sT1}, s{sT1}, s{sT0}")
        vq.issue("G", f"buffer_load_dword v{vGT}, v{vGF}, {W}, s{sT1} offen{SC}")
        a(f"s_lshl_b32 s{sT1}, s{sXB}, 7")
        a(f"s_add_u32 s{sT1}, s{sT1}, s{sT0}")
        vq.issue("G", f"buffer_load_dword v{vGF}, v{vGF}, {W}, s{sT1} offen{SC}")
    at(20, 5, g_loads)
    def hflag_set():
        vq.wait("HST")
        a(f"v_mov_b32 v{vHP}, 1")
        vq.issue("HFS", f"buffer_store_dword v{vHP}, off, {W}, s{sHFo}{SC}")
    at(USET, 1, hflag_set)
    def hflag_load():
        vq.issue("HFL", f"buffer_load_dword v{vHP}, v{vHA}, {W}, s{sHFi} offen{SC}")
    at(UPOLL, 1, hflag_load)
    def hflag_check():
        vq.wait("HFL")
        a(f"s_mov_b32 s{sPoll}, 8192")
        a.label("B_HP")
        a(f"v_cmp_ne_u32 vcc, 1, v{vHP}")
        a("s_cbranch_vccz B_HPOK")
        a(f"s_sub_u32 s{sPoll}, s{sPoll}, 1")
        a(f"s_cmp_eq_u32 s{sPoll}, 0")
        a("s_cbranch_scc1 B_HPOK")
        a(f"buffer_load_dword v{vHP}, v{vHA}, {W}, s{sHFi} offen{SC}")
        a("s_waitcnt vmcnt(0)")
        a("s_branch B_HP")
        a.label("B_HPOK")
        for st in range(NB):
            for wh in (1, 2): ffn_load(vq, wh, st)
    at(UCHK, 1, hflag_check)
    def a_more():
        for st in range(2, NB):
            for wh in (0, 3): ffn_load(vq, wh, st)
    at(UA, 8, a_more)
    wo_n = [0]
    def wo_dma():
        i = wo_n[0]; wo_n[0] += 1
        if i == 0:
            a(f"s_lshl_b32 s{sT0}, s{sNS}, 14")
            a(f"s_lshl_b32 s{sT1}, s{sXB}, 16")
            a(f"s_add_u32 s{sT0}, s{sT0}, s{sT1}")
            a(f"s_lshl_b32 s{sT1}, s{sTS}, 13")
            a(f"s_add_u32 m0, s{sT0}, s{sT1}")
        vq.issue("WO", f"buffer_load_dwordx4 v{vWo}, s[{sWO}:{sWO+3}], s{sWoS} offen lds")
        if i < 7:
            a(f"s_add_u32 m0, m0, 1024")
            a(f"s_add_u32 s{sWoS}, s{sWoS}, 8192")
    for t in range(47, 55): at(t, 5, wo_dma)
    bars = {14: "D3V", 30: "D5V", 46: "D7V", 58: None}
    nF = 60 - F0
    fsched = {}
    for i in range(56): fsched.setdefault(F0 + (i * nF) // 56, []).append(i)

    def fw(tag):
        if tag in vq.q: vq.wait(tag)
    def ffn_mfma(i):
        if E("NOFM"): return
        st, m = i >> 2, i & 3
        buf = FBS[st % NB]
        A0, A1, B0, B1 = buf, buf + 4, buf + 8, buf + 12
        pre = st + NB < 14
        if m == 0:
            fw(f"F{st}.1")
            a(f"v_mfma_f32_32x32x16_bf16 {r16(acc(0))}, {r4(A0)}, {r4(B0)}, {r16(acc(0))}")
        elif m == 1:
            fw(f"F{st}.2")
            a(f"v_mfma_f32_32x32x16_bf16 {r16(acc(2))}, {r4(A0)}, {r4(B1)}, {r16(acc(2))}")
            if pre: ffn_load(vq, 0, st + NB)
        elif m == 2:
            fw(f"F{st}.3")
            a(f"v_mfma_f32_32x32x16_bf16 {r16(acc(1))}, {r4(A1)}, {r4(B0)}, {r16(acc(1))}")
            if pre: ffn_load(vq, 1, st + NB)
        else:
            a(f"v_mfma_f32_32x32x16_bf16 {r16(acc(3))}, {r4(A1)}, {r4(B1)}, {r16(acc(3))}")
            if pre:
                ffn_load(vq, 2, st + NB); ffn_load(vq, 3, st + NB)

    def unit(t):
        x = t & 1; y = 1 - x
        Sx, Sy = S[x], S[y]
        tl = t & 7
        seq = valu3(Sx)
        if t in bars:
            if bars[t]: vq.wait(bars[t])
            a("s_barrier")
        fl = list(fsched.get(t, []))
        def slot0():
            if t > 0:
                lq.wait(f"VB{t-1}")
                a(f"v_mfma_f32_32x32x16_f16 {r16(O)}, {r4(V1)}, {r4(Y+4)}, {r16(O)}")
                lq.issue(f"VB{t}", f"ds_read_b128 {r4(V1)}, v{vV} offset:{tl*1024+512}")
            if len(fl) > 1: ffn_mfma(fl.pop(0))
        def slot1():
            if t == 0:
                lq.wait("K1")
                a(f"v_mfma_f32_32x32x16_bf16 {r16(Sy)}, {r4(V1)}, {r4(Q)}, {r16(CB)}")
                lq.issue("VB0", f"ds_read_b128 {r4(V1)}, v{vV} offset:512")
                lq.issue("K2", f"ds_read_b128 {r4(KF)}, v{vL16} offset:2048")
            elif t < 63:
                lq.wait(f"K{t+1}")
                a(f"v_mfma_f32_32x32x16_bf16 {r16(Sy)}, {r4(KF)}, {r4(Q)}, {r16(CB)}")
                if t + 2 <= 63: lq.issue(f"K{t+2}", f"ds_read_b128 {r4(KF)}, v{vL16} offset:{(t+2)*1024}")
        def slot2():
            while fl: ffn_mfma(fl.pop(0))
            if t >= 60:
                k = t - 60
                for qd in range(2 * k, 2 * k + 2):
                    i, rq = qd >> 2, qd & 3
                    lq.issue("RW", f"ds_write_b128 v{vRW}, {r4(acc(2+i)+4*rq)} offset:{i*4096+rq*1024}")
        def slot3():
            lq.wait(f"VA{t}")
            a(f"v_mfma_f32_32x32x16_f16 {r16(O)}, {r4(V0)}, {r4(Y)}, {r16(O)}")
            if t < 63:
                if (t + 1) & 7 == 0: a(f"v_add_u32 v{vV}, v{vVi}, v{vV}")
                lq.issue(f"VA{t+1}", f"ds_read_b128 {r4(V0)}, v{vV} offset:{((t+1)&7)*1024}")
        slots = [slot0, slot1, slot2, slot3]
        mi = 0
        for i, s_ in enumerate(seq):
            for fn in aux.get(t, {}).get(i, []): fn()
            while mi < 4 and POS[mi] == i:
                slots[mi](); mi += 1
            a(s_)
        while mi < 4:
            slots[mi](); mi += 1

    lq.wait("K0")
    a(f"v_mfma_f32_32x32x16_bf16 {r16(S[0])}, {r4(KF)}, {r4(Q)}, {r16(CB)}")
    for t in range(64):
        if BM and t in BM: ts_mark(a, MK[BM.index(t)])
        unit(t)
    if not BM: ts_mark(a, MK[0])
    lq.wait("VB63")
    a(f"v_mfma_f32_32x32x16_f16 {r16(O)}, {r4(V1)}, {r4(Y+4)}, {r16(O)}")
    a(f"v_lshrrev_b32 v{T[0]}, 5, v{vLane}")
    a(f"v_bfe_u32 v{T[1]}, v{vLane}, 2, 2")
    a(f"v_lshl_add_u32 v{T[0]}, v{T[0]}, 2, v{T[1]}")
    a(f"v_lshlrev_b32 v{T[0]}, 7, v{T[0]}")
    a(f"v_bfe_u32 v{T[1]}, v{vLane}, 3, 1")
    a(f"v_lshl_add_u32 v{T[0]}, v{T[1]}, 6, v{T[0]}")
    a(f"v_bfe_u32 v{T[1]}, v{vLane}, 4, 1")
    a(f"v_lshl_add_u32 v{T[0]}, v{T[1]}, 5, v{T[0]}")
    a(f"v_and_b32 v{T[1]}, 3, v{vLane}")
    a(f"v_lshl_add_u32 v{T[0]}, v{T[1]}, 3, v{T[0]}")
    a(f"s_lshl_b32 s{sT0}, s{sNS}, 14")
    a(f"s_lshl_b32 s{sT1}, s{sXB}, 16")
    a(f"s_add_u32 s{sT0}, s{sT0}, s{sT1}")
    a(f"s_lshl_b32 s{sT1}, s{sNS}, 6")
    a(f"v_add_u32 v{T[0]}, s{sT0}, v{T[0]}")
    a(f"v_xor_b32 v{T[0]}, s{sT1}, v{T[0]}")
    a(f"v_xor_b32 v{T[1]}, 64, v{T[0]}")
    vq.wait("WO")
    a(f"v_mov_b32 v{V1}, v{O+8}")
    a(f"v_subrev_u32 v{T[2]}, {LMIN_BITS}, v{V1}")
    a(f"v_cmp_gt_u32 vcc, {0x7f800000 - LMIN_BITS}, v{T[2]}")
    a("s_cmp_eq_u64 vcc, -1")
    a("s_cbranch_scc0 B_SLOW")
    a.label("B_NORM")
    a(f"v_rcp_f32 v{V1}, v{V1}")
    a(f"v_mul_f32 v{V1}, v{V1}, v{vGF}")
    for r in range(8): a(f"v_mul_f32 v{O+r}, v{O+r}, v{V1}")
    for r in range(4): a(f"v_cvt_pk_bf16_f32 v{Y+r}, v{O+2*r}, v{O+2*r+1}")
    a(f"buffer_store_dwordx4 {r4(Y)}, v{vL16}, {W}, s{sT3} offen sc1")
    OFR = [FB + 4 * i for i in range(8)]
    def of_loads(lo, hi, pol="sc1"):
        for i in range(lo, hi):
            a(f"buffer_load_dwordx4 {r4(OFR[i])}, v{vL16}, {W}, s{sOf if i < 4 else sT2} offen offset:{(i%4)*1024} {pol}")
    a(f"s_add_u32 s{sT2}, s{sOf}, 4096")
    a("s_waitcnt lgkmcnt(0)")
    a("s_barrier")
    for i in range(2):
        for rq in range(4):
            a(f"ds_read_b128 {r4(S[0]+16*i+4*rq)}, v{vRR} offset:{i*4096+rq*1024}")
    WOA = [acc(2) + 4 * i for i in range(8)]
    WOB = [X1 + 4 * i for i in range(4)] + [SP + 4 * i for i in range(4)]
    a(f"v_sub_f32 v{vGT}, 1.0, v{vGT}")
    for h in range(8):
        for t in range(2):
            a(f"ds_read_b64_tr_b16 {r2(WOA[h]+2*t)}, v{T[0]} offset:{h*2048+t*1024}")
        if h == 3:
            a("s_waitcnt lgkmcnt(8)")
            for r in range(32):
                a(f"v_add_f32 v{ACC+r}, v{ACC+r}, v{S[0]+r}")
    for h in range(8):
        for t in range(2):
            a(f"ds_read_b64_tr_b16 {r2(WOB[h]+2*t)}, v{T[1]} offset:{h*2048+t*1024}")
    for r in range(32):
        a(f"v_mul_f32 v{ACC+r}, v{ACC+r}, v{vGT}")
    a(f"s_mul_i32 s{sT0}, s{sKQ}, {F2}")
    a(f"s_lshl_b32 s{sT1}, s{sTS}, 10")
    a(f"s_add_u32 s{sT0}, s{sT0}, s{sT1}")
    a(f"s_mul_i32 s{sT1}, s{sNS}, {4*CS}")
    a(f"s_add_u32 s{sT1}, s{sT1}, s{sT0}")
    a(f"v_add_u32 v{T[2]}, s{sT1}, v{vL16}")
    a(f"s_xor_b32 s{sT1}, s{sNS}, 1")
    a(f"s_mul_i32 s{sT1}, s{sT1}, {4*CS}")
    a(f"s_add_u32 s{sT1}, s{sT1}, s{sT0}")
    a(f"v_add_u32 v{T[3]}, s{sT1}, v{vL16}")
    a(f"v_and_b32 v{T[4]}, 7, v{vLane}")
    a(f"v_lshrrev_b32 v{T[5]}, 3, v{vLane}")
    a(f"v_mul_u32_u24 v{T[6]}, {CS}, v{T[4]}")
    a(f"v_lshl_add_u32 v{T[6]}, v{T[5]}, 4, v{T[6]}")
    a(f"s_lshl_b32 s{sT0}, s{sXB}, 10")
    a(f"s_lshl_b32 s{sT1}, s{sW3}, 7")
    a(f"s_add_u32 s{sT0}, s{sT0}, s{sT1}")
    a(f"v_add_u32 v{T[6]}, s{sT0}, v{T[6]}")
    a(f"v_add_u32 v{T[7]}, {2*F2}, v{T[6]}")
    a(f"v_lshlrev_b32 v{T[5]}, 10, v{T[5]}")
    a(f"v_lshl_add_u32 v{T[5]}, v{T[4]}, 4, v{T[5]}")
    a(f"s_lshl_b32 s{sT0}, s{sTB}, 16")
    a(f"s_lshl_b32 s{sT1}, s{sW}, 13")
    a(f"s_add_u32 s{sT0}, s{sT0}, s{sT1}")
    a(f"s_lshl_b32 s{sT1}, s{sHG}, 7")
    a(f"s_add_u32 s{sT3}, s{sT0}, s{sT1}")
    a("s_waitcnt lgkmcnt(0)")
    a("s_barrier")
    if not BM: ts_mark(a, MK[1])
    of_loads(0, 8)
    for g in range(4):
        a(f"s_mov_b32 s{sPoll}, 4096")
        a(f"s_waitcnt vmcnt({6 - 2*g})")
        a.label(f"B_POLL{g}")
        rr = [OFR[i] + k for i in (2 * g, 2 * g + 1) for k in range(4)]
        a(f"v_max_u32 v{T[0]}, v{rr[0]}, v{rr[1]}")
        for k in range(2, 8, 2):
            a(f"v_max3_u32 v{T[0]}, v{rr[k]}, v{rr[k+1]}, v{T[0]}")
        a(f"v_cmp_eq_u32 vcc, -1, v{T[0]}")
        a(f"s_cbranch_vccz B_GO{g}")
        a(f"s_sub_u32 s{sPoll}, s{sPoll}, 1")
        a(f"s_cmp_eq_u32 s{sPoll}, 0")
        a(f"s_cbranch_scc1 B_GO{g}")
        of_loads(2 * g, 2 * g + 2)
        a("s_waitcnt vmcnt(0)")
        a(f"s_branch B_POLL{g}")
        a.label(f"B_GO{g}")
        for i in (2 * g, 2 * g + 1):
            a(f"v_mfma_f32_32x32x16_bf16 {r16(acc(0))}, {r4(WOA[i])}, {r4(OFR[i])}, {r16(acc(0))}")
            a(f"v_mfma_f32_32x32x16_bf16 {r16(acc(1))}, {r4(WOB[i])}, {r4(OFR[i])}, {r16(acc(1))}")
    if not BM: ts_mark(a, MK[2])
    for i in range(2):
        for rq in range(4):
            a(f"ds_write_b128 v{T[2+i]}, {r4(acc(i)+4*rq)} offset:{rq*CS}")
    a("s_waitcnt lgkmcnt(0)")
    a("s_barrier")
    R = S[0]
    for kq in range(4):
        base = T[6] if kq < 2 else T[7]
        for h in range(2):
            a(f"ds_read_b128 {r4(R+(kq*2+h)*4)}, v{base} offset:{(kq&1)*F2+h*512}")
    a("s_waitcnt lgkmcnt(4)")
    for k in range(8): a(f"v_add_f32 v{R+k}, v{R+k}, v{R+8+k}")
    a("s_waitcnt lgkmcnt(0)")
    for k in range(8): a(f"v_add_f32 v{R+16+k}, v{R+16+k}, v{R+24+k}")
    for k in range(8): a(f"v_add_f32 v{R+k}, v{R+k}, v{R+16+k}")
    for k in range(4): a(f"v_cvt_pk_bf16_f32 v{Y+k}, v{R+2*k}, v{R+2*k+1}")
    a(f"buffer_store_dwordx4 {r4(Y)}, v{T[5]}, s[{sOUT}:{sOUT+3}], s{sT3} offen")
    if not BM: ts_mark(a, MK[3])
    if TS: a("s_waitcnt lgkmcnt(0)")
    ts_end(a, 0, sWS, sW, MA)
    if TS:
        a("s_mov_b64 exec, -1")
        for i in range(4): a(f"v_mov_b32 v{i}, s{MK[i]}")
        a(f"s_add_u32 s4, s4, 0x20000")
        a("s_mov_b64 exec, 1")
        a(f"buffer_store_dwordx4 v[0:3], v8, s[{sWS}:{sWS+3}], s4 offen offset:16")
    a("s_endpgm")

    a.label("B_SLOW")
    M = T[2]
    CI = 65535.0 / 1024.0
    a(f"v_mov_b32 v{M}, 0xff800000")
    a(f"s_mov_b32 s{sT0}, {WS_KF}")
    a(f"s_mov_b32 s{sCnt}, 64")
    a.label("B_SL1")
    a(f"buffer_load_dwordx4 {r4(KF)}, v{vL16}, {W}, s{sT0} offen{SC}")
    a(f"s_add_u32 s{sT0}, s{sT0}, 1024")
    a("s_waitcnt vmcnt(0)")
    a(f"v_mfma_f32_32x32x16_bf16 {r16(S[0])}, {r4(KF)}, {r4(Q)}, 0")
    for r in range(0, 16, 2):
        a(f"v_max3_f32 v{M}, v{S[0]+r}, v{S[0]+r+1}, v{M}")
    a(f"s_sub_u32 s{sCnt}, s{sCnt}, 1")
    a(f"s_cmp_lg_u32 s{sCnt}, 0")
    a("s_cbranch_scc1 B_SL1")
    a(f"v_mov_b32 v{T[3]}, v{M}")
    a(f"v_permlane32_swap_b32 v{M}, v{T[3]}")
    a(f"v_max_f32 v{M}, v{M}, v{T[3]}")
    a(f"v_mul_f32 v{M}, {f32hex(-CI)}, v{M}")
    a(f"v_mov_b32 v{T[3]}, {f32hex(CI)}")
    a(f"v_and_b32 v{T[4]}, 15, v{vLane}")
    a(f"v_lshlrev_b32 v{T[4]}, 4, v{T[4]}")
    a(f"v_lshrrev_b32 v{T[5]}, 5, v{vLane}")
    a(f"v_lshl_add_u32 v{T[4]}, v{T[5]}, 8, v{T[4]}")
    a(f"v_and_b32 v{T[5]}, 16, v{vLane}")
    a(f"v_cmp_eq_u32 s[40:41], 0, v{T[5]}")
    a(f"v_mov_b32 v{T[5]}, 0x3f803f80")
    for r in range(16): a(f"v_mov_b32 v{O+r}, 0")
    a(f"s_mov_b32 s{sT0}, {WS_KF}")
    a(f"s_mov_b32 s{sT1}, {WS_VB}")
    a(f"s_mov_b32 s{sCnt}, 64")
    a.label("B_SL2")
    a(f"buffer_load_dwordx4 {r4(KF)}, v{vL16}, {W}, s{sT0} offen{SC}")
    a(f"buffer_load_dwordx4 {r4(V0)}, v{T[4]}, {W}, s{sT1} offen{SC}")
    a(f"buffer_load_dwordx4 {r4(S[1])}, v{T[4]}, {W}, s{sT1} offen offset:512{SC}")
    a(f"s_add_u32 s{sT0}, s{sT0}, 1024")
    a(f"s_add_u32 s{sT1}, s{sT1}, 1024")
    a("s_waitcnt vmcnt(0)")
    a(f"v_mfma_f32_32x32x16_bf16 {r16(S[0])}, {r4(KF)}, {r4(Q)}, 0")
    for r in range(4):
        a(f"v_cndmask_b32 v{V0+r}, v{T[5]}, v{V0+r}, s[40:41]")
        a(f"v_cndmask_b32 v{S[1]+r}, v{T[5]}, v{S[1]+r}, s[40:41]")
    for r in range(16):
        a(f"v_fma_f32 v{S[0]+r}, v{S[0]+r}, v{T[3]}, v{M}")
        a(f"v_exp_f32 v{S[0]+r}, v{S[0]+r}")
    for k in range(8):
        a(f"v_cvt_pk_bf16_f32 v{Y+k}, v{S[0]+2*k}, v{S[0]+2*k+1}")
    a(f"v_mfma_f32_32x32x16_bf16 {r16(O)}, {r4(V0)}, {r4(Y)}, {r16(O)}")
    a(f"v_mfma_f32_32x32x16_bf16 {r16(O)}, {r4(S[1])}, {r4(Y+4)}, {r16(O)}")
    a(f"s_sub_u32 s{sCnt}, s{sCnt}, 1")
    a(f"s_cmp_lg_u32 s{sCnt}, 0")
    a("s_cbranch_scc1 B_SL2")
    a(f"v_mov_b32 v{V1}, v{O+8}")
    a("s_branch B_NORM")
    a.label("M_END")
    a("s_endpgm")
    return a

if __name__ == "__main__":
    out = sys.argv[1] if len(sys.argv) > 1 else "m1.s"
    lst = bool(TS) or bool(E("LIST"))
    nm = "m_kernel" if lst else "gated_mix__grouped_kv_mqa__dense_activation_relu__prompt_kernel"
    a = gen_m(nm)
    txt = HEADER + (f"; @launch kernel={nm} " if lst else "; @launch ") + f"grid=(256,1,1) block=(512,1,1) lds={M_LDS}\n"
    txt += '.amdgcn_target "amdgcn-amd-amdhsa--gfx950"\n.text\n'
    a.fix()
    txt += kernel_header(nm) + a.text()
    txt += '.section .rodata,"a"\n' + kernel_desc(nm, 256, 256)
    open(out, "w").write(txt)
```

```python
import sys, os
sys.path.insert(0, os.path.dirname(os.path.abspath(__file__)))
from asmlib import Asm
from gen import (WS_KF, WS_VF, WS_G, WS_KMAX, WS_HF, WS_W2F, WS_OF, WS_SIZE, QS2, WS_VB, WS_VMAX, f32hex, srd,
                 ts_begin, ts_mark, ts_end, TS)
WS_QF = 0

def r4(x): return f"v[{x}:{x+3}]"
def r2(x): return f"v[{x}:{x+1}]"
def r16(x): return f"v[{x}:{x+15}]"

XIMG, RING, SLOT, HOFF = 0, 65536, 18432, 4096
KVW = RING + 4 * SLOT
GATE = KVW + 16384
W2P = GATE + 1024
K1_LDS = W2P + 7 * 1024
assert K1_LDS == 163840
K1PM = int(os.environ.get("K1PM", "0"))
ROT = int(os.environ.get("ROT", "1"))
ST = os.environ.get("K1ST", "sc1")
if ST: ST = " " + ST

def map_t8(a, sB, sTB, sCG, sT0, mode):
    if mode == 'simple':
        a(f"s_and_b32 s{sTB}, s{sB}, 31")
        a(f"s_lshr_b32 s{sCG}, s{sB}, 5")
    elif mode == 'X8':
        a(f"s_bfe_u32 s{sCG}, s{sB}, 0x30003")
        a(f"s_and_b32 s{sTB}, s{sB}, 7")
        a(f"s_lshl_b32 s{sTB}, s{sTB}, 2")
        a(f"s_lshr_b32 s{sT0}, s{sB}, 6")
        a(f"s_or_b32 s{sTB}, s{sTB}, s{sT0}")
    else:
        a(f"s_and_b32 s{sCG}, s{sB}, 1")
        a(f"s_lshl_b32 s{sCG}, s{sCG}, 2")
        a(f"s_bfe_u32 s{sT0}, s{sB}, 0x20003")
        a(f"s_or_b32 s{sCG}, s{sCG}, s{sT0}")
        a(f"s_bfe_u32 s{sTB}, s{sB}, 0x20001")
        a(f"s_lshl_b32 s{sTB}, s{sTB}, 3")
        a(f"s_lshr_b32 s{sT0}, s{sB}, 5")
        a(f"s_or_b32 s{sTB}, s{sTB}, s{sT0}")

def gen_k1r(name, mapmode='T8'):
    a = Asm()
    a.label(name)
    P = "K1_"
    sX, sW1, sWQ, sKV, sWS, sW2, sGT = 36, 40, 44, 48, 52, 56, 60
    sTB, sCG, sW, sT0, sT1, sC, sSlot, sK, sSo, sT2, sT3, sTYPE, sTT, sM = 64, 65, 66, 67, 68, 69, 70, 71, 72, 73, 74, 75, 76, 77
    sSoQ, sSoH, sKs, sG, sCC, sXm = 78, 79, 80, 81, 82, 83
    MK = [84, 86, 88, 90]
    sLW, sI0, sRs, sW2s, sW2m = 92, 93, 94, 95, 100
    vLane, vL16 = 1, 2
    T = list(range(4, 16))
    a("s_cmp_ge_u32 s2, 256")
    a(f"s_cbranch_scc1 {P}END")
    ts_begin(a)
    a("s_load_dwordx16 s[16:31], s[0:1], 0")
    a("s_load_dwordx2 s[32:33], s[0:1], 64")
    a("s_load_dwordx2 s[34:35], s[0:1], 88")
    map_t8(a, 2, sTB, sCG, sT0, mapmode)
    a(f"v_lshrrev_b32 v{T[0]}, 6, v0")
    a(f"v_and_b32 v{vLane}, 63, v0")
    a(f"v_readfirstlane_b32 s{sW}, v{T[0]}")
    a(f"v_lshlrev_b32 v{vL16}, 4, v{vLane}")
    a(f"s_and_b32 s{sTYPE}, s{sCG}, 1")
    a(f"s_lshr_b32 s{sTT}, s{sCG}, 1")
    if ROT: a(f"s_and_b32 s{sG}, s{sTB}, 3")
    else: a(f"s_mov_b32 s{sG}, 0")
    vX0 = 16
    a(f"v_lshrrev_b32 v{T[3]}, 4, v{vLane}")
    a(f"v_and_b32 v{T[2]}, 15, v{vLane}")
    a(f"v_xor_b32 v{T[2]}, v{T[2]}, v{T[3]}")
    a(f"v_lshlrev_b32 v{T[2]}, 4, v{T[2]}")
    a(f"v_lshl_add_u32 v{vX0}, v{T[3]}, 10, v{T[2]}")
    a(f"s_and_b32 s{sLW}, s{sW}, 3")
    a(f"s_lshl_b32 s{sT0}, s{sTB}, 16")
    a(f"s_lshl_b32 s{sT1}, s{sLW}, 14")
    a(f"s_add_u32 s{sSo}, s{sT0}, s{sT1}")
    a(f"s_lshl_b32 s{sXm}, s{sLW}, 12")
    if XIMG: a(f"s_add_u32 s{sXm}, s{sXm}, {XIMG}")
    a(f"s_lshl_b32 s{sKs}, s{sG}, 8")
    a(f"s_lshl_b32 s{sK}, s{sG}, 14")
    a(f"s_mov_b32 s{sC}, 0")
    def xquarter(qi):
        a(f"s_add_u32 s{sT0}, s{sG}, {qi}")
        a(f"s_and_b32 s{sT0}, s{sT0}, 3")
        a(f"s_lshl_b32 s{sT1}, s{sT0}, 14")
        a(f"s_add_u32 m0, s{sT1}, s{sXm}")
        a(f"s_lshl_b32 s{sT0}, s{sT0}, 8")
        a(f"s_add_u32 s{sT0}, s{sT0}, s{sSo}")
        for i in range(4):
            if i:
                a(f"s_add_u32 m0, m0, 1024")
                a(f"s_add_u32 s{sT0}, s{sT0}, 4096")
                a(f"v_xor_b32 v{vX0+i}, {64*i}, v{vX0}")
            a(f"buffer_load_dwordx4 v{vX0+i}, s[{sX}:{sX+3}], s{sT0} offen lds")
    def nextk(step, mask):
        a(f"s_add_u32 s{sKs}, s{sKs}, {step}")
        a(f"s_and_b32 s{sKs}, s{sKs}, 0x3ff")
        a(f"s_lshr_b32 s{sK}, s{sKs}, 8")
        a(f"s_lshl_b32 s{sK}, s{sK}, 14")
        a(f"s_and_b32 s{sT3}, s{sKs}, {mask}")
        a(f"s_or_b32 s{sK}, s{sK}, s{sT3}")
    def next_slot(s_):
        a(f"s_add_u32 s{s_}, s{s_}, {SLOT}")
        a(f"s_cmp_eq_u32 s{s_}, {RING + 4*SLOT}")
        a(f"s_cselect_b32 s{s_}, {RING}, s{s_}")
    a(f"s_cmp_ge_u32 s{sW}, 4")
    a(f"s_cbranch_scc1 {P}LOADER")

    vA0, vA1, vAc0, vAc1, vB, vBt = 20, 21, 22, 23, 24, 25
    AF = [[32, 36], [40, 44]]
    BF = [[48, 52], [56, 60]]
    ACC = 64
    def acc(ct, ts): return ACC + (ct * 2 + ts) * 16
    a(f"v_lshrrev_b32 v{T[3]}, 1, v{vLane}")
    a(f"v_and_b32 v{T[4]}, 0x13, v{T[3]}")
    a(f"v_bfe_u32 v{T[5]}, v{T[3]}, 2, 1")
    a(f"v_bfe_u32 v{T[6]}, v{T[3]}, 3, 1")
    a(f"v_lshl_add_u32 v{T[4]}, v{T[5]}, 3, v{T[4]}")
    a(f"v_lshl_add_u32 v{T[4]}, v{T[6]}, 2, v{T[4]}")
    a(f"v_lshlrev_b32 v{T[4]}, 5, v{T[4]}")
    a(f"v_and_b32 v{T[5]}, 1, v{vLane}")
    a(f"v_lshl_add_u32 v{T[4]}, v{T[5]}, 4, v{T[4]}")
    a("s_waitcnt lgkmcnt(0)")
    if not K1PM: ts_mark(a, MK[0])
    srd(a, sX, 16, 0x200000)
    xquarter(0)
    a(f"s_cmp_eq_u32 s{sTYPE}, 0")
    a(f"s_cselect_b32 s{sKV}, s20, s22")
    a(f"s_cselect_b32 s{sKV+1}, s21, s23")
    a(f"s_mov_b32 s{sKV+2}, 16384")
    a(f"s_mov_b32 s{sKV+3}, 0x00020000")
    a(f"s_lshl_b32 s{sT0}, s{sW}, 12")
    a(f"s_add_u32 m0, s{sT0}, {KVW}")
    for i in range(4):
        a(f"buffer_load_dwordx4 v{T[4]}, s[{sKV}:{sKV+3}], s{sT0} offen offset:{i*1024} lds")
    srd(a, sWS, 34, WS_SIZE)
    a(f"v_lshrrev_b32 v{T[0]}, 5, v{vLane}")
    a(f"v_and_b32 v{T[1]}, 31, v{vLane}")
    a(f"v_and_b32 v{T[2]}, 15, v{T[1]}")
    a(f"v_xor_b32 v{T[2]}, v{T[2]}, v{T[0]}")
    a(f"v_lshlrev_b32 v{T[2]}, 4, v{T[2]}")
    a(f"v_lshl_add_u32 v{vB}, v{T[1]}, 8, v{T[2]}")
    if XIMG: a(f"v_add_u32 v{vB}, {XIMG}, v{vB}")
    a(f"v_bfe_u32 v{T[2]}, v{vLane}, 2, 2")
    a(f"v_lshl_add_u32 v{T[3]}, v{T[0]}, 3, v{T[2]}")
    a(f"v_bfe_u32 v{T[4]}, v{vLane}, 4, 1")
    a(f"v_lshlrev_b32 v{T[4]}, 5, v{T[4]}")
    a(f"v_and_b32 v{T[5]}, 3, v{vLane}")
    a(f"v_lshl_add_u32 v{T[4]}, v{T[5]}, 3, v{T[4]}")
    a(f"s_mov_b32 s{sSlot}, {RING}")
    a(f"s_cmp_eq_u32 s{sW}, 0")
    a(f"s_cbranch_scc0 {P}HROLE")

    def big(role):
        L = f"{P}{role}"
        pitch = 128 if role == 'Q' else 448
        if role == 'Q':
            srd(a, sGT, 32, 1024)
            a(f"s_mov_b32 m0, {GATE}")
            a(f"buffer_load_dwordx4 v{vL16}, s[{sGT}:{sGT+3}], 0 offen lds")
            a(f"v_lshl_add_u32 v{vA0}, v{T[3]}, 7, v{T[4]}")
            a(f"v_bfe_u32 v{T[5]}, v{vLane}, 3, 1")
            a(f"v_lshl_add_u32 v{vA0}, v{T[5]}, 6, v{vA0}")
            a(f"v_xor_b32 v{vA1}, 64, v{vA0}")
        else:
            a(f"v_mul_u32_u24 v{vA0}, 448, v{T[3]}")
            a(f"v_add_u32 v{vA0}, v{vA0}, v{T[4]}")
            a(f"s_lshl_b32 s{sT0}, s{sW}, 7")
            a(f"s_add_u32 s{sT0}, s{sT0}, {HOFF - 128}")
            a(f"v_add_u32 v{vA0}, s{sT0}, v{vA0}")
        for r in range(64): a(f"v_mov_b32 v{ACC+r}, 0")
        def reads(ksl, buf):
            rd = []
            for ct in range(2):
                for t in range(2):
                    if role == 'Q':
                        rd.append(f"ds_read_b64_tr_b16 {r2(AF[buf][ct]+2*t)}, v{vAc0 if ct == 0 else vAc1} offset:{ksl*16*pitch + t*4*pitch}")
                    else:
                        rd.append(f"ds_read_b64_tr_b16 {r2(AF[buf][ct]+2*t)}, v{vAc0} offset:{ksl*16*pitch + t*4*pitch + ct*64}")
            for ts in range(2):
                rd.append(f"ds_read_b128 {r4(BF[buf][ts])}, v{vBt} offset:{ts*8192}")
            return [rd[0], rd[1], rd[4], rd[5], rd[2], rd[3]]
        def setaddr():
            a(f"v_add_u32 v{vAc0}, s{sSlot}, v{vA0}")
            if role == 'Q': a(f"v_add_u32 v{vAc1}, s{sSlot}, v{vA1}")
        def setb():
            a(f"v_xor_b32 v{vBt}, s{sK}, v{vB}")
        def mf(buf, i):
            ct, ts = [(0, 0), (0, 1), (1, 1), (1, 0)][i]
            return f"v_mfma_f32_32x32x16_bf16 {r16(acc(ct,ts))}, {r4(AF[buf][ct])}, {r4(BF[buf][ts])}, {r16(acc(ct,ts))}"
        setaddr(); setb()
        if K1PM: ts_mark(a, MK[1])
        a(f"s_waitcnt vmcnt({5 if role == 'Q' else 4})")
        if K1PM: ts_mark(a, MK[2])
        a("s_barrier")
        ts_mark(a, MK[3] if K1PM else MK[1])
        for l in reads(0, 0): a(l)
        a.label(L + "_LOOP")
        nextk(32, 0xe0); setb()
        rd = reads(1, 1)
        a("s_waitcnt lgkmcnt(3)")
        a(mf(0, 0)); a(rd[0]); a(rd[1]); a(rd[2])
        a("s_waitcnt lgkmcnt(5)")
        a(mf(0, 1)); a(rd[3])
        a("s_waitcnt lgkmcnt(4)")
        a(mf(0, 2)); a(rd[4]); a(rd[5])
        a(mf(0, 3))
        nextk(32, 0xe0); next_slot(sSlot)
        a("s_waitcnt lgkmcnt(3)")
        a(mf(1, 0))
        a(f"s_cmp_eq_u32 s{sC}, 15")
        a(f"s_cbranch_scc1 {L}_LAST")
        a(f"s_cmp_lg_u32 s{sC}, 1")
        a(f"s_cbranch_scc1 {L}_W1")
        a(f"s_waitcnt vmcnt(0)")
        a.label(L + "_W1")
        a("s_waitcnt lgkmcnt(0)")
        setaddr(); setb()
        a("s_barrier")
        rd = reads(0, 0)
        a(rd[0]); a(rd[1]); a(rd[2])
        a(mf(1, 1)); a(rd[3]); a(rd[4]); a(rd[5])
        a(mf(1, 2)); a(mf(1, 3))
        a(f"s_add_u32 s{sC}, s{sC}, 1")
        a(f"s_branch {L}_LOOP")
        a.label(L + "_LAST")
        a("s_waitcnt lgkmcnt(0)")
        a(mf(1, 1)); a(mf(1, 2)); a(mf(1, 3))
        if not K1PM: ts_mark(a, MK[2])
        if role == 'Q':
            a(f"s_lshl_b32 s{sT0}, s{sTB}, 6")
            a(f"s_lshl_b32 s{sT1}, s{sCG}, 2")
            a(f"s_add_u32 s{sT0}, s{sT0}, s{sT1}")
            a(f"s_lshl_b32 s{sT0}, s{sT0}, 10")
            if WS_QF: a(f"s_add_u32 s{sT0}, s{sT0}, {WS_QF}")
            a(f"s_add_u32 s{sT1}, s{sT0}, {32*1024}")
        else:
            a(f"s_mul_i32 s{sT0}, s{sTB}, 224")
            a(f"s_mul_i32 s{sT1}, s{sCG}, 14")
            a(f"s_add_u32 s{sT0}, s{sT0}, s{sT1}")
            a(f"s_lshl_b32 s{sT1}, s{sW}, 2")
            a(f"s_add_u32 s{sT0}, s{sT0}, s{sT1}")
            a(f"s_lshl_b32 s{sT0}, s{sT0}, 10")
            a(f"s_add_u32 s{sT0}, s{sT0}, {WS_HF - 4096}")
            a(f"s_add_u32 s{sT1}, s{sT0}, {112*1024}")
        d = 32
        for ts in range(2):
            for ct in range(2):
                for f in range(2):
                    store_frag(a, role, acc(ct, ts) + 8 * f, d, sT0 if ts == 0 else sT1, (ct * 2 + f) * 1024)
                    d = 32 + ((d - 32 + 4) % 32)
        a(f"s_branch {P}FIN")

    def store_frag(a, role, r, d, so, off):
        for k in range(4):
            if role == 'Q':
                a(f"v_mul_f32 v{r+2*k}, {f32hex(QS2)}, v{r+2*k}")
                a(f"v_mul_f32 v{r+2*k+1}, {f32hex(QS2)}, v{r+2*k+1}")
            a(f"v_cvt_pk_bf16_f32 v{d+k}, v{r+2*k}, v{r+2*k+1}")
            if role != 'Q': a(f"v_pk_max_i16 v{d+k}, v{d+k}, 0")
        a(f"buffer_store_dwordx4 {r4(d)}, v{vL16}, s[{sWS}:{sWS+3}], s{so} offen offset:{off}{ST}")

    big('Q')
    a.label(f"{P}HROLE")
    big('H')

    a.label(f"{P}LOADER")
    vQs = 20; vHs = [21, 22, 23, 24]; vW2 = 25; vXt = 26
    a(f"v_lshrrev_b32 v{T[0]}, 3, v{vLane}")
    a(f"v_bfe_u32 v{T[1]}, v{T[0]}, 1, 1")
    a(f"v_lshlrev_b32 v{T[1]}, 2, v{T[1]}")
    a(f"v_and_b32 v{T[2]}, 7, v{vLane}")
    a(f"v_xor_b32 v{T[2]}, v{T[2]}, v{T[1]}")
    a(f"v_lshlrev_b32 v{T[2]}, 4, v{T[2]}")
    a(f"v_lshl_add_u32 v{vQs}, v{T[0]}, 10, v{T[2]}")
    a(f"s_lshl_b32 s{sT0}, s{sLW}, 13")
    a(f"s_lshl_b32 s{sT1}, s{sCG}, 7")
    a(f"s_add_u32 s{sSoQ}, s{sT0}, s{sT1}")
    a(f"s_mul_i32 s{sI0}, s{sLW}, 3")
    a(f"s_lshr_b32 s{sT0}, s{sLW}, 1")
    a(f"s_and_b32 s{sT0}, s{sT0}, s{sLW}")
    a(f"s_add_u32 s{sI0}, s{sI0}, s{sT0}")
    a(f"s_lshl_b32 s{sT0}, s{sI0}, 6")
    for e in range(4):
        a(f"v_add_u32 v{T[0]}, s{sT0}, v{vLane}")
        if e: a(f"v_add_u32 v{T[0]}, {64*e}, v{T[0]}")
        a(f"v_mul_u32_u24 v{T[1]}, 2341, v{T[0]}")
        a(f"v_lshrrev_b32 v{T[1]}, 16, v{T[1]}")
        a(f"v_mul_u32_u24 v{T[2]}, 28, v{T[1]}")
        a(f"v_sub_u32 v{T[2]}, v{T[0]}, v{T[2]}")
        a(f"v_mul_u32_u24 v{T[1]}, 3584, v{T[1]}")
        a(f"v_lshl_add_u32 v{vHs[e]}, v{T[2]}, 4, v{T[1]}")
    a(f"s_mul_i32 s{sSoH}, s{sCG}, 448")
    a(f"s_lshl_b32 s{sI0}, s{sI0}, 10")
    a(f"s_add_u32 s{sI0}, s{sI0}, {HOFF}")
    a(f"s_mov_b32 s{sSlot}, {RING}")
    a(f"s_lshl_b32 s{sCC}, s{sG}, 2")
    a(f"v_lshrrev_b32 v{T[5]}, 2, v{vLane}")
    a(f"v_lshlrev_b32 v{T[5]}, 10, v{T[5]}")
    a(f"v_and_b32 v{T[6]}, 3, v{vLane}")
    a(f"v_lshl_add_u32 v{vW2}, v{T[6]}, 4, v{T[5]}")
    a(f"s_lshl_b32 s{sW2s}, s{sTB}, 3")
    a(f"s_add_u32 s{sW2s}, s{sW2s}, s{sCG}")
    a(f"s_and_b32 s{sT1}, s{sW2s}, 15")
    a(f"s_lshl_b32 s{sT1}, s{sT1}, 6")
    a(f"s_lshr_b32 s{sW2s}, s{sW2s}, 4")
    a(f"s_mul_i32 s{sW2s}, s{sW2s}, {112*1024}")
    a(f"s_add_u32 s{sW2s}, s{sW2s}, s{sT1}")
    a("s_waitcnt lgkmcnt(0)")
    if not K1PM: ts_mark(a, MK[0])
    srd(a, sWQ, 18, 0x80000)
    srd(a, sW1, 28, 512 * 3584)
    srd(a, sX, 16, 0x200000)
    def chunk_dma(n):
        a(f"s_lshl_b32 s{sT0}, s{sLW}, 10")
        a(f"s_add_u32 m0, s{sSlot}, s{sT0}")
        a(f"s_lshl_b32 s{sT0}, s{sCC}, 15")
        a(f"s_add_u32 s{sT0}, s{sT0}, s{sSoQ}")
        a(f"buffer_load_dwordx4 v{vQs}, s[{sWQ}:{sWQ+3}], s{sT0} offen lds")
        a(f"s_add_u32 m0, s{sSlot}, s{sI0}")
        a(f"s_mul_i32 s{sT0}, s{sCC}, {32*3584}")
        a(f"s_add_u32 s{sT0}, s{sT0}, s{sSoH}")
        for e in range(n - 1):
            a(f"buffer_load_dwordx4 v{vHs[e]}, s[{sW1}:{sW1+3}], s{sT0} offen lds")
            if e < n - 2: a("s_add_u32 m0, m0, 1024")
        a(f"s_add_u32 s{sCC}, s{sCC}, 1")
        a(f"s_and_b32 s{sCC}, s{sCC}, 15")
        next_slot(sSlot)
    def bg_dma(L):
        a(f"s_cmp_ge_u32 s{sC}, 8")
        a(f"s_cbranch_scc1 {L}_BGW")
        a(f"s_lshr_b32 s{sT0}, s{sC}, 2")
        a(f"s_add_u32 s{sT0}, s{sT0}, s{sG}")
        a(f"s_add_u32 s{sT0}, s{sT0}, 2")
        a(f"s_and_b32 s{sT0}, s{sT0}, 3")
        a(f"s_and_b32 s{sT1}, s{sC}, 3")
        a(f"s_lshl_b32 s{sT2}, s{sT1}, 6")
        a(f"v_xor_b32 v{vXt}, s{sT2}, v{vX0}")
        a(f"s_lshl_b32 s{sT2}, s{sT0}, 14")
        a(f"s_add_u32 s{sT2}, s{sT2}, s{sXm}")
        a(f"s_lshl_b32 s{sT3}, s{sT1}, 10")
        a(f"s_add_u32 m0, s{sT2}, s{sT3}")
        a(f"s_lshl_b32 s{sT0}, s{sT0}, 8")
        a(f"s_lshl_b32 s{sT1}, s{sT1}, 12")
        a(f"s_add_u32 s{sT0}, s{sT0}, s{sT1}")
        a(f"s_add_u32 s{sT0}, s{sT0}, s{sSo}")
        a(f"buffer_load_dwordx4 v{vXt}, s[{sX}:{sX+3}], s{sT0} offen lds")
        a(f"s_branch {L}_BGE")
        a.label(L + "_BGW")
        a(f"s_cmp_ge_u32 s{sC}, 10")
        a(f"s_cbranch_scc1 {L}_BGE")
        a(f"s_lshl_b32 s{sT0}, s{sLW}, 1")
        a(f"s_add_u32 s{sT0}, s{sT0}, s{sC}")
        a(f"s_sub_u32 s{sT0}, s{sT0}, 8")
        a(f"s_min_u32 s{sT0}, s{sT0}, 6")
        a(f"s_lshl_b32 s{sT1}, s{sT0}, 10")
        a(f"s_add_u32 m0, s{sT1}, {W2P}")
        a(f"s_lshl_b32 s{sT0}, s{sT0}, 14")
        a(f"s_add_u32 s{sT0}, s{sT0}, s{sW2s}")
        a(f"buffer_load_dwordx4 v{vW2}, s[{sW2}:{sW2+3}], s{sT0} offen lds")
        a.label(L + "_BGE")

    def loader(role):
        L = f"{P}{role}"
        n = 4 if role == 'C' else 5
        chunk_dma(n); chunk_dma(n); chunk_dma(n)
        xquarter(1)
        chunk_dma(n)
        srd(a, sWS, 34, WS_SIZE)
        srd(a, sW2, 30, 1792 * 1024)
        a(f"s_mov_b32 s{sRs}, {RING}")
        pre, work1, work2, post = {'C': c8_role, 'M': mini_role, 'W': w2_role}[role]()
        pre()
        if K1PM: ts_mark(a, MK[1])
        a(f"s_waitcnt vmcnt({3*n+4})")
        if K1PM: ts_mark(a, MK[2])
        a("s_barrier")
        ts_mark(a, MK[3] if K1PM else MK[1])
        work1()
        a.label(L + "_LOOP")
        work2()
        a(f"s_cmp_eq_u32 s{sC}, 15")
        a(f"s_cbranch_scc1 {L}_DONE")
        a(f"s_cmp_ge_u32 s{sC}, 11")
        a(f"s_cbranch_scc1 {L}_WA")
        a(f"s_waitcnt vmcnt({2*n+2})")
        a(f"s_branch {L}_WB")
        a.label(L + "_WA")
        a(f"s_cmp_ge_u32 s{sC}, 13")
        a(f"s_cbranch_scc1 {L}_WA2")
        a(f"s_waitcnt vmcnt({2*n})")
        a(f"s_branch {L}_WB")
        a.label(L + "_WA2")
        a("s_waitcnt vmcnt(0)")
        a.label(L + "_WB")
        a("s_barrier")
        a(f"s_add_u32 s{sC}, s{sC}, 1")
        next_slot(sRs)
        work1()
        a(f"s_cmp_ge_u32 s{sC}, 13")
        a(f"s_cbranch_scc1 {L}_LOOP")
        chunk_dma(n)
        a(f"s_sub_u32 s{sC}, s{sC}, 1")
        bg_dma(L)
        a(f"s_add_u32 s{sC}, s{sC}, 1")
        a(f"s_branch {L}_LOOP")
        a.label(L + "_DONE")
        if not K1PM: ts_mark(a, MK[2])
        post()
        a(f"s_branch {P}FIN")

    def c8_role():
        vA0, vAc, vB, vBt = 28, 29, 30, 31
        AF = [32, 36]; BF = [40, 44]; ACC = 64
        def pre():
            a(f"v_lshrrev_b32 v{T[0]}, 5, v{vLane}")
            a(f"v_and_b32 v{T[1]}, 31, v{vLane}")
            a(f"v_and_b32 v{T[2]}, 15, v{T[1]}")
            a(f"v_xor_b32 v{T[2]}, v{T[2]}, v{T[0]}")
            a(f"v_lshlrev_b32 v{T[2]}, 4, v{T[2]}")
            a(f"v_lshl_add_u32 v{vB}, v{T[1]}, 8, v{T[2]}")
            a(f"s_lshl_b32 s{sT0}, s{sLW}, 13")
            a(f"s_add_u32 s{sT0}, s{sT0}, {XIMG}")
            a(f"v_add_u32 v{vB}, s{sT0}, v{vB}")
            a(f"v_bfe_u32 v{T[2]}, v{vLane}, 2, 2")
            a(f"v_lshl_add_u32 v{T[3]}, v{T[0]}, 3, v{T[2]}")
            a(f"v_bfe_u32 v{T[4]}, v{vLane}, 4, 1")
            a(f"v_lshlrev_b32 v{T[4]}, 5, v{T[4]}")
            a(f"v_and_b32 v{T[5]}, 3, v{vLane}")
            a(f"v_lshl_add_u32 v{T[4]}, v{T[5]}, 3, v{T[4]}")
            a(f"v_mul_u32_u24 v{vA0}, 448, v{T[3]}")
            a(f"v_add_u32 v{vA0}, v{vA0}, v{T[4]}")
            a(f"v_add_u32 v{vA0}, {HOFF + 6*64}, v{vA0}")
            for r in range(16): a(f"v_mov_b32 v{ACC+r}, 0")
        def work1():
            a(f"v_add_u32 v{vAc}, s{sRs}, v{vA0}")
            for ksl in range(2):
                a(f"v_xor_b32 v{vBt}, s{sK}, v{vB}")
                for t in range(2):
                    a(f"ds_read_b64_tr_b16 {r2(AF[ksl]+2*t)}, v{vAc} offset:{ksl*16*448 + t*4*448}")
                a(f"ds_read_b128 {r4(BF[ksl])}, v{vBt}")
                nextk(32, 0xe0)
        def work2():
            a("s_waitcnt lgkmcnt(3)")
            a(f"v_mfma_f32_32x32x16_bf16 {r16(ACC)}, {r4(AF[0])}, {r4(BF[0])}, {r16(ACC)}")
            a("s_waitcnt lgkmcnt(0)")
            a(f"v_mfma_f32_32x32x16_bf16 {r16(ACC)}, {r4(AF[1])}, {r4(BF[1])}, {r16(ACC)}")
        def post():
            a(f"s_lshl_b32 s{sT0}, s{sTB}, 1")
            a(f"s_add_u32 s{sT0}, s{sT0}, s{sLW}")
            a(f"s_mul_i32 s{sT0}, s{sT0}, 112")
            a(f"s_mul_i32 s{sT1}, s{sCG}, 14")
            a(f"s_add_u32 s{sT0}, s{sT0}, s{sT1}")
            a(f"s_lshl_b32 s{sT0}, s{sT0}, 10")
            a(f"s_add_u32 s{sT0}, s{sT0}, {WS_HF + 12*1024}")
            for f in range(2): store_frag(a, 'H', ACC + 8 * f, 32 + 4 * f, sT0, f * 1024)
        return pre, work1, work2, post

    def mini_role():
        vXm, vXa, vWm, vGm, vWt, vGt = 28, 29, 30, 31, 64, 65
        XF = [32, 36]; WF = [40, 44]; GF = [48, 52]; D = 56; DG = 60
        L = f"{P}M"
        cnt = [0]
        def pre():
            a(f"v_and_b32 v{T[0]}, 15, v{vLane}")
            a(f"v_lshrrev_b32 v{T[1]}, 4, v{vLane}")
            a(f"v_xor_b32 v{T[2]}, v{T[0]}, v{T[1]}")
            a(f"v_lshlrev_b32 v{T[2]}, 4, v{T[2]}")
            a(f"v_lshl_add_u32 v{vXm}, v{T[0]}, 8, v{T[2]}")
            a(f"s_lshl_b32 s{sT0}, s{sTT}, 12")
            a(f"s_add_u32 s{sT0}, s{sT0}, {XIMG}")
            a(f"v_add_u32 v{vXm}, s{sT0}, v{vXm}")
            a(f"v_lshrrev_b32 v{T[2]}, 1, v{T[1]}")
            a(f"v_lshlrev_b32 v{T[2]}, 4, v{T[2]}")
            a(f"v_and_b32 v{T[3]}, 1, v{T[1]}")
            a(f"v_lshl_add_u32 v{T[2]}, v{T[3]}, 2, v{T[2]}")
            a(f"v_lshrrev_b32 v{T[3]}, 2, v{T[0]}")
            a(f"v_add_u32 v{T[2]}, v{T[2]}, v{T[3]}")
            a(f"v_lshlrev_b32 v{T[2]}, 5, v{T[2]}")
            a(f"v_and_b32 v{T[3]}, 3, v{T[0]}")
            a(f"v_lshl_add_u32 v{T[2]}, v{T[3]}, 3, v{T[2]}")
            a(f"v_add_u32 v{vWm}, {KVW}, v{T[2]}")
            a(f"v_lshlrev_b32 v{vGm}, 4, v{T[1]}")
            a(f"v_add_u32 v{vGm}, {GATE}, v{vGm}")
            for r in range(8): a(f"v_mov_b32 v{D+r}, 0")
        def cond(lab):
            a(f"s_lshr_b32 s{sT0}, s{sC}, 1")
            a(f"s_lshl_b32 s{sT0}, 1, s{sT0}")
            a(f"s_and_b32 s{sT0}, s{sT0}, {(1<<1)|(1<<2)|(1<<4)|(1<<6)}")
            a(f"s_cbranch_scc0 {lab}")
        def work1():
            cnt[0] += 1
            lab = f"{L}_SK{cnt[0]}"
            cond(lab)
            a(f"s_lshl_b32 s{sT0}, s{sKs}, 4")
            a(f"v_add_u32 v{vWt}, s{sT0}, v{vWm}")
            a(f"v_add_u32 v{vGt}, s{sKs}, v{vGm}")
            for e in range(2):
                a(f"v_xor_b32 v{vXa}, s{sK}, v{vXm}")
                a(f"ds_read_b128 {r4(XF[e])}, v{vXa}")
                for t in range(2):
                    a(f"ds_read_b64_tr_b16 {r2(WF[e]+2*t)}, v{vWt} offset:{e*1024 + t*256}")
                a(f"ds_read_b128 {r4(GF[e])}, v{vGt} offset:{e*64}")
                nextk(64, 0xc0)
            a.label(lab)
        def work2():
            cond(L + "_SKIP")
            a("s_waitcnt lgkmcnt(0)")
            a(f"s_cmp_eq_u32 s{sTYPE}, 0")
            a(f"s_cbranch_scc0 {L}_V")
            for e in range(2):
                a(f"v_mfma_f32_16x16x32_bf16 {r4(D)}, {r4(WF[e])}, {r4(XF[e])}, {r4(D)}")
                a(f"v_mfma_f32_16x16x32_bf16 {r4(DG)}, {r4(GF[e])}, {r4(XF[e])}, {r4(DG)}")
            a(f"s_branch {L}_SKIP")
            a.label(L + "_V")
            for e in range(2):
                a(f"v_mfma_f32_16x16x32_bf16 {r4(D)}, {r4(XF[e])}, {r4(WF[e])}, {r4(D)}")
            a.label(L + "_SKIP")
        def post():
            E = 32
            a(f"v_and_b32 v{T[0]}, 15, v{vLane}")
            a(f"v_lshrrev_b32 v{T[1]}, 4, v{vLane}")
            a(f"v_cvt_pk_bf16_f32 v{E}, v{D}, v{D+1}")
            a(f"v_cvt_pk_bf16_f32 v{E+1}, v{D+2}, v{D+3}")
            a(f"v_and_b32 v{T[2]}, 1, v{T[1]}")
            a(f"v_lshrrev_b32 v{T[3]}, 1, v{T[1]}")
            a(f"v_lshlrev_b32 v{T[3]}, 3, v{T[3]}")
            a(f"v_lshl_add_u32 v{T[3]}, v{T[0]}, 4, v{T[3]}")
            a(f"s_lshl_b32 s{sT0}, s{sTB}, 1")
            a(f"s_lshr_b32 s{sT1}, s{sTT}, 1")
            a(f"s_add_u32 s{sT0}, s{sT0}, s{sT1}")
            a(f"s_lshl_b32 s{sT0}, s{sT0}, 10")
            a(f"s_and_b32 s{sT1}, s{sTT}, 1")
            a(f"s_lshl_b32 s{sT2}, s{sTB}, 2")
            a(f"s_add_u32 s{sT2}, s{sT2}, s{sTT}")
            a(f"s_lshl_b32 s{sT2}, s{sT2}, 2")
            for q in range(2):
                a(f"v_lshlrev_b32 v{E+4+2*q}, 16, v{E+q}")
                a(f"v_and_b32 v{E+5+2*q}, 0xffff0000, v{E+q}")
            a(f"s_cmp_eq_u32 s{sTYPE}, 0")
            a(f"s_cbranch_scc0 {L}_VST")
            a(f"v_lshl_add_u32 v{T[3]}, v{T[2]}, 9, v{T[3]}")
            a(f"s_lshl_b32 s{sT1}, s{sT1}, 8")
            a(f"s_add_u32 s{sT0}, s{sT0}, s{sT1}")
            a(f"s_add_u32 s{sT0}, s{sT0}, {WS_KF}")
            a(f"buffer_store_dwordx2 {r2(E)}, v{T[3]}, s[{sWS}:{sWS+3}], s{sT0} offen{ST}")
            a(f"v_mul_f32 v{E+8}, v{E+4}, v{E+4}")
            for k in range(1, 4): a(f"v_fmac_f32 v{E+8}, v{E+4+k}, v{E+4+k}")
            a(f"v_mov_b32 v{E+9}, v{E+8}")
            a(f"v_permlane32_swap_b32 v{E+8}, v{E+9}")
            a(f"v_add_f32 v{E+8}, v{E+8}, v{E+9}")
            a(f"v_mov_b32 v{E+9}, v{E+8}")
            a(f"v_permlane16_swap_b32 v{E+8}, v{E+9}")
            a(f"v_add_f32 v{E+8}, v{E+8}, v{E+9}")
            for sh in (1, 2, 4, 8):
                a(f"v_max_u32_dpp v{E+8}, v{E+8}, v{E+8} row_shr:{sh} row_mask:0xf bank_mask:0xf")
            a(f"v_readlane_b32 s{sT3}, v{E+8}, 15")
            a(f"v_mul_f32 v{DG}, {f32hex(-1.4426950408889634)}, v{DG}")
            a(f"v_exp_f32 v{DG}, v{DG}")
            a(f"v_add_f32 v{DG}, 1.0, v{DG}")
            a(f"v_rcp_f32 v{DG}, v{DG}")
            a(f"v_lshlrev_b32 v{T[4]}, 2, v{vLane}")
            a(f"s_lshl_b32 s{sT0}, s{sT2}, 4")
            a(f"s_add_u32 s{sT0}, s{sT0}, {WS_G}")
            a(f"s_add_u32 s{sT2}, s{sT2}, {WS_KMAX}")
            a("s_mov_b64 exec, 0xffff")
            a(f"buffer_store_dword v{DG}, v{T[4]}, s[{sWS}:{sWS+3}], s{sT0} offen{ST}")
            a(f"s_branch {L}_MX")
            a.label(L + "_VST")
            a(f"v_lshl_add_u32 v{T[3]}, v{T[2]}, 8, v{T[3]}")
            a(f"s_lshl_b32 s{sT1}, s{sT1}, 9")
            a(f"s_add_u32 s{sT0}, s{sT0}, s{sT1}")
            a(f"s_add_u32 s{sT1}, s{sT0}, {WS_VB}")
            a(f"s_add_u32 s{sT0}, s{sT0}, {WS_VF}")
            a(f"buffer_store_dwordx2 {r2(E)}, v{T[3]}, s[{sWS}:{sWS+3}], s{sT1} offen{ST}")
            for q in range(2):
                a(f"v_cvt_pkrtz_f16_f32 v{E+8+q}, v{E+4+2*q}, v{E+5+2*q}")
            a(f"buffer_store_dwordx2 {r2(E+8)}, v{T[3]}, s[{sWS}:{sWS+3}], s{sT0} offen{ST}")
            for q in range(4): a(f"v_and_b32 v{E+4+q}, 0x7fffffff, v{E+4+q}")
            a(f"v_max_u32 v{E+4}, v{E+4}, v{E+5}")
            a(f"v_max3_u32 v{E+4}, v{E+4}, v{E+6}, v{E+7}")
            a(f"v_mov_b32 v{E+5}, v{E+4}")
            a(f"v_permlane32_swap_b32 v{E+4}, v{E+5}")
            a(f"v_max_u32 v{E+4}, v{E+4}, v{E+5}")
            a(f"v_mov_b32 v{E+5}, v{E+4}")
            a(f"v_permlane16_swap_b32 v{E+4}, v{E+5}")
            a(f"v_max_u32 v{E+4}, v{E+4}, v{E+5}")
            for sh in (1, 2, 4, 8):
                a(f"v_max_u32_dpp v{E+4}, v{E+4}, v{E+4} row_shr:{sh} row_mask:0xf bank_mask:0xf")
            a(f"v_readlane_b32 s{sT3}, v{E+4}, 15")
            a(f"s_add_u32 s{sT2}, s{sT2}, {WS_VMAX}")
            a.label(L + "_MX")
            a("s_mov_b64 exec, 1")
            a(f"v_mov_b32 v{E+10}, s{sT3}")
            a(f"v_mov_b32 v{E+11}, 0")
            a(f"buffer_store_dword v{E+10}, v{E+11}, s[{sWS}:{sWS+3}], s{sT2} offen{ST}")
            a("s_mov_b64 exec, -1")
        return pre, work1, work2, post

    def w2_role():
        vR = 28; F = 32
        def pre():
            a(f"v_lshrrev_b32 v{T[0]}, 5, v{vLane}")
            a(f"v_bfe_u32 v{T[2]}, v{vLane}, 2, 2")
            a(f"v_lshl_add_u32 v{T[3]}, v{T[0]}, 2, v{T[2]}")
            a(f"v_lshlrev_b32 v{T[3]}, 6, v{T[3]}")
            a(f"v_bfe_u32 v{T[4]}, v{vLane}, 4, 1")
            a(f"v_lshl_add_u32 v{T[3]}, v{T[4]}, 5, v{T[3]}")
            a(f"v_and_b32 v{T[5]}, 3, v{vLane}")
            a(f"v_lshl_add_u32 v{T[3]}, v{T[5]}, 3, v{T[3]}")
            a(f"v_add_u32 v{vR}, {W2P}, v{T[3]}")
            a(f"s_lshl_b32 s{sT0}, s{sTB}, 3")
            a(f"s_add_u32 s{sT0}, s{sT0}, s{sCG}")
            a(f"s_and_b32 s{sT1}, s{sT0}, 15")
            a(f"s_mul_i32 s{sT1}, s{sT1}, 112")
            a(f"s_lshr_b32 s{sT0}, s{sT0}, 4")
            a(f"s_mul_i32 s{sT0}, s{sT0}, 7")
            a(f"s_add_u32 s{sT0}, s{sT0}, s{sT1}")
            a(f"s_lshl_b32 s{sT0}, s{sT0}, 10")
            a(f"s_add_u32 s{sM}, s{sT0}, {WS_W2F}")
            a(f"s_lshl_b32 s{sW2m}, s2, 13")
            a(f"s_add_u32 s{sW2m}, s{sW2m}, {WS_OF}")
            for r in range(4): a(f"v_mov_b32 v{F+8+r}, -1")
        def work(): pass
        def post():
            for i in range(8):
                a(f"buffer_store_dwordx4 {r4(F+8)}, v{vL16}, s[{sWS}:{sWS+3}], s{sW2m} offen offset:{(i%4)*1024}{ST}")
                if i == 3: a(f"s_add_u32 s{sW2m}, s{sW2m}, 4096")
            for i in range(7):
                for t in range(2):
                    a(f"ds_read_b64_tr_b16 {r2(F+12+4*i+2*t)}, v{vR} offset:{i*1024+t*512}")
            for i in range(7):
                a(f"s_waitcnt lgkmcnt({12-2*i})")
                a(f"buffer_store_dwordx4 {r4(F+12+4*i)}, v{vL16}, s[{sWS}:{sWS+3}], s{sM} offen{ST}")
                a(f"s_add_u32 s{sM}, s{sM}, 1024")
        return pre, work, work, post

    a(f"s_cmp_ge_u32 s{sW}, 6")
    a(f"s_cbranch_scc1 {P}L67")
    loader('C')
    a.label(f"{P}L67")
    a(f"s_cmp_eq_u32 s{sW}, 7")
    a(f"s_cbranch_scc1 {P}L7")
    loader('M')
    a.label(f"{P}L7")
    loader('W')
    a.label(f"{P}FIN")
    if not K1PM: ts_mark(a, MK[3])
    ts_end(a, 0, sWS, sW, MK)
    a("s_endpgm")
    a.label(f"{P}END")
    a("s_endpgm")
    return a

if __name__ == "__main__":
    for idx in range(896): assert (idx * 2341) >> 16 == idx // 28
    print("ok")
```

```python
import sys, os, re
sys.path.insert(0, os.path.dirname(os.path.abspath(__file__)))
from asmlib import Asm
import gen
from gen import *
from gen3 import VQ, r4, r2, r16
from gen5 import LQ
from k1r import map_t8

E = os.environ.get
XIMG, RING, SLOT, HOFF = 0, 65536, 18432, 4096
KVW = RING + 4 * SLOT
GATE = KVW + 16384
W2P = GATE + 1024
QX = KVW
L_K, L_V, L_ONES = 0, 65536, GATE
M_LDS = 163840
CS = 2048 + 64
F2 = 8 * CS
WS_HFL = 0x223000
POS = [int(x) for x in E("POS", "2,8,14,20").split(",")]
TBITS = 29.75 * 1024
LMIN_BITS = 0x43000000
MINI_C = [int(x) for x in E("MINIC", "1,2,2,2").split(",")]
XW = [int(x) for x in E("XW", "1,1").split(",")]
CW2 = int(E("CW2", "2"))
CFLAG = int(E("CFLAG", "6"))
CRD = int(E("CRD", "3"))
CPOLL = int(E("CPOLL", "11"))
CCHK = int(E("CCHK", "13"))
WS_GFL = 0x228000
F0 = int(E("F0", "16"))
USET = int(E("USET", "5"))
UPOLL = int(E("UPOLL", "8"))
UCHK = int(E("UCHK", "11"))
CSET = int(E("CSET", "8"))
NB = int(E("NB", "4"))
UA = int(E("UA", "0"))
SC = " sc1"
XS = int(E("XS", "2"))
MAXI = int(E("MAXI", "2"))
def ring_schedule():
    slots = [RING + i * SLOT for i in range(4)] + [KVW, XIMG]
    avail = [0, 0, 0, 0, max(max(MINI_C), CW2) + 1, 8][:4 + XS]
    last = [CCHK, 15, 15, 15, 14, CCHK][:4 + XS]
    hold = [0, 1, 2, 3] + [-1] * XS
    slot_of = {k: slots[k] for k in range(4)}
    iss = {c: [] for c in range(16)}
    nxt = 4
    for c in range(1, 16):
        while nxt < 16 and len(iss[c]) < MAXI:
            cand = [i for i in range(len(hold)) if hold[i] < c and c >= avail[i] and nxt <= last[i]]
            if not cand: break
            i = min(cand, key=lambda i: last[i])
            hold[i] = nxt; slot_of[nxt] = slots[i]; iss[c].append(nxt); nxt += 1
    assert nxt == 16
    for c in range(16):
        for k in iss[c]: assert k > c
    return slot_of, iss
SLOT_OF, ISS = ring_schedule()
BM = [int(x) for x in E("BM", "").split(",")] if E("BM") else None
MARKC = [int(x) for x in E("MARKC", "").split(",")] if E("MARKC") else None

def gen_m(name):
    a = Asm()
    a.label(name)
    P = "A_"
    sWS, sDBG = 8, 12
    W = f"s[{sWS}:{sWS+3}]"
    vLane, vL16 = 1, 5
    sX, sW1, sWQ, sKV, sW2, sGT = 36, 40, 44, 48, 56, 60
    sTB, sCG, sW, sT0, sT1, sSlot, sT2, sT3, sTYPE, sTT, sM = 64, 65, 66, 67, 68, 70, 73, 74, 75, 76, 77
    sSo, sSoQ, sSoH, sG, sCC, sXm = 72, 78, 79, 81, 82, 83
    MA = [84, 86, 88, 90]
    sLW, sI0, sW2s, sW2m = 92, 93, 94, 95
    T = list(range(8, 16))
    sOUT, sWO = 12, 60
    bW, bTB, bHG, bT0, bT1, sCnt, sXB, sHD = 16, 17, 18, 19, 20, 21, 22, 23
    sA = [24, 25]; sB = [26, 27]
    sW3, sNS, sTS, sKM, sOff, bT2, sPoll, sKQ, sOf, bT3, sWoS, sVM, sRED = 28, 29, 30, 31, 32, 33, 34, 35, 36, 37, 38, 39, 3
    sHFo, sHFi = 50, 51
    vRW, vV, vVi, vGF, vGT = 2, 3, 4, 6, 7
    Q = 16; vWo = 20; vRR = 21
    KF, V0, V1 = 24, 28, 32
    Y = 36; Y2 = 44; cA, cM = 48, 49
    CB = 52; S = [68, 84]; O = 100; X1 = 116; ACC = 132; FB = 196; SP = 228
    vKM = 244; vHP = 248; vHA = 249
    def acc(i): return ACC + 16 * i
    FBS = [FB, FB + 16, SP, X1]
    MK = [64, 66, 68, 70]

    a("s_cmp_ge_u32 s2, 256")
    a("s_cbranch_scc1 M_END")
    ts_begin(a)
    a("s_load_dwordx16 s[16:31], s[0:1], 0")
    a("s_load_dwordx4 s[32:35], s[0:1], 64")
    a("s_load_dwordx4 s[52:55], s[0:1], 80")
    map_t8(a, 2, sTB, sCG, sT0, E("MAP1", "T8"))
    a(f"v_lshrrev_b32 v{T[0]}, 6, v0")
    a(f"v_and_b32 v{vLane}, 63, v0")
    a(f"v_readfirstlane_b32 s{sW}, v{T[0]}")
    a(f"v_lshlrev_b32 v{vL16}, 4, v{vLane}")
    a(f"s_and_b32 s{sTYPE}, s{sCG}, 1")
    a(f"s_lshr_b32 s{sTT}, s{sCG}, 1")
    a(f"s_and_b32 s{sG}, s{sTB}, {int(E('ROT', '3'))}")
    vX0 = 16
    a(f"v_lshrrev_b32 v{T[3]}, 4, v{vLane}")
    a(f"v_and_b32 v{T[2]}, 15, v{vLane}")
    a(f"v_xor_b32 v{T[2]}, v{T[2]}, v{T[3]}")
    a(f"v_lshlrev_b32 v{T[2]}, 4, v{T[2]}")
    a(f"v_lshl_add_u32 v{vX0}, v{T[3]}, 10, v{T[2]}")
    for i in range(1, 4): a(f"v_xor_b32 v{vX0+i}, {64*i}, v{vX0}")
    a(f"s_and_b32 s{sLW}, s{sW}, 3")
    a(f"s_lshl_b32 s{sT0}, s{sTB}, 16")
    a(f"s_lshl_b32 s{sT1}, s{sLW}, 14")
    a(f"s_add_u32 s{sSo}, s{sT0}, s{sT1}")
    a(f"s_lshl_b32 s{sXm}, s{sLW}, 12")

    def xpos(vq, p):
        a(f"s_add_u32 s{sT0}, s{sG}, {p}")
        a(f"s_and_b32 s{sT0}, s{sT0}, 3")
        a(f"s_add_u32 m0, s{sXm}, {XIMG + p * 16384}")
        a(f"s_lshl_b32 s{sT0}, s{sT0}, 8")
        a(f"s_add_u32 s{sT0}, s{sT0}, s{sSo}")
        for i in range(4):
            if i:
                a(f"s_add_u32 m0, m0, 1024")
                a(f"s_add_u32 s{sT0}, s{sT0}, 4096")
            vq.issue(f"X{p}", f"buffer_load_dwordx4 v{vX0+i}, s[{sX}:{sX+3}], s{sT0} offen lds")

    def common_srds():
        srd(a, sWS, 54, WS_SIZE)
        srd(a, sDBG, 52, 256)
        a("s_mov_b64 s[4:5], s[24:25]")
        a("s_mov_b64 s[6:7], s[34:35]")

    dcount = [0]
    def kv_dma(vq, skip=False):
        j = dcount[0]; dcount[0] += 1
        r, kv = j >> 1, j & 1
        if not skip: vq.issue(f"D{r}{'KV'[kv]}", f"buffer_load_dwordx4 v{vL16}, {W}, s{sOff} offen{SC} lds")
        if j < 15:
            d = 65536 if kv == 0 else -57344
            if d > 0:
                a(f"s_add_u32 m0, m0, {d}"); a(f"s_add_u32 s{sOff}, s{sOff}, {d}")
            else:
                a(f"s_sub_u32 m0, m0, {-d}"); a(f"s_sub_u32 s{sOff}, s{sOff}, {-d}")
    fstep = {}
    def ffn_load(vq, which, st):
        buf = FBS[st % NB]
        reg = {0: buf, 3: buf + 4, 1: buf + 8, 2: buf + 12}[which]
        s_ = {0: sA[0], 3: sA[1], 1: sB[0], 2: sB[1]}[which]
        base = fstep.get(which, 0)
        if st - base >= 4:
            a(f"s_add_u32 s{s_}, s{s_}, {4096}")
            base += 4; fstep[which] = base
        if E("NOFL") and str(which) in E("NOFL"): return
        vq.issue(f"F{st}.{which}", f"buffer_load_dwordx4 {r4(reg)}, v{vL16}, {W}, s{s_} offen offset:{(st-base)*1024}{SC}")

    BI = int(E("BI", "0"))
    def b_issue(vq, big=False):
        dcount[0] = 0; fstep.clear()
        if BI >= 2 and not big:
            a(f"s_sub_u32 m0, s{sOff}, 4096")
            a(f"s_add_u32 s{sOff}, s{sOff}, {WS_KF - 4096}")
            for _ in range(4): kv_dma(vq)
            dcount[0] = 0
            a(f"s_sub_u32 s{sOff}, s{sOff}, {16384 - 4096}")
            a(f"s_sub_u32 m0, s{sOff}, {WS_KF}")
        else:
            a(f"s_mov_b32 m0, s{sOff}")
            a(f"s_add_u32 s{sOff}, s{sOff}, {WS_KF}")
        for _ in range(4): kv_dma(vq, BI >= 2 and big)
        a(f"s_mov_b32 s{sKM}, {WS_KMAX}")
        vq.issue("KM", f"buffer_load_dwordx4 {r4(vKM)}, v{vL16}, {W}, s{sKM} offen{SC}")
        if not BI:
            for st in (0, 1):
                for wh in (0, 3): ffn_load(vq, wh, st)

    def b_setup():
        bt = [8, 9, 10, 11, 12, 13, 14, 15]
        a(f"s_mov_b32 s{bW}, s{sW}")
        a(f"s_mov_b32 s{bTB}, s{sTB}")
        a(f"s_mov_b32 s{bHG}, s{sCG}")
        a(f"s_lshl_b32 s{sOff}, s{bW}, 10")
        a(f"s_lshr_b32 s{sXB}, s{bW}, 2")
        a(f"s_and_b32 s{sW3}, s{bW}, 3")
        a(f"s_and_b32 s{sTS}, s{bW}, 1")
        a(f"s_bfe_u32 s{sNS}, s{bW}, 0x10001")
        a(f"s_lshr_b32 s{sKQ}, s{bW}, 1")
        a(f"s_lshl_b32 s{sHD}, s{bHG}, 2")
        a(f"s_add_u32 s{sHD}, s{sHD}, s{sW3}")
        a(f"s_lshl_b32 s{bT2}, s{bTB}, 1")
        a(f"s_add_u32 s{bT2}, s{bT2}, s{sXB}")
        a(f"s_lshl_b32 s{bT2}, s{bT2}, 5")
        a(f"s_add_u32 s{bT2}, s{bT2}, s{sHD}")
        a(f"s_lshl_b32 s{bT2}, s{bT2}, 10")
        a(f"s_add_u32 s{bT3}, s{bT2}, {WS_OF}")
        a(f"s_mul_i32 s{bT0}, s{bW}, 14")
        a(f"s_lshl_b32 s{bT1}, s{bHG}, 1")
        a(f"s_add_u32 s{bT1}, s{bT1}, s{sNS}")
        a(f"s_mul_i32 s{sA[0]}, s{bT1}, 112")
        a(f"s_xor_b32 s{bT1}, s{bT1}, 1")
        a(f"s_mul_i32 s{sA[1]}, s{bT1}, 112")
        a(f"s_lshl_b32 s{bT1}, s{bTB}, 1")
        a(f"s_add_u32 s{bT1}, s{bT1}, s{sTS}")
        a(f"s_mul_i32 s{sB[0]}, s{bT1}, 112")
        a(f"s_xor_b32 s{bT1}, s{bT1}, 1")
        a(f"s_mul_i32 s{sB[1]}, s{bT1}, 112")
        for s_, base in ((sA[0], WS_W2F), (sA[1], WS_W2F), (sB[0], WS_HF), (sB[1], WS_HF)):
            a(f"s_add_u32 s{s_}, s{s_}, s{bT0}")
            a(f"s_lshl_b32 s{s_}, s{s_}, 10")
            a(f"s_add_u32 s{s_}, s{s_}, {base}")
        a(f"s_lshl_b32 s{bT0}, s{bTB}, 8")
        a(f"s_add_u32 s{bT0}, s{bT0}, {WS_HFL}")
        a(f"s_lshl_b32 s{bT1}, s{bHG}, 5")
        a(f"s_add_u32 s{sHFo}, s{bT0}, s{bT1}")
        a(f"s_lshl_b32 s{bT1}, s{bW}, 2")
        a(f"s_add_u32 s{sHFo}, s{sHFo}, s{bT1}")
        a(f"s_lshl_b32 s{bT1}, s{bW}, 5")
        a(f"s_add_u32 s{sHFi}, s{bT0}, s{bT1}")
        a(f"v_and_b32 v{vHA}, 7, v{vLane}")
        a(f"v_lshlrev_b32 v{vHA}, 2, v{vHA}")
        a(f"v_and_b32 v{bt[0]}, 31, v{vLane}")
        a(f"v_lshrrev_b32 v{bt[1]}, 5, v{vLane}")
        a(f"v_lshlrev_b32 v{bt[2]}, 8, v{bt[1]}")
        a(f"v_lshl_add_u32 v{bt[2]}, v{bt[0]}, 4, v{bt[2]}")
        a(f"v_add_u32 v{bt[2]}, {L_V}, v{bt[2]}")
        a(f"v_subrev_u32 v{bt[3]}, 20, v{bt[0]}")
        a(f"v_cmp_gt_u32 vcc, 8, v{bt[3]}")
        a(f"v_mov_b32 v{bt[3]}, {L_ONES}")
        a(f"v_mov_b32 v{bt[4]}, {L_ONES + 64}")
        a(f"v_cndmask_b32 v{bt[3]}, v{bt[3]}, v{bt[4]}, vcc")
        a(f"v_and_b32 v{bt[4]}, 11, v{bt[0]}")
        a(f"v_cmp_ne_u32 vcc, 0, v{bt[4]}")
        a(f"v_add_u32 v{bt[4]}, 16, v{bt[3]}")
        a(f"v_cndmask_b32 v{bt[3]}, v{bt[3]}, v{bt[4]}, vcc")
        a(f"v_cmp_gt_u32 vcc, 16, v{bt[0]}")
        a(f"v_cndmask_b32 v{vV}, v{bt[3]}, v{bt[2]}, vcc")
        a(f"v_mov_b32 v{bt[3]}, 8192")
        a(f"v_cndmask_b32 v{vVi}, 0, v{bt[3]}, vcc")
        a(f"v_lshlrev_b32 v{vGF}, 2, v{bt[0]}")
        for r in range(4, 64): a(f"v_mov_b32 v{ACC+r}, 0")
        for r in range(4): a(f"v_mov_b32 v{ACC+r}, 0")
        def red_slot(dst, wreg):
            a(f"s_lshl_b32 s{dst}, s{wreg}, 13")
            a(f"s_add_u32 s{dst}, s{dst}, 32768")
            a(f"s_cmp_ge_u32 s{wreg}, 3")
            a(f"s_cselect_b32 s{bT1}, 40960, 0")
            a(f"s_add_u32 s{dst}, s{dst}, s{bT1}")
            a(f"s_cmp_ge_u32 s{wreg}, 6")
            a(f"s_cselect_b32 s{bT1}, 16384, 0")
            a(f"s_add_u32 s{dst}, s{dst}, s{bT1}")
        red_slot(bT0, bW)
        a(f"v_add_u32 v{vRW}, s{bT0}, v{vL16}")
        a(f"s_xor_b32 s{sRED}, s{bW}, 1")
        red_slot(bT0, sRED)
        a(f"v_add_u32 v{vRR}, s{bT0}, v{vL16}")
        a(f"s_lshl_b32 s{bT1}, s{bTB}, 1")
        a(f"s_add_u32 s{bT1}, s{bT1}, s{sTS}")
        a(f"s_lshl_b32 s{bT1}, s{bT1}, 5")
        a(f"s_lshl_b32 s{bT0}, s{sKQ}, 3")
        a(f"s_add_u32 s{bT1}, s{bT1}, s{bT0}")
        a(f"s_lshl_b32 s{bT1}, s{bT1}, 10")
        a(f"s_add_u32 s{sOf}, s{bT1}, {WS_OF}")
        a(f"s_lshl_b32 s{bT0}, s{bW}, 16")
        a(f"s_lshl_b32 s{bT1}, s{bHG}, 7")
        a(f"s_add_u32 s{sWoS}, s{bT0}, s{bT1}")
        a(f"v_lshrrev_b32 v{bt[6]}, 3, v{vLane}")
        a(f"v_and_b32 v{vWo}, 7, v{vLane}")
        a(f"v_bfe_u32 v{bt[5]}, v{bt[6]}, 1, 1")
        a(f"v_lshlrev_b32 v{bt[5]}, 2, v{bt[5]}")
        a(f"v_xor_b32 v{vWo}, v{vWo}, v{bt[5]}")
        a(f"v_lshlrev_b32 v{vWo}, 4, v{vWo}")
        a(f"v_lshl_add_u32 v{vWo}, v{bt[6]}, 10, v{vWo}")

    def to_phase_b(vq):
        a(f"v_and_b32 v{O+4}, 11, v{vLane}")
        a(f"v_cmp_eq_u32 vcc, 0, v{O+4}")
        a(f"v_mov_b32 v{O+4}, 0x3c003c00")
        a(f"v_cndmask_b32 v{O}, 0, v{O+4}, vcc")
        for r in range(1, 4): a(f"v_mov_b32 v{O+r}, v{O}")
        a(f"s_lshl_b32 s{bT0}, s{bW}, 10")
        a(f"s_add_u32 s{bT0}, s{bT0}, {L_ONES}")
        a(f"v_add_u32 v{O+4}, s{bT0}, v{vL16}")
        a(f"ds_write_b128 v{O+4}, {r4(O)}")
        for r in range(16): a(f"v_mov_b32 v{O+r}, 0")
        vq.wait("KM")
        a(f"v_mov_b32 v{cA}, 0x02000200")
        a(f"v_mov_b32 v{cM}, 0x39a839a8")
        a("s_branch B_ENTRY")

    a(f"s_cmp_ge_u32 s{sW}, 4")
    a(f"s_cbranch_scc1 {P}LOADER")

    AF = [[32, 36], [40, 44]]
    BF = [[48, 52], [56, 60]]
    AACC = 64
    vAs = [228, 229, 230, 231]; vAt = [232, 233, 234, 235]; vBs = [236 + i for i in range(8)]
    def aacc(ct, ts): return AACC + (ct * 2 + ts) * 16
    a(f"v_lshrrev_b32 v{T[3]}, 1, v{vLane}")
    a(f"v_and_b32 v{T[4]}, 0x13, v{T[3]}")
    a(f"v_bfe_u32 v{T[5]}, v{T[3]}, 2, 1")
    a(f"v_bfe_u32 v{T[6]}, v{T[3]}, 3, 1")
    a(f"v_lshl_add_u32 v{T[4]}, v{T[5]}, 3, v{T[4]}")
    a(f"v_lshl_add_u32 v{T[4]}, v{T[6]}, 2, v{T[4]}")
    a(f"v_lshlrev_b32 v{T[4]}, 5, v{T[4]}")
    a(f"v_and_b32 v{T[5]}, 1, v{vLane}")
    a(f"v_lshl_add_u32 v{T[4]}, v{T[5]}, 4, v{T[4]}")
    if E("PM"): ts_mark(a, MA[0])
    a("s_waitcnt lgkmcnt(0)")
    if E("PM"): ts_mark(a, MA[1])
    srd(a, sX, 16, 0x200000)
    common_srds()
    vqb = VQ(a)
    a(f"s_lshl_b32 s{sT0}, s2, 3")
    a(f"s_add_u32 s{sI0}, s{sT0}, s{sW}")
    a(f"s_cmp_eq_u32 s{sI0}, 1")
    a(f"s_cbranch_scc0 {P}NORST")
    for r in range(4): a(f"v_mov_b32 v{32+r}, 0")
    a(f"s_mov_b32 s{sT0}, {WS_GFL}")
    for j in range(4):
        a(f"buffer_store_dwordx4 v[32:35], v{vL16}, {W}, s{sT0} offen offset:{j*1024}{SC}")
    a.label(f"{P}NORST")
    xpos(vqb, 0)
    a(f"s_cmp_eq_u32 s{sTYPE}, 0")
    a(f"s_cselect_b32 s{sKV}, s20, s22")
    a(f"s_cselect_b32 s{sKV+1}, s21, s23")
    a(f"s_mov_b32 s{sKV+2}, 16384")
    a(f"s_mov_b32 s{sKV+3}, 0x00020000")
    a(f"s_lshl_b32 s{sT0}, s{sW}, 12")
    a(f"s_add_u32 m0, s{sT0}, {KVW}")
    for i in range(4):
        vqb.issue("KVW", f"buffer_load_dwordx4 v{T[4]}, s[{sKV}:{sKV+3}], s{sT0} offen offset:{i*1024} lds")
    srd(a, sGT, 32, 1024)
    a(f"s_mov_b32 m0, {GATE}")
    vqb.issue("KVW", f"buffer_load_dwordx4 v{vL16}, s[{sGT}:{sGT+3}], 0 offen lds")
    xpos(vqb, 2)
    xpos(vqb, 3)
    a(f"s_cmp_eq_u32 s{sI0}, 1")
    a(f"s_cbranch_scc0 {P}NORST2")
    a(f"s_waitcnt vmcnt({len(vqb.q)})")
    a(f"v_mov_b32 v36, 1")
    a(f"buffer_store_dword v36, off, s[{sDBG}:{sDBG+3}], 0{SC}")
    a.label(f"{P}NORST2")
    a(f"v_lshrrev_b32 v{T[0]}, 5, v{vLane}")
    a(f"v_and_b32 v{T[1]}, 31, v{vLane}")
    a(f"v_and_b32 v{T[2]}, 15, v{T[1]}")
    a(f"v_xor_b32 v{T[2]}, v{T[2]}, v{T[0]}")
    a(f"v_lshlrev_b32 v{T[2]}, 4, v{T[2]}")
    a(f"v_lshl_add_u32 v{vBs[0]}, v{T[1]}, 8, v{T[2]}")
    for i in range(1, 8): a(f"v_xor_b32 v{vBs[i]}, {32*i}, v{vBs[0]}")
    a(f"v_bfe_u32 v{T[2]}, v{vLane}, 2, 2")
    a(f"v_lshl_add_u32 v{T[3]}, v{T[0]}, 3, v{T[2]}")
    a(f"v_bfe_u32 v{T[4]}, v{vLane}, 4, 1")
    a(f"v_lshlrev_b32 v{T[4]}, 5, v{T[4]}")
    a(f"v_and_b32 v{T[5]}, 3, v{vLane}")
    a(f"v_lshl_add_u32 v{T[4]}, v{T[5]}, 3, v{T[4]}")
    a(f"s_cmp_eq_u32 s{sW}, 0")
    a(f"s_cbranch_scc0 {P}HROLE")

    def store_frag(role, r, d, so, off, vq):
        for k in range(4):
            if role == 'Q':
                a(f"v_mul_f32 v{r+2*k}, {f32hex(QS2)}, v{r+2*k}")
                a(f"v_mul_f32 v{r+2*k+1}, {f32hex(QS2)}, v{r+2*k+1}")
            a(f"v_cvt_pk_bf16_f32 v{d+k}, v{r+2*k}, v{r+2*k+1}")
            if role != 'Q': a(f"v_pk_max_i16 v{d+k}, v{d+k}, 0")
        if role == 'Q': a(f"ds_write_b128 v{so}, {r4(d)} offset:{off}")
        else: vq.issue("HST", f"buffer_store_dwordx4 {r4(d)}, v{vL16}, {W}, s{so} offen offset:{off}{SC}")

    def big(role):
        import copy
        vq = VQ(a); vq.q = list(vqb.q); vq.done = vqb.done
        pitch = 128 if role == 'Q' else 448
        vA0, vA1 = vAs[2], vAt[2]
        if role == 'Q':
            a(f"v_lshl_add_u32 v{vA0}, v{T[3]}, 7, v{T[4]}")
            a(f"v_bfe_u32 v{T[5]}, v{vLane}, 3, 1")
            a(f"v_lshl_add_u32 v{vA0}, v{T[5]}, 6, v{vA0}")
            a(f"v_xor_b32 v{vA1}, 64, v{vA0}")
        else:
            a(f"v_mul_u32_u24 v{vA0}, 448, v{T[3]}")
            a(f"v_add_u32 v{vA0}, v{vA0}, v{T[4]}")
            a(f"s_lshl_b32 s{sT0}, s{sW}, 7")
            a(f"s_add_u32 s{sT0}, s{sT0}, {HOFF - 128}")
            a(f"v_add_u32 v{vA0}, s{sT0}, v{vA0}")
        def setaddr(c):
            a(f"v_add_u32 v{vAs[c&1]}, {SLOT_OF[c]}, v{vA0}")
            if role == 'Q': a(f"v_add_u32 v{vAt[c&1]}, {SLOT_OF[c]}, v{vA1}")
        setaddr(0)
        for r in range(64): a(f"v_mov_b32 v{AACC+r}, 0")
        def reads(c, ksl):
            buf = ksl
            rd = []
            sl = c & 1
            for ct in range(2):
                for t in range(2):
                    if role == 'Q':
                        rd.append(f"ds_read_b64_tr_b16 {r2(AF[buf][ct]+2*t)}, v{vAs[sl] if ct == 0 else vAt[sl]} offset:{ksl*16*pitch + t*4*pitch}")
                    else:
                        rd.append(f"ds_read_b64_tr_b16 {r2(AF[buf][ct]+2*t)}, v{vAs[sl]} offset:{ksl*16*pitch + t*4*pitch + ct*64}")
            for ts in range(2):
                rd.append(f"ds_read_b128 {r4(BF[buf][ts])}, v{vBs[2*(c&3)+ksl]} offset:{(c>>2)*16384 + ts*8192}")
            return [rd[0], rd[1], rd[4], rd[5], rd[2], rd[3]]
        def mf(buf, i):
            ct, ts = [(0, 0), (0, 1), (1, 1), (1, 0)][i]
            return f"v_mfma_f32_32x32x16_bf16 {r16(aacc(ct,ts))}, {r4(AF[buf][ct])}, {r4(BF[buf][ts])}, {r16(aacc(ct,ts))}"
        if E("PM"): ts_mark(a, MA[2])
        vq.wait("X0")
        if E("PM"): ts_mark(a, MA[3])
        a("s_barrier")
        if not MARKC: ts_mark(a, MA[0])
        for l in reads(0, 0): a(l)
        for c in range(16):
            rd = reads(c, 1)
            a("s_waitcnt lgkmcnt(3)")
            a(mf(0, 0)); a(rd[0]); a(rd[1]); a(rd[2])
            if c < 15: setaddr(c + 1)
            a("s_waitcnt lgkmcnt(5)")
            a(mf(0, 1)); a(rd[3])
            a("s_waitcnt lgkmcnt(4)")
            a(mf(0, 2)); a(rd[4]); a(rd[5])
            a(mf(0, 3))
            a("s_waitcnt lgkmcnt(3)")
            a(mf(1, 0))
            if c == 15: break
            if c == MINI_C[0] - 1: vq.wait("KVW")
            if c == XW[0]: vq.wait("X2")
            if c == XW[1]: vq.wait("X3")
            a("s_waitcnt lgkmcnt(0)")
            a("s_barrier")
            if MARKC:
                if c in MARKC: ts_mark(a, MA[MARKC.index(c)])
            elif c == CCHK: ts_mark(a, MA[1])
            rd = reads(c + 1, 0)
            a(rd[0]); a(rd[1]); a(rd[2])
            a(mf(1, 1)); a(rd[3]); a(rd[4]); a(rd[5])
            a(mf(1, 2)); a(mf(1, 3))
            if c == CCHK: b_issue(vq, True)
            if c == CSET - 1:
                b_setup()
        a("s_waitcnt lgkmcnt(0)")
        a(mf(1, 1)); a(mf(1, 2)); a(mf(1, 3))
        if not MARKC: ts_mark(a, MA[2])
        if role == 'Q':
            a(f"v_add_u32 v{T[0]}, {QX}, v{vL16}")
            d = 32
            for ts in range(2):
                for ct in range(2):
                    for f in range(2):
                        store_frag('Q', aacc(ct, ts) + 8 * f, d, T[0], (4 * ts + 2 * ct + f) * 1024, vq)
                        d = 32 + ((d - 32 + 4) % 32)
        else:
            a(f"s_mul_i32 s{sT0}, s{sTB}, 224")
            a(f"s_mul_i32 s{sT1}, s{sCG}, 14")
            a(f"s_add_u32 s{sT0}, s{sT0}, s{sT1}")
            a(f"s_lshl_b32 s{sT1}, s{sW}, 2")
            a(f"s_add_u32 s{sT0}, s{sT0}, s{sT1}")
            a(f"s_lshl_b32 s{sT0}, s{sT0}, 10")
            a(f"s_add_u32 s{sT0}, s{sT0}, {WS_HF - 4096}")
            a(f"s_add_u32 s{sT1}, s{sT0}, {112*1024}")
            d = 32
            for ts in range(2):
                for ct in range(2):
                    for f in range(2):
                        store_frag('H', aacc(ct, ts) + 8 * f, d, sT0 if ts == 0 else sT1, (ct * 2 + f) * 1024, vq)
                        d = 32 + ((d - 32 + 4) % 32)
        to_phase_b(vq)

    big('Q')
    a.label(f"{P}HROLE")
    big('H')

    a.label(f"{P}LOADER")
    vQs = 250; vHs = [251, 252, 253, 254]; vW2 = 255
    a(f"v_lshrrev_b32 v{T[0]}, 3, v{vLane}")
    a(f"v_bfe_u32 v{T[1]}, v{T[0]}, 1, 1")
    a(f"v_lshlrev_b32 v{T[1]}, 2, v{T[1]}")
    a(f"v_and_b32 v{T[2]}, 7, v{vLane}")
    a(f"v_xor_b32 v{T[2]}, v{T[2]}, v{T[1]}")
    a(f"v_lshlrev_b32 v{T[2]}, 4, v{T[2]}")
    a(f"v_lshl_add_u32 v{vQs}, v{T[0]}, 10, v{T[2]}")
    a(f"s_lshl_b32 s{sT0}, s{sLW}, 13")
    a(f"s_lshl_b32 s{sT1}, s{sCG}, 7")
    a(f"s_add_u32 s{sSoQ}, s{sT0}, s{sT1}")
    a(f"s_mul_i32 s{sI0}, s{sLW}, 3")
    a(f"s_lshr_b32 s{sT0}, s{sLW}, 1")
    a(f"s_and_b32 s{sT0}, s{sT0}, s{sLW}")
    a(f"s_add_u32 s{sI0}, s{sI0}, s{sT0}")
    a(f"s_lshl_b32 s{sT0}, s{sI0}, 6")
    for e in range(4):
        a(f"v_add_u32 v{T[0]}, s{sT0}, v{vLane}")
        if e: a(f"v_add_u32 v{T[0]}, {64*e}, v{T[0]}")
        a(f"v_mul_u32_u24 v{T[1]}, 2341, v{T[0]}")
        a(f"v_lshrrev_b32 v{T[1]}, 16, v{T[1]}")
        a(f"v_mul_u32_u24 v{T[2]}, 28, v{T[1]}")
        a(f"v_sub_u32 v{T[2]}, v{T[0]}, v{T[2]}")
        a(f"v_mul_u32_u24 v{T[1]}, 3584, v{T[1]}")
        a(f"v_lshl_add_u32 v{vHs[e]}, v{T[2]}, 4, v{T[1]}")
    a(f"s_mul_i32 s{sSoH}, s{sCG}, 448")
    a(f"s_lshl_b32 s{sI0}, s{sI0}, 10")
    a(f"s_add_u32 s{sI0}, s{sI0}, {HOFF}")
    a(f"s_lshl_b32 s{sCC}, s{sG}, 2")
    a(f"v_lshrrev_b32 v{T[5]}, 2, v{vLane}")
    a(f"v_lshlrev_b32 v{T[5]}, 10, v{T[5]}")
    a(f"v_and_b32 v{T[6]}, 3, v{vLane}")
    a(f"v_lshl_add_u32 v{vW2}, v{T[6]}, 4, v{T[5]}")
    a(f"s_lshl_b32 s{sW2s}, s{sTB}, 3")
    a(f"s_add_u32 s{sW2s}, s{sW2s}, s{sCG}")
    a(f"s_and_b32 s{sT1}, s{sW2s}, 15")
    a(f"s_lshl_b32 s{sT1}, s{sT1}, 6")
    a(f"s_lshr_b32 s{sW2s}, s{sW2s}, 4")
    a(f"s_mul_i32 s{sW2s}, s{sW2s}, {112*1024}")
    a(f"s_add_u32 s{sW2s}, s{sW2s}, s{sT1}")
    if E("PM"): ts_mark(a, MA[0])
    a("s_waitcnt lgkmcnt(0)")
    if E("PM"): ts_mark(a, MA[1])
    srd(a, sWQ, 18, 0x80000)
    srd(a, sW1, 28, 512 * 3584)
    srd(a, sX, 16, 0x200000)

    def chunk_dma(vq, c, n):
        sl = SLOT_OF[c]
        a(f"s_lshl_b32 s{sT0}, s{sLW}, 10")
        a(f"s_add_u32 m0, s{sT0}, {sl}")
        a(f"s_lshl_b32 s{sT0}, s{sCC}, 15")
        a(f"s_add_u32 s{sT0}, s{sT0}, s{sSoQ}")
        vq.issue(f"C{c}", f"buffer_load_dwordx4 v{vQs}, s[{sWQ}:{sWQ+3}], s{sT0} offen lds")
        a(f"s_add_u32 m0, s{sI0}, {sl}")
        a(f"s_mul_i32 s{sT0}, s{sCC}, {32*3584}")
        a(f"s_add_u32 s{sT0}, s{sT0}, s{sSoH}")
        for e in range(n - 1):
            vq.issue(f"C{c}", f"buffer_load_dwordx4 v{vHs[e]}, s[{sW1}:{sW1+3}], s{sT0} offen lds")
            if e < n - 2: a("s_add_u32 m0, m0, 1024")
        a(f"s_add_u32 s{sCC}, s{sCC}, 1")
        a(f"s_and_b32 s{sCC}, s{sCC}, 15")

    def loader(role):
        L = f"{P}{role}"
        vq = VQ(a)
        n = 4 if role == 'C' else 5
        EP = int(E("EP", "0"))
        def w2_dma():
            if role != 'W': return
            srd(a, sW2, 30, 1792 * 1024)
            a(f"s_mov_b32 m0, {W2P}")
            a(f"s_mov_b32 s{sT0}, s{sW2s}")
            for i in range(7):
                vq.issue("W2", f"buffer_load_dwordx4 v{vW2}, s[{sW2}:{sW2+3}], s{sT0} offen lds")
                if i < 6:
                    a("s_add_u32 m0, m0, 1024")
                    a(f"s_add_u32 s{sT0}, s{sT0}, 16384")
        R = {'C': c8_role, 'M': mini_role, 'W': w2_role}[role](vq)
        late = {}
        if not EP:
            chunk_dma(vq, 0, n); chunk_dma(vq, 1, n)
            xpos(vq, 1)
            chunk_dma(vq, 2, n)
            w2_dma()
            chunk_dma(vq, 3, n)
            common_srds()
            R['pre']()
            if 'pre2' in R: R['pre2']()
        else:
            chunk_dma(vq, 0, n); chunk_dma(vq, 1, n)
            common_srds()
            R['pre']()
            if EP == 1:
                late[0] = [lambda: chunk_dma(vq, 2, n), lambda: xpos(vq, 1)]
                late[1] = [lambda: chunk_dma(vq, 3, n), w2_dma]
                if 'pre2' in R: late[2] = [R['pre2']]
            elif EP == 2:
                late[0] = [lambda: chunk_dma(vq, 2, n), lambda: chunk_dma(vq, 3, n)]
                late[1] = [lambda: xpos(vq, 1), w2_dma]
                if 'pre2' in R: late[2] = [R['pre2']]
            elif EP == 3:
                late[0] = [lambda: chunk_dma(vq, 2, n), lambda: xpos(vq, 1), lambda: chunk_dma(vq, 3, n), w2_dma]
                if 'pre2' in R: late[1] = [R['pre2']]
        if E("PM"): ts_mark(a, MA[2])
        vq.wait("C0")
        if E("PM"): ts_mark(a, MA[3])
        a("s_barrier")
        if not MARKC: ts_mark(a, MA[0])
        for c in range(16):
            R['work1'](c)
            for fn in late.get(c, []): fn()
            for k in ISS[c]: chunk_dma(vq, k, n)
            if c == CCHK + 1: b_issue(vq)
            if c == CSET: b_setup()
            R['work2'](c)
            if c == 15: break
            vq.wait(f"C{c+1}")
            R['endit'](c)
            a("s_waitcnt lgkmcnt(0)")
            a("s_barrier")
            if MARKC:
                if c in MARKC: ts_mark(a, MA[MARKC.index(c)])
            elif c == CCHK: ts_mark(a, MA[1])
        if not MARKC: ts_mark(a, MA[2])
        R['post']()
        to_phase_b(vq)

    nop = lambda *x: None
    def c8_role(vq):
        vA = [26, 27, 28, 29]; vB8 = [236 + i for i in range(8)]
        AFc = [32, 36]; BFc = [40, 44]; CACC = 64
        def pre():
            a(f"v_lshrrev_b32 v{T[0]}, 5, v{vLane}")
            a(f"v_and_b32 v{T[1]}, 31, v{vLane}")
            a(f"v_and_b32 v{T[2]}, 15, v{T[1]}")
            a(f"v_xor_b32 v{T[2]}, v{T[2]}, v{T[0]}")
            a(f"v_lshlrev_b32 v{T[2]}, 4, v{T[2]}")
            a(f"v_lshl_add_u32 v{vB8[0]}, v{T[1]}, 8, v{T[2]}")
            a(f"s_lshl_b32 s{sT0}, s{sLW}, 13")
            a(f"v_add_u32 v{vB8[0]}, s{sT0}, v{vB8[0]}")
            for i in range(1, 8): a(f"v_xor_b32 v{vB8[i]}, {32*i}, v{vB8[0]}")
            a(f"v_bfe_u32 v{T[2]}, v{vLane}, 2, 2")
            a(f"v_lshl_add_u32 v{T[3]}, v{T[0]}, 3, v{T[2]}")
            a(f"v_bfe_u32 v{T[4]}, v{vLane}, 4, 1")
            a(f"v_lshlrev_b32 v{T[4]}, 5, v{T[4]}")
            a(f"v_and_b32 v{T[5]}, 3, v{vLane}")
            a(f"v_lshl_add_u32 v{T[4]}, v{T[5]}, 3, v{T[4]}")
            a(f"v_mul_u32_u24 v{vA[0]}, 448, v{T[3]}")
            a(f"v_add_u32 v{vA[0]}, v{vA[0]}, v{T[4]}")
            a(f"v_add_u32 v{vA[0]}, {HOFF + 6*64}, v{vA[0]}")
            for r in range(16): a(f"v_mov_b32 v{CACC+r}, 0")
        def work1(c):
            a(f"v_add_u32 v{vA[1]}, {SLOT_OF[c]}, v{vA[0]}")
            for ksl in range(2):
                for t in range(2):
                    a(f"ds_read_b64_tr_b16 {r2(AFc[ksl]+2*t)}, v{vA[1]} offset:{ksl*16*448 + t*4*448}")
                a(f"ds_read_b128 {r4(BFc[ksl])}, v{vB8[2*(c&3)+ksl]} offset:{(c>>2)*16384}")
        def work2(c):
            a("s_waitcnt lgkmcnt(3)")
            a(f"v_mfma_f32_32x32x16_bf16 {r16(CACC)}, {r4(AFc[0])}, {r4(BFc[0])}, {r16(CACC)}")
            a("s_waitcnt lgkmcnt(0)")
            a(f"v_mfma_f32_32x32x16_bf16 {r16(CACC)}, {r4(AFc[1])}, {r4(BFc[1])}, {r16(CACC)}")
        def post():
            a(f"s_lshl_b32 s{sT0}, s{sTB}, 1")
            a(f"s_add_u32 s{sT0}, s{sT0}, s{sLW}")
            a(f"s_mul_i32 s{sT0}, s{sT0}, 112")
            a(f"s_mul_i32 s{sT1}, s{sCG}, 14")
            a(f"s_add_u32 s{sT0}, s{sT0}, s{sT1}")
            a(f"s_lshl_b32 s{sT0}, s{sT0}, 10")
            a(f"s_add_u32 s{sT0}, s{sT0}, {WS_HF + 12*1024}")
            for f in range(2): store_frag('H', CACC + 8 * f, 32 + 4 * f, sT0, f * 1024, vq)
        return dict(pre=pre, work1=work1, work2=work2, endit=nop, post=post)

    def mini_role(vq):
        vXa = [26, 27, 28, 29]; vWm, vGm, vWt, vGt = 30, 31, 64, 65
        XF = [128 + 4 * j for j in range(4)]; WF = [144 + 4 * j for j in range(4)]; GF = [160 + 4 * j for j in range(4)]
        D = 56; DG = 60
        L = f"{P}M"
        def pre():
            a(f"v_and_b32 v{T[0]}, 15, v{vLane}")
            a(f"v_lshrrev_b32 v{T[1]}, 4, v{vLane}")
            a(f"v_xor_b32 v{T[2]}, v{T[0]}, v{T[1]}")
            a(f"v_lshlrev_b32 v{T[2]}, 4, v{T[2]}")
            a(f"v_lshl_add_u32 v{vXa[0]}, v{T[0]}, 8, v{T[2]}")
            a(f"s_lshl_b32 s{sT0}, s{sTT}, 12")
            a(f"v_add_u32 v{vXa[0]}, s{sT0}, v{vXa[0]}")
            for j in range(1, 4): a(f"v_xor_b32 v{vXa[j]}, {64*j}, v{vXa[0]}")
            a(f"v_lshrrev_b32 v{T[2]}, 1, v{T[1]}")
            a(f"v_lshlrev_b32 v{T[2]}, 4, v{T[2]}")
            a(f"v_and_b32 v{T[3]}, 1, v{T[1]}")
            a(f"v_lshl_add_u32 v{T[2]}, v{T[3]}, 2, v{T[2]}")
            a(f"v_lshrrev_b32 v{T[3]}, 2, v{T[0]}")
            a(f"v_add_u32 v{T[2]}, v{T[2]}, v{T[3]}")
            a(f"v_lshlrev_b32 v{T[2]}, 5, v{T[2]}")
            a(f"v_and_b32 v{T[3]}, 3, v{T[0]}")
            a(f"v_lshl_add_u32 v{T[2]}, v{T[3]}, 3, v{T[2]}")
            a(f"v_add_u32 v{vWm}, {KVW}, v{T[2]}")
            a(f"v_lshlrev_b32 v{vGm}, 4, v{T[1]}")
            a(f"v_add_u32 v{vGm}, {GATE}, v{vGm}")
            for r in range(8): a(f"v_mov_b32 v{D+r}, 0")
        def work1(c): pass
        def work2(c):
            ps = [p for p in range(4) if MINI_C[p] == c]
            for p in ps:
                a(f"s_add_u32 s{sT0}, s{sG}, {p}")
                a(f"s_and_b32 s{sT0}, s{sT0}, 3")
                a(f"s_lshl_b32 s{sT1}, s{sT0}, 12")
                a(f"v_add_u32 v{vWt}, s{sT1}, v{vWm}")
                a(f"s_lshl_b32 s{sT1}, s{sT0}, 8")
                a(f"v_add_u32 v{vGt}, s{sT1}, v{vGm}")
                for j in range(4):
                    a(f"ds_read_b128 {r4(XF[j])}, v{vXa[j]} offset:{p*16384}")
                    for t in range(2):
                        a(f"ds_read_b64_tr_b16 {r2(WF[j]+2*t)}, v{vWt} offset:{j*1024 + t*256}")
                    a(f"ds_read_b128 {r4(GF[j])}, v{vGt} offset:{j*64}")
                a("s_waitcnt lgkmcnt(0)")
                a(f"s_cmp_eq_u32 s{sTYPE}, 0")
                a(f"s_cbranch_scc0 {L}_V{p}")
                for j in range(4):
                    a(f"v_mfma_f32_16x16x32_bf16 {r4(D)}, {r4(WF[j])}, {r4(XF[j])}, {r4(D)}")
                    a(f"v_mfma_f32_16x16x32_bf16 {r4(DG)}, {r4(GF[j])}, {r4(XF[j])}, {r4(DG)}")
                a(f"s_branch {L}_S{p}")
                a.label(f"{L}_V{p}")
                for j in range(4):
                    a(f"v_mfma_f32_16x16x32_bf16 {r4(D)}, {r4(XF[j])}, {r4(WF[j])}, {r4(D)}")
                a.label(f"{L}_S{p}")
                if p == 3: fin()
        def fin():
            Ee = 32
            a(f"v_and_b32 v{T[0]}, 15, v{vLane}")
            a(f"v_lshrrev_b32 v{T[1]}, 4, v{vLane}")
            a(f"v_cvt_pk_bf16_f32 v{Ee}, v{D}, v{D+1}")
            a(f"v_cvt_pk_bf16_f32 v{Ee+1}, v{D+2}, v{D+3}")
            a(f"v_and_b32 v{T[2]}, 1, v{T[1]}")
            a(f"v_lshrrev_b32 v{T[3]}, 1, v{T[1]}")
            a(f"v_lshlrev_b32 v{T[3]}, 3, v{T[3]}")
            a(f"v_lshl_add_u32 v{T[3]}, v{T[0]}, 4, v{T[3]}")
            a(f"s_lshl_b32 s{sT0}, s{sTB}, 1")
            a(f"s_lshr_b32 s{sT1}, s{sTT}, 1")
            a(f"s_add_u32 s{sT0}, s{sT0}, s{sT1}")
            a(f"s_lshl_b32 s{sT0}, s{sT0}, 10")
            a(f"s_and_b32 s{sT1}, s{sTT}, 1")
            a(f"s_lshl_b32 s{sT2}, s{sTB}, 2")
            a(f"s_add_u32 s{sT2}, s{sT2}, s{sTT}")
            a(f"s_lshl_b32 s{sT2}, s{sT2}, 2")
            for q in range(2):
                a(f"v_lshlrev_b32 v{Ee+4+2*q}, 16, v{Ee+q}")
                a(f"v_and_b32 v{Ee+5+2*q}, 0xffff0000, v{Ee+q}")
            a(f"s_cmp_eq_u32 s{sTYPE}, 0")
            a(f"s_cbranch_scc0 {L}_VST")
            a(f"v_lshl_add_u32 v{T[3]}, v{T[2]}, 9, v{T[3]}")
            a(f"s_lshl_b32 s{sT1}, s{sT1}, 8")
            a(f"s_add_u32 s{sT0}, s{sT0}, s{sT1}")
            a(f"s_add_u32 s{sT0}, s{sT0}, {WS_KF}")
            a(f"buffer_store_dwordx2 {r2(Ee)}, v{T[3]}, {W}, s{sT0} offen{SC}")
            a(f"v_mul_f32 v{Ee+8}, v{Ee+4}, v{Ee+4}")
            for k in range(1, 4): a(f"v_fmac_f32 v{Ee+8}, v{Ee+4+k}, v{Ee+4+k}")
            a(f"v_mov_b32 v{Ee+9}, v{Ee+8}")
            a(f"v_permlane32_swap_b32 v{Ee+8}, v{Ee+9}")
            a(f"v_add_f32 v{Ee+8}, v{Ee+8}, v{Ee+9}")
            a(f"v_mov_b32 v{Ee+9}, v{Ee+8}")
            a(f"v_permlane16_swap_b32 v{Ee+8}, v{Ee+9}")
            a(f"v_add_f32 v{Ee+8}, v{Ee+8}, v{Ee+9}")
            for sh in (1, 2, 4, 8):
                a(f"v_max_u32_dpp v{Ee+8}, v{Ee+8}, v{Ee+8} row_shr:{sh} row_mask:0xf bank_mask:0xf")
            a(f"v_readlane_b32 s{sT3}, v{Ee+8}, 15")
            a(f"v_mul_f32 v{DG}, {f32hex(-1.4426950408889634)}, v{DG}")
            a(f"v_exp_f32 v{DG}, v{DG}")
            a(f"v_add_f32 v{DG}, 1.0, v{DG}")
            a(f"v_rcp_f32 v{DG}, v{DG}")
            a(f"v_lshlrev_b32 v{T[4]}, 2, v{vLane}")
            a(f"s_lshl_b32 s{sT0}, s{sT2}, 4")
            a(f"s_add_u32 s{sT0}, s{sT0}, {WS_G}")
            a(f"s_add_u32 s{sT2}, s{sT2}, {WS_KMAX}")
            a("s_mov_b64 exec, 0xffff")
            a(f"buffer_store_dword v{DG}, v{T[4]}, {W}, s{sT0} offen{SC}")
            a(f"s_branch {L}_MX")
            a.label(L + "_VST")
            a(f"v_lshl_add_u32 v{T[3]}, v{T[2]}, 8, v{T[3]}")
            a(f"s_lshl_b32 s{sT1}, s{sT1}, 9")
            a(f"s_add_u32 s{sT0}, s{sT0}, s{sT1}")
            a(f"s_add_u32 s{sT1}, s{sT0}, {WS_VB}")
            a(f"s_add_u32 s{sT0}, s{sT0}, {WS_VF}")
            a(f"buffer_store_dwordx2 {r2(Ee)}, v{T[3]}, {W}, s{sT1} offen{SC}")
            for q in range(2):
                a(f"v_cvt_pkrtz_f16_f32 v{Ee+8+q}, v{Ee+4+2*q}, v{Ee+5+2*q}")
            a(f"buffer_store_dwordx2 {r2(Ee+8)}, v{T[3]}, {W}, s{sT0} offen{SC}")
            for q in range(4): a(f"v_and_b32 v{Ee+4+q}, 0x7fffffff, v{Ee+4+q}")
            a(f"v_max_u32 v{Ee+4}, v{Ee+4}, v{Ee+5}")
            a(f"v_max3_u32 v{Ee+4}, v{Ee+4}, v{Ee+6}, v{Ee+7}")
            a(f"v_mov_b32 v{Ee+5}, v{Ee+4}")
            a(f"v_permlane32_swap_b32 v{Ee+4}, v{Ee+5}")
            a(f"v_max_u32 v{Ee+4}, v{Ee+4}, v{Ee+5}")
            a(f"v_mov_b32 v{Ee+5}, v{Ee+4}")
            a(f"v_permlane16_swap_b32 v{Ee+4}, v{Ee+5}")
            a(f"v_max_u32 v{Ee+4}, v{Ee+4}, v{Ee+5}")
            for sh in (1, 2, 4, 8):
                a(f"v_max_u32_dpp v{Ee+4}, v{Ee+4}, v{Ee+4} row_shr:{sh} row_mask:0xf bank_mask:0xf")
            a(f"v_readlane_b32 s{sT3}, v{Ee+4}, 15")
            a(f"s_add_u32 s{sT2}, s{sT2}, {WS_VMAX}")
            a.label(L + "_MX")
            a("s_mov_b64 exec, 1")
            a(f"v_mov_b32 v{Ee+10}, s{sT3}")
            a(f"v_mov_b32 v{Ee+11}, 0")
            vq.q.append("MST"); vq.q.append("MST")
            vq.issue("MST", f"buffer_store_dword v{Ee+10}, v{Ee+11}, {W}, s{sT2} offen{SC}")
            a("s_mov_b64 exec, -1")
        def endit(c):
            if c == CFLAG - 1: vq.wait("MST")
        return dict(pre=pre, work1=work1, work2=work2, endit=endit, post=nop)

    def w2_role(vq):
        vR = 28; F = 32; vFl = 26; vFa = 27
        def pre():
            a(f"v_lshrrev_b32 v{T[0]}, 5, v{vLane}")
            a(f"v_bfe_u32 v{T[2]}, v{vLane}, 2, 2")
            a(f"v_lshl_add_u32 v{T[3]}, v{T[0]}, 2, v{T[2]}")
            a(f"v_lshlrev_b32 v{T[3]}, 6, v{T[3]}")
            a(f"v_bfe_u32 v{T[4]}, v{vLane}, 4, 1")
            a(f"v_lshl_add_u32 v{T[3]}, v{T[4]}, 5, v{T[3]}")
            a(f"v_and_b32 v{T[5]}, 3, v{vLane}")
            a(f"v_lshl_add_u32 v{T[3]}, v{T[5]}, 3, v{T[3]}")
            a(f"v_add_u32 v{vR}, {W2P}, v{T[3]}")
            a(f"s_lshl_b32 s{sT0}, s{sTB}, 3")
            a(f"s_add_u32 s{sT0}, s{sT0}, s{sCG}")
            a(f"s_lshl_b32 s{sT2}, s{sT0}, 5")
            a(f"s_add_u32 s{sT2}, s{sT2}, {WS_HFL}")
            a(f"s_and_b32 s{sT1}, s{sT0}, 15")
            a(f"s_mul_i32 s{sT1}, s{sT1}, 112")
            a(f"s_lshr_b32 s{sT0}, s{sT0}, 4")
            a(f"s_mul_i32 s{sT0}, s{sT0}, 7")
            a(f"s_add_u32 s{sT0}, s{sT0}, s{sT1}")
            a(f"s_lshl_b32 s{sT0}, s{sT0}, 10")
            a(f"s_add_u32 s{sM}, s{sT0}, {WS_W2F}")
            a(f"s_lshl_b32 s{sW2m}, s2, 13")
            a(f"s_add_u32 s{sW2m}, s{sW2m}, {WS_OF}")
            for r in range(4): a(f"v_mov_b32 v{F+8+r}, -1")
            for r in range(4): a(f"v_mov_b32 v{F+4+r}, 0")
        def pre2():
            a("s_mov_b64 exec, 3")
            vq.issue("WST", f"buffer_store_dwordx4 {r4(F+4)}, v{vL16}, {W}, s{sT2} offen{SC}")
            a("s_mov_b64 exec, -1")
            for i in range(8):
                vq.issue("WST", f"buffer_store_dwordx4 {r4(F+8)}, v{vL16}, {W}, s{sW2m} offen offset:{(i%4)*1024}{SC}")
                if i == 3: a(f"s_add_u32 s{sW2m}, s{sW2m}, 4096")
        def spin(tag, regs, reload_, want):
            a(f"s_mov_b32 s{sT0}, 8192")
            a.label(f"{P}{tag}")
            if len(regs) > 1:
                a(f"v_and_b32 v{regs[0]}, v{regs[0]}, v{regs[1]}")
                a(f"v_and_b32 v{regs[2]}, v{regs[2]}, v{regs[3]}")
                a(f"v_and_b32 v{regs[0]}, v{regs[0]}, v{regs[2]}")
            a(f"v_cmp_ne_u32 vcc, {want}, v{regs[0]}")
            a(f"s_cbranch_vccz {P}{tag}OK")
            a(f"s_sub_u32 s{sT0}, s{sT0}, 1")
            a(f"s_cmp_eq_u32 s{sT0}, 0")
            a(f"s_cbranch_scc1 {P}{tag}OK")
            reload_()
            a("s_waitcnt vmcnt(0)")
            a(f"s_branch {P}{tag}")
            a.label(f"{P}{tag}OK")
        PR = [32, 33, 34, 35]
        def work1(c):
            if c == CW2:
                for i in range(7):
                    for t in range(2):
                        a(f"ds_read_b64_tr_b16 {r2(F+12+4*i+2*t)}, v{vR} offset:{i*1024+t*512}")
            if c == CRD:
                vq.issue("RD", f"buffer_load_dword v{vFa}, off, s[{sDBG}:{sDBG+3}], 0{SC}")
            if c == CFLAG:
                a(f"v_mov_b32 v{vFl}, 1")
                a(f"s_and_b32 s{sT0}, s2, 63")
                a(f"s_lshl_b32 s{sT0}, s{sT0}, 4")
                a(f"s_lshr_b32 s{sT1}, s2, 6")
                a(f"s_lshl_b32 s{sT1}, s{sT1}, 10")
                a(f"s_add_u32 s{sT0}, s{sT0}, s{sT1}")
                a(f"s_add_u32 s{sT0}, s{sT0}, {WS_GFL}")
                vq.issue("FLG", f"buffer_store_dword v{vFl}, off, {W}, s{sT0}{SC}")
            if c == CPOLL:
                a(f"s_mov_b32 s{sM}, {WS_GFL}")
                for j in range(4):
                    vq.issue("POLL", f"buffer_load_dword v{PR[j]}, v{vL16}, {W}, s{sM} offen offset:{j*1024}{SC}")
        def work2(c):
            if c == CW2:
                for i in range(7):
                    a(f"s_waitcnt lgkmcnt({12-2*i})")
                    vq.issue("WST", f"buffer_store_dwordx4 {r4(F+12+4*i)}, v{vL16}, {W}, s{sM} offen{SC}")
                    a(f"s_add_u32 s{sM}, s{sM}, 1024")
        def endit(c):
            if c == CW2 - 1: vq.wait("W2")
            if c == CFLAG - 1:
                vq.wait("WST"); vq.wait("RD")
                spin("RDW", [vFa], lambda: a(f"buffer_load_dword v{vFa}, off, s[{sDBG}:{sDBG+3}], 0{SC}"), 1)
            if c == CCHK:
                vq.wait("POLL")
                def rl():
                    for j in range(4):
                        a(f"buffer_load_dword v{PR[j]}, v{vL16}, {W}, s{sM} offen offset:{j*1024}{SC}")
                spin("POLL", PR, rl, 1)
        return dict(pre=pre, pre2=pre2, work1=work1, work2=work2, endit=endit, post=nop)

    a(f"s_cmp_ge_u32 s{sW}, 6")
    a(f"s_cbranch_scc1 {P}L67")
    loader('C')
    a.label(f"{P}L67")
    a(f"s_cmp_eq_u32 s{sW}, 7")
    a(f"s_cbranch_scc1 {P}L7")
    loader('M')
    a.label(f"{P}L7")
    loader('W')

    a.label("B_ENTRY")
    vq = VQ(a); lq = LQ(a)
    vq.q += ([] if E("NOFL") or BI else ["F0.0", "F0.3", "F1.0", "F1.3"]) + ["HST"]
    dcount[0] = 4; fstep.clear()
    sW, sTB, sHG, sT0, sT1, sT2, sT3 = bW, bTB, bHG, bT0, bT1, bT2, bT3
    srd(a, sOUT, 6, 0x200000)
    srd(a, sWO, 4, 0x80000)
    km = vKM
    a(f"v_max_u32 v{km}, v{km}, v{km+1}")
    a(f"v_max3_u32 v{km}, v{km}, v{km+2}, v{km+3}")
    for sh in (1, 2, 4, 8):
        a(f"v_max_u32_dpp v{km}, v{km}, v{km} row_shr:{sh} row_mask:0xf bank_mask:0xf")
    a(f"v_max_u32_dpp v{km}, v{km}, v{km} row_bcast:15 row_mask:0xa bank_mask:0xf")
    a(f"v_readlane_b32 s{sKM}, v{km}, 31")
    a(f"v_readlane_b32 s{sVM}, v{km}, 63")
    a(f"s_lshl_b32 s{sT0}, s{sW}, 10")
    a(f"s_add_u32 s{sT0}, s{sT0}, {QX}")
    a(f"v_add_u32 v{T[0]}, s{sT0}, v{vL16}")
    a(f"s_sub_u32 s{sT0}, s{sVM}, 0x3c800000")
    a(f"s_cmp_le_u32 s{sT0}, {0x47000000 - 0x3c800000}")
    a(f"s_cselect_b32 s{sT0}, 0, 0x7f800000")
    a("s_waitcnt lgkmcnt(0)")
    a("s_barrier")
    DT = int(E("DT", "0"))
    Q2, vKb, vXW, vXR, vLW, vLR = SP, SP + 4, SP + 5, SP + 6, SP + 7, SP + 8
    O2 = X1
    lq.issue("Q", f"ds_read_b128 {r4(Q)}, v{T[0]}")
    if DT:
        assert NB == 2
        a(f"v_xor_b32 v{T[1]}, 4096, v{T[0]}") if QX % 8192 == 0 else None
        if QX % 8192:
            a(f"s_xor_b32 s{sT1}, s{sW}, 4")
            a(f"s_lshl_b32 s{sT1}, s{sT1}, 10")
            a(f"s_add_u32 s{sT1}, s{sT1}, {QX}")
            a(f"v_add_u32 v{T[1]}, s{sT1}, v{vL16}")
        lq.issue("Q2", f"ds_read_b128 {r4(Q2)}, v{T[1]}")
        a(f"s_lshl_b32 s{sT1}, s{sXB}, 12")
        a(f"v_add_u32 v{vKb}, s{sT1}, v{vL16}")
        a(f"v_lshrrev_b32 v{T[3]}, 1, v{vVi}")
        a(f"v_mul_u32_u24 v{T[3]}, s{sXB}, v{T[3]}")
        a(f"v_add_u32 v{vV}, v{vV}, v{T[3]}")
        lq.issue("K0", f"ds_read_b128 {r4(KF)}, v{vKb}")
        lq.issue("VA0", f"ds_read_b128 {r4(V0)}, v{vV}")
        lq.issue("VB0", f"ds_read_b128 {r4(V1)}, v{vV} offset:512")
        for r in range(16): a(f"v_mov_b32 v{O2+r}, 0")
        a(f"s_lshl_b32 s{sT1}, s{sW3}, 11")
        a(f"s_mul_i32 s{sT2}, s{sXB}, {131072 - 57344}")
        a(f"s_add_u32 s{sT1}, s{sT1}, s{sT2}")
        a(f"s_add_u32 s{sT1}, s{sT1}, 57344")
        a(f"v_add_u32 v{vXW}, s{sT1}, v{vL16}")
        a(f"s_lshl_b32 s{sT1}, s{sW3}, 11")
        a(f"s_sub_u32 s{sT2}, {131072 - 57344}, s{sT2}")
        a(f"s_add_u32 s{sT1}, s{sT1}, s{sT2}")
        a(f"s_add_u32 s{sT1}, s{sT1}, 57344")
        a(f"v_add_u32 v{vXR}, s{sT1}, v{vL16}")
        a(f"s_lshl_b32 s{sT1}, s{sW}, 10")
        a(f"s_add_u32 s{sT1}, s{sT1}, {L_ONES + 128}")
        a(f"v_lshlrev_b32 v{vLW}, 2, v{vLane}")
        a(f"v_add_u32 v{vLW}, s{sT1}, v{vLW}")
        a(f"v_xor_b32 v{vLR}, 4096, v{vLW}")
    else:
        lq.issue("K0", f"ds_read_b128 {r4(KF)}, v{vL16}")
        lq.issue("K1", f"ds_read_b128 {r4(V1)}, v{vL16} offset:1024")
        lq.issue("VA0", f"ds_read_b128 {r4(V0)}, v{vV}")
    lq.wait("Q")
    a(f"v_mov_b32 v{T[2]}, 0")
    for r in range(4):
        a(f"v_dot2_f32_bf16 v{T[2]}, v{Q+r}, v{Q+r}, v{T[2]}")
    a(f"v_mov_b32 v{T[5]}, v{T[2]}")
    a(f"v_permlane32_swap_b32 v{T[2]}, v{T[5]}")
    a(f"v_add_f32 v{T[2]}, v{T[2]}, v{T[5]}")
    if DT:
        lq.wait("Q2")
        a(f"v_mov_b32 v{T[3]}, 0")
        for r in range(4):
            a(f"v_dot2_f32_bf16 v{T[3]}, v{Q2+r}, v{Q2+r}, v{T[3]}")
        a(f"v_mov_b32 v{T[5]}, v{T[3]}")
        a(f"v_permlane32_swap_b32 v{T[3]}, v{T[5]}")
        a(f"v_add_f32 v{T[3]}, v{T[3]}, v{T[5]}")
        a(f"v_max_f32 v{T[2]}, v{T[2]}, v{T[3]}")
    a(f"v_mul_f32 v{T[2]}, s{sKM}, v{T[2]}")
    a(f"v_sqrt_f32 v{T[2]}, v{T[2]}")
    a(f"v_add_f32 v{T[2]}, s{sT0}, v{T[2]}")
    a(f"v_sub_f32 v{CB}, {f32hex(TBITS / 65535.0)}, v{T[2]}")
    for r in range(1, 16): a(f"v_mov_b32 v{CB+r}, v{CB}")
    if not MARKC: ts_mark(a, MA[3])

    def valu3(Sx):
        seq = []
        for k in range(10):
            if k < 8: seq.append(f"v_cvt_pknorm_u16_f32 v{Y+k}, v{Sx+2*k}, v{Sx+2*k+1}")
            if 0 <= k - 1 < 8: seq.append(f"v_add_u32 v{Y2+(k-1)%4}, v{cA}, v{Y+k-1}")
            if 0 <= k - 2 < 8: seq.append(f"v_pk_fma_f16 v{Y+k-2}, v{Y2+(k-2)%4}, v{cM}, v{Y+k-2}")
        return seq

    aux = {}
    def at(t, pos, fn): aux.setdefault(t, {}).setdefault(pos, []).append(fn)
    kd = lambda: kv_dma(vq)
    for t in (0, 1, 2, 3): at(t, 5, kd)
    for t in (8, 10, 12, 15): at(t, 5, kd)
    for t in (24, 26, 28, 31): at(t, 5, kd)
    def g_loads():
        a(f"s_lshl_b32 s{sT0}, s{sTB}, 8")
        a(f"s_add_u32 s{sT0}, s{sT0}, {WS_G}")
        a(f"s_lshl_b32 s{sT1}, s{sTS}, 7")
        a(f"s_add_u32 s{sT1}, s{sT1}, s{sT0}")
        vq.issue("G", f"buffer_load_dword v{vGT}, v{vGF}, {W}, s{sT1} offen{SC}")
        a(f"s_lshl_b32 s{sT1}, s{sXB}, 7")
        a(f"s_add_u32 s{sT1}, s{sT1}, s{sT0}")
        vq.issue("G", f"buffer_load_dword v{vGF}, v{vGF}, {W}, s{sT1} offen{SC}")
    at(20, 5, g_loads)
    def w2f_first():
        for st in (0, 1):
            for wh in (0, 3): ffn_load(vq, wh, st)
    if BI: at(int(E("UW", "4")), 5, w2f_first)
    def hflag_set():
        vq.wait("HST")
        a(f"v_mov_b32 v{vHP}, 1")
        vq.issue("HFS", f"buffer_store_dword v{vHP}, off, {W}, s{sHFo}{SC}")
    at(USET, 1, hflag_set)
    def hflag_load():
        vq.issue("HFL", f"buffer_load_dword v{vHP}, v{vHA}, {W}, s{sHFi} offen{SC}")
    at(UPOLL, 1, hflag_load)
    def hflag_check():
        vq.wait("HFL")
        a(f"s_mov_b32 s{sPoll}, 8192")
        a.label("B_HP")
        a(f"v_cmp_ne_u32 vcc, 1, v{vHP}")
        a("s_cbranch_vccz B_HPOK")
        a(f"s_sub_u32 s{sPoll}, s{sPoll}, 1")
        a(f"s_cmp_eq_u32 s{sPoll}, 0")
        a("s_cbranch_scc1 B_HPOK")
        a(f"buffer_load_dword v{vHP}, v{vHA}, {W}, s{sHFi} offen{SC}")
        a("s_waitcnt vmcnt(0)")
        a("s_branch B_HP")
        a.label("B_HPOK")
        for st in range(NB):
            for wh in (1, 2): ffn_load(vq, wh, st)
    at(UCHK, 1, hflag_check)
    def a_more():
        for st in range(2, NB):
            for wh in (0, 3): ffn_load(vq, wh, st)
    at(UA, 8, a_more)
    wo_n = [0]
    def wo_dma():
        i = wo_n[0]; wo_n[0] += 1
        if i == 0:
            a(f"s_lshl_b32 s{sT0}, s{sNS}, 14")
            a(f"s_lshl_b32 s{sT1}, s{sXB}, 16")
            a(f"s_add_u32 s{sT0}, s{sT0}, s{sT1}")
            a(f"s_lshl_b32 s{sT1}, s{sTS}, 13")
            a(f"s_add_u32 m0, s{sT0}, s{sT1}")
        vq.issue("WO", f"buffer_load_dwordx4 v{vWo}, s[{sWO}:{sWO+3}], s{sWoS} offen lds")
        if i < 7:
            a(f"s_add_u32 m0, m0, 1024")
            a(f"s_add_u32 s{sWoS}, s{sWoS}, 8192")
    for t in range(47, 55): at(t, 5, wo_dma)
    bars = {14: "D3V", 30: "D5V", 46: "D7V", 58: None}
    nF = 60 - F0
    fsched = {}
    for i in range(56): fsched.setdefault(F0 + (i * nF) // 56, []).append(i)

    HALFL = int(E("HALFL", "0"))
    if HALFL:
        _iss = lq.issue; _wait = lq.wait; seen = set()
        def iss2(tag, ins):
            m = re.match(r"(K|VA|VB)(\d+)$", tag)
            if m and int(m.group(2)) >= 2 and (int(m.group(2)) & 1): return
            seen.add(tag); _iss(tag, ins)
        def wait2(tag):
            m = re.match(r"(K|VA|VB)(\d+)$", tag)
            if m and int(m.group(2)) >= 2 and (int(m.group(2)) & 1): return
            _wait(tag)
        lq.issue = iss2; lq.wait = wait2
    def fw(tag):
        if tag in vq.q: vq.wait(tag)
    def ffn_mfma(i):
        if E("NOFM"): return
        st, m = i >> 2, i & 3
        buf = FBS[st % NB]
        A0, A1, B0, B1 = buf, buf + 4, buf + 8, buf + 12
        pre = st + NB < 14
        if m == 0:
            fw(f"F{st}.1")
            a(f"v_mfma_f32_32x32x16_bf16 {r16(acc(0))}, {r4(A0)}, {r4(B0)}, {r16(acc(0))}")
        elif m == 1:
            fw(f"F{st}.2")
            a(f"v_mfma_f32_32x32x16_bf16 {r16(acc(2))}, {r4(A0)}, {r4(B1)}, {r16(acc(2))}")
            if pre: ffn_load(vq, 0, st + NB)
        elif m == 2:
            fw(f"F{st}.3")
            a(f"v_mfma_f32_32x32x16_bf16 {r16(acc(1))}, {r4(A1)}, {r4(B0)}, {r16(acc(1))}")
            if pre: ffn_load(vq, 1, st + NB)
        else:
            a(f"v_mfma_f32_32x32x16_bf16 {r16(acc(3))}, {r4(A1)}, {r4(B1)}, {r16(acc(3))}")
            if pre:
                ffn_load(vq, 2, st + NB); ffn_load(vq, 3, st + NB)

    def unit(t):
        x = t & 1; y = 1 - x
        Sx, Sy = S[x], S[y]
        tl = t & 7
        seq = valu3(Sx)
        if t in bars:
            if bars[t]: vq.wait(bars[t])
            a("s_barrier")
        fl = list(fsched.get(t, []))
        def slot0():
            if t > 0:
                lq.wait(f"VB{t-1}")
                a(f"v_mfma_f32_32x32x16_f16 {r16(O)}, {r4(V1)}, {r4(Y+4)}, {r16(O)}")
                lq.issue(f"VB{t}", f"ds_read_b128 {r4(V1)}, v{vV} offset:{tl*1024+512}")
            if len(fl) > 1: ffn_mfma(fl.pop(0))
        def slot1():
            if t == 0:
                lq.wait("K1")
                a(f"v_mfma_f32_32x32x16_bf16 {r16(Sy)}, {r4(V1)}, {r4(Q)}, {r16(CB)}")
                lq.issue("VB0", f"ds_read_b128 {r4(V1)}, v{vV} offset:512")
                lq.issue("K2", f"ds_read_b128 {r4(KF)}, v{vL16} offset:2048")
            elif t < 63:
                lq.wait(f"K{t+1}")
                a(f"v_mfma_f32_32x32x16_bf16 {r16(Sy)}, {r4(KF)}, {r4(Q)}, {r16(CB)}")
                if t + 2 <= 63: lq.issue(f"K{t+2}", f"ds_read_b128 {r4(KF)}, v{vL16} offset:{(t+2)*1024}")
        def slot2():
            while fl: ffn_mfma(fl.pop(0))
            if t >= 60:
                k = t - 60
                for qd in range(2 * k, 2 * k + 2):
                    i, rq = qd >> 2, qd & 3
                    lq.issue("RW", f"ds_write_b128 v{vRW}, {r4(acc(2+i)+4*rq)} offset:{i*4096+rq*1024}")
        def slot3():
            lq.wait(f"VA{t}")
            a(f"v_mfma_f32_32x32x16_f16 {r16(O)}, {r4(V0)}, {r4(Y)}, {r16(O)}")
            if t < 63:
                if (t + 1) & 7 == 0: a(f"v_add_u32 v{vV}, v{vVi}, v{vV}")
                lq.issue(f"VA{t+1}", f"ds_read_b128 {r4(V0)}, v{vV} offset:{((t+1)&7)*1024}")
        slots = [slot0, slot1, slot2, slot3]
        mi = 0
        for i, s_ in enumerate(seq):
            for fn in aux.get(t, {}).get(i, []): fn()
            while mi < 4 and POS[mi] == i:
                slots[mi](); mi += 1
            a(s_)
        while mi < 4:
            slots[mi](); mi += 1

    Qs, Os = [Q2, Q], [O2, O]
    def uoff(k): return ((k >> 2) * 8 + (k & 3)) * 1024
    def unit_dt(t):
        x = t & 1; y = 1 - x
        Sx, Sy = S[x], S[y]
        seq = valu3(Sx)
        if t in bars:
            if bars[t]: vq.wait(bars[t])
            a("s_barrier")
        fl = list(fsched.get(t, []))
        def slot0():
            if t > 0:
                kp = (t - 1) >> 1
                if (t - 1) & 1 == 0: lq.wait(f"VB{kp}")
                a(f"v_mfma_f32_32x32x16_f16 {r16(Os[(t-1)&1])}, {r4(V1)}, {r4(Y+4)}, {r16(Os[(t-1)&1])}")
                if (t - 1) & 1: lq.issue(f"VB{kp+1}", f"ds_read_b128 {r4(V1)}, v{vV} offset:{((kp+1)&3)*1024+512}")
            if len(fl) > 1: ffn_mfma(fl.pop(0))
        def slot1():
            if t < 63:
                kn = (t + 1) >> 1
                if (t + 1) & 1 == 0: lq.wait(f"K{kn}")
                a(f"v_mfma_f32_32x32x16_bf16 {r16(Sy)}, {r4(KF)}, {r4(Qs[(t+1)&1])}, {r16(CB)}")
                if (t + 1) & 1 and kn + 1 <= 31: lq.issue(f"K{kn+1}", f"ds_read_b128 {r4(KF)}, v{vKb} offset:{uoff(kn+1)}")
        def slot2():
            while fl: ffn_mfma(fl.pop(0))
            if t >= 62:
                i = t - 62
                for rq in range(4):
                    lq.issue("RW", f"ds_write_b128 v{vRW}, {r4(acc(2+i)+4*rq)} offset:{i*4096+rq*1024}")
            if t == 63:
                for j in range(2): lq.issue("XW", f"ds_write_b128 v{vXW}, {r4(O2+4*j)} offset:{j*1024}")
                lq.issue("XW", f"ds_write_b32 v{vLW}, v{O2+8}")
        def slot3():
            k = t >> 1
            if t & 1 == 0: lq.wait(f"VA{k}")
            a(f"v_mfma_f32_32x32x16_f16 {r16(Os[x])}, {r4(V0)}, {r4(Y)}, {r16(Os[x])}")
            if t & 1 and k + 1 <= 31:
                if (k + 1) & 3 == 0: a(f"v_add_u32 v{vV}, v{vVi}, v{vV}")
                lq.issue(f"VA{k+1}", f"ds_read_b128 {r4(V0)}, v{vV} offset:{((k+1)&3)*1024}")
        slots = [slot0, slot1, slot2, slot3]
        mi = 0
        for i, s_ in enumerate(seq):
            for fn in aux.get(t, {}).get(i, []): fn()
            while mi < 4 and POS[mi] == i:
                slots[mi](); mi += 1
            a(s_)
        while mi < 4:
            slots[mi](); mi += 1
    if DT: bars = {14: "D3V", 30: "D5V", 46: "D7V", 62: None}
    lq.wait("K0")
    a(f"v_mfma_f32_32x32x16_bf16 {r16(S[0])}, {r4(KF)}, {r4(Qs[0] if DT else Q)}, {r16(CB)}")
    for t in range(64):
        if BM and t in BM: ts_mark(a, MK[BM.index(t)])
        (unit_dt if DT else unit)(t)
    if not BM: ts_mark(a, MK[0])
    if not DT: lq.wait("VB63")
    a(f"v_mfma_f32_32x32x16_f16 {r16(O)}, {r4(V1)}, {r4(Y+4)}, {r16(O)}")
    if DT:
        a("s_waitcnt lgkmcnt(0)")
        a("s_barrier")
        for j in range(2): a(f"ds_read_b128 {r4(S[0]+4*j)}, v{vXR} offset:{j*1024}")
        a(f"ds_read_b32 v{S[0]+8}, v{vLR}")
        lq.q.clear()
    a(f"v_lshrrev_b32 v{T[0]}, 5, v{vLane}")
    a(f"v_bfe_u32 v{T[1]}, v{vLane}, 2, 2")
    a(f"v_lshl_add_u32 v{T[0]}, v{T[0]}, 2, v{T[1]}")
    a(f"v_lshlrev_b32 v{T[0]}, 7, v{T[0]}")
    a(f"v_bfe_u32 v{T[1]}, v{vLane}, 3, 1")
    a(f"v_lshl_add_u32 v{T[0]}, v{T[1]}, 6, v{T[0]}")
    a(f"v_bfe_u32 v{T[1]}, v{vLane}, 4, 1")
    a(f"v_lshl_add_u32 v{T[0]}, v{T[1]}, 5, v{T[0]}")
    a(f"v_and_b32 v{T[1]}, 3, v{vLane}")
    a(f"v_lshl_add_u32 v{T[0]}, v{T[1]}, 3, v{T[0]}")
    a(f"s_lshl_b32 s{sT0}, s{sNS}, 14")
    a(f"s_lshl_b32 s{sT1}, s{sXB}, 16")
    a(f"s_add_u32 s{sT0}, s{sT0}, s{sT1}")
    a(f"s_lshl_b32 s{sT1}, s{sNS}, 6")
    a(f"v_add_u32 v{T[0]}, s{sT0}, v{T[0]}")
    a(f"v_xor_b32 v{T[0]}, s{sT1}, v{T[0]}")
    a(f"v_xor_b32 v{T[1]}, 64, v{T[0]}")
    vq.wait("WO")
    if DT:
        a("s_waitcnt lgkmcnt(0)")
        for r in range(9): a(f"v_add_f32 v{O+r}, v{O+r}, v{S[0]+r}")
    a(f"v_mov_b32 v{V1}, v{O+8}")
    a(f"v_subrev_u32 v{T[2]}, {LMIN_BITS}, v{V1}")
    a(f"v_cmp_gt_u32 vcc, {0x7f800000 - LMIN_BITS}, v{T[2]}")
    a("s_cmp_eq_u64 vcc, -1")
    a("s_cbranch_scc0 B_SLOW")
    a.label("B_NORM")
    a(f"v_rcp_f32 v{V1}, v{V1}")
    a(f"v_mul_f32 v{V1}, v{V1}, v{vGF}")
    for r in range(8): a(f"v_mul_f32 v{O+r}, v{O+r}, v{V1}")
    for r in range(4): a(f"v_cvt_pk_bf16_f32 v{Y+r}, v{O+2*r}, v{O+2*r+1}")
    a(f"buffer_store_dwordx4 {r4(Y)}, v{vL16}, {W}, s{sT3} offen sc1")
    OFR = [FB + 4 * i for i in range(8)]
    def of_loads(lo, hi, pol="sc1"):
        for i in range(lo, hi):
            a(f"buffer_load_dwordx4 {r4(OFR[i])}, v{vL16}, {W}, s{sOf if i < 4 else sT2} offen offset:{(i%4)*1024} {pol}")
    a(f"s_add_u32 s{sT2}, s{sOf}, 4096")
    a("s_waitcnt lgkmcnt(0)")
    a("s_barrier")
    OFE = int(E("OFE") or 1)
    if OFE == 1: of_loads(0, 8)
    for i in range(2):
        for rq in range(4):
            a(f"ds_read_b128 {r4(S[0]+16*i+4*rq)}, v{vRR} offset:{i*4096+rq*1024}")
    WOA = [acc(2) + 4 * i for i in range(8)]
    WOB = [X1 + 4 * i for i in range(4)] + [SP + 4 * i for i in range(4)]
    a(f"v_sub_f32 v{vGT}, 1.0, v{vGT}")
    for h in range(8):
        for t in range(2):
            a(f"ds_read_b64_tr_b16 {r2(WOA[h]+2*t)}, v{T[0]} offset:{h*2048+t*1024}")
        if h == 3:
            a("s_waitcnt lgkmcnt(8)")
            if OFE == 2: of_loads(0, 8)
            for r in range(32):
                a(f"v_add_f32 v{ACC+r}, v{ACC+r}, v{S[0]+r}")
    for h in range(8):
        for t in range(2):
            a(f"ds_read_b64_tr_b16 {r2(WOB[h]+2*t)}, v{T[1]} offset:{h*2048+t*1024}")
    for r in range(32):
        a(f"v_mul_f32 v{ACC+r}, v{ACC+r}, v{vGT}")
    a(f"s_mul_i32 s{sT0}, s{sKQ}, {F2}")
    a(f"s_lshl_b32 s{sT1}, s{sTS}, 10")
    a(f"s_add_u32 s{sT0}, s{sT0}, s{sT1}")
    a(f"s_mul_i32 s{sT1}, s{sNS}, {4*CS}")
    a(f"s_add_u32 s{sT1}, s{sT1}, s{sT0}")
    a(f"v_add_u32 v{T[2]}, s{sT1}, v{vL16}")
    a(f"s_xor_b32 s{sT1}, s{sNS}, 1")
    a(f"s_mul_i32 s{sT1}, s{sT1}, {4*CS}")
    a(f"s_add_u32 s{sT1}, s{sT1}, s{sT0}")
    a(f"v_add_u32 v{T[3]}, s{sT1}, v{vL16}")
    a(f"v_and_b32 v{T[4]}, 7, v{vLane}")
    a(f"v_lshrrev_b32 v{T[5]}, 3, v{vLane}")
    a(f"v_mul_u32_u24 v{T[6]}, {CS}, v{T[4]}")
    a(f"v_lshl_add_u32 v{T[6]}, v{T[5]}, 4, v{T[6]}")
    a(f"s_lshl_b32 s{sT0}, s{sXB}, 10")
    a(f"s_lshl_b32 s{sT1}, s{sW3}, 7")
    a(f"s_add_u32 s{sT0}, s{sT0}, s{sT1}")
    a(f"v_add_u32 v{T[6]}, s{sT0}, v{T[6]}")
    a(f"v_add_u32 v{T[7]}, {2*F2}, v{T[6]}")
    a(f"v_lshlrev_b32 v{T[5]}, 10, v{T[5]}")
    a(f"v_lshl_add_u32 v{T[5]}, v{T[4]}, 4, v{T[5]}")
    a(f"s_lshl_b32 s{sT0}, s{sTB}, 16")
    a(f"s_lshl_b32 s{sT1}, s{sW}, 13")
    a(f"s_add_u32 s{sT0}, s{sT0}, s{sT1}")
    a(f"s_lshl_b32 s{sT1}, s{sHG}, 7")
    a(f"s_add_u32 s{sT3}, s{sT0}, s{sT1}")
    a("s_waitcnt lgkmcnt(0)")
    a("s_barrier")
    if not BM: ts_mark(a, MK[1])
    if OFE == 0 or OFE == 3: of_loads(0, 8, E("OFP", "sc1"))
    for g in range(4):
        a(f"s_mov_b32 s{sPoll}, 4096")
        a(f"s_waitcnt vmcnt({6 - 2*g})")
        a.label(f"B_POLL{g}")
        rr = [OFR[i] + k for i in (2 * g, 2 * g + 1) for k in range(4)]
        a(f"v_max_u32 v{T[0]}, v{rr[0]}, v{rr[1]}")
        for k in range(2, 8, 2):
            a(f"v_max3_u32 v{T[0]}, v{rr[k]}, v{rr[k+1]}, v{T[0]}")
        a(f"v_cmp_eq_u32 vcc, -1, v{T[0]}")
        a(f"s_cbranch_vccz B_GO{g}")
        a(f"s_sub_u32 s{sPoll}, s{sPoll}, 1")
        a(f"s_cmp_eq_u32 s{sPoll}, 0")
        a(f"s_cbranch_scc1 B_GO{g}")
        if OFE == 0:
            of_loads(2 * g, 2 * g + 2)
            a("s_waitcnt vmcnt(0)")
        else:
            of_loads(2 * g, 8)
            a(f"s_waitcnt vmcnt({6 - 2*g})")
        a(f"s_branch B_POLL{g}")
        a.label(f"B_GO{g}")
        for i in (2 * g, 2 * g + 1):
            a(f"v_mfma_f32_32x32x16_bf16 {r16(acc(0))}, {r4(WOA[i])}, {r4(OFR[i])}, {r16(acc(0))}")
            a(f"v_mfma_f32_32x32x16_bf16 {r16(acc(1))}, {r4(WOB[i])}, {r4(OFR[i])}, {r16(acc(1))}")
    if not BM: ts_mark(a, MK[2])
    for i in range(2):
        for rq in range(4):
            a(f"ds_write_b128 v{T[2+i]}, {r4(acc(i)+4*rq)} offset:{rq*CS}")
    a("s_waitcnt lgkmcnt(0)")
    a("s_barrier")
    R = S[0]
    for kq in range(4):
        base = T[6] if kq < 2 else T[7]
        for h in range(2):
            a(f"ds_read_b128 {r4(R+(kq*2+h)*4)}, v{base} offset:{(kq&1)*F2+h*512}")
    a("s_waitcnt lgkmcnt(4)")
    for k in range(8): a(f"v_add_f32 v{R+k}, v{R+k}, v{R+8+k}")
    a("s_waitcnt lgkmcnt(0)")
    for k in range(8): a(f"v_add_f32 v{R+16+k}, v{R+16+k}, v{R+24+k}")
    for k in range(8): a(f"v_add_f32 v{R+k}, v{R+k}, v{R+16+k}")
    for k in range(4): a(f"v_cvt_pk_bf16_f32 v{Y+k}, v{R+2*k}, v{R+2*k+1}")
    a(f"buffer_store_dwordx4 {r4(Y)}, v{T[5]}, s[{sOUT}:{sOUT+3}], s{sT3} offen")
    if not BM: ts_mark(a, MK[3])
    if TS: a("s_waitcnt lgkmcnt(0)")
    ts_end(a, 0, sWS, sW, MA)
    if TS:
        a("s_mov_b64 exec, -1")
        for i in range(4): a(f"v_mov_b32 v{i}, s{MK[i]}")
        a(f"s_add_u32 s4, s4, 0x20000")
        a("s_mov_b64 exec, 1")
        a(f"buffer_store_dwordx4 v[0:3], v8, s[{sWS}:{sWS+3}], s4 offen offset:16")
    a("s_endpgm")

    a.label("B_SLOW")
    M = T[2]
    CI = 65535.0 / 1024.0
    a(f"v_mov_b32 v{M}, 0xff800000")
    a(f"s_mov_b32 s{sT0}, {WS_KF}")
    a(f"s_mov_b32 s{sCnt}, 64")
    a.label("B_SL1")
    a(f"buffer_load_dwordx4 {r4(KF)}, v{vL16}, {W}, s{sT0} offen{SC}")
    a(f"s_add_u32 s{sT0}, s{sT0}, 1024")
    a("s_waitcnt vmcnt(0)")
    a(f"v_mfma_f32_32x32x16_bf16 {r16(S[0])}, {r4(KF)}, {r4(Q)}, 0")
    for r in range(0, 16, 2):
        a(f"v_max3_f32 v{M}, v{S[0]+r}, v{S[0]+r+1}, v{M}")
    a(f"s_sub_u32 s{sCnt}, s{sCnt}, 1")
    a(f"s_cmp_lg_u32 s{sCnt}, 0")
    a("s_cbranch_scc1 B_SL1")
    a(f"v_mov_b32 v{T[3]}, v{M}")
    a(f"v_permlane32_swap_b32 v{M}, v{T[3]}")
    a(f"v_max_f32 v{M}, v{M}, v{T[3]}")
    a(f"v_mul_f32 v{M}, {f32hex(-CI)}, v{M}")
    a(f"v_mov_b32 v{T[3]}, {f32hex(CI)}")
    a(f"v_and_b32 v{T[4]}, 15, v{vLane}")
    a(f"v_lshlrev_b32 v{T[4]}, 4, v{T[4]}")
    a(f"v_lshrrev_b32 v{T[5]}, 5, v{vLane}")
    a(f"v_lshl_add_u32 v{T[4]}, v{T[5]}, 8, v{T[4]}")
    a(f"v_and_b32 v{T[5]}, 16, v{vLane}")
    a(f"v_cmp_eq_u32 s[40:41], 0, v{T[5]}")
    a(f"v_mov_b32 v{T[5]}, 0x3f803f80")
    for r in range(16): a(f"v_mov_b32 v{O+r}, 0")
    a(f"s_mov_b32 s{sT0}, {WS_KF}")
    a(f"s_mov_b32 s{sT1}, {WS_VB}")
    a(f"s_mov_b32 s{sCnt}, 64")
    a.label("B_SL2")
    a(f"buffer_load_dwordx4 {r4(KF)}, v{vL16}, {W}, s{sT0} offen{SC}")
    a(f"buffer_load_dwordx4 {r4(V0)}, v{T[4]}, {W}, s{sT1} offen{SC}")
    a(f"buffer_load_dwordx4 {r4(S[1])}, v{T[4]}, {W}, s{sT1} offen offset:512{SC}")
    a(f"s_add_u32 s{sT0}, s{sT0}, 1024")
    a(f"s_add_u32 s{sT1}, s{sT1}, 1024")
    a("s_waitcnt vmcnt(0)")
    a(f"v_mfma_f32_32x32x16_bf16 {r16(S[0])}, {r4(KF)}, {r4(Q)}, 0")
    for r in range(4):
        a(f"v_cndmask_b32 v{V0+r}, v{T[5]}, v{V0+r}, s[40:41]")
        a(f"v_cndmask_b32 v{S[1]+r}, v{T[5]}, v{S[1]+r}, s[40:41]")
    for r in range(16):
        a(f"v_fma_f32 v{S[0]+r}, v{S[0]+r}, v{T[3]}, v{M}")
        a(f"v_exp_f32 v{S[0]+r}, v{S[0]+r}")
    for k in range(8):
        a(f"v_cvt_pk_bf16_f32 v{Y+k}, v{S[0]+2*k}, v{S[0]+2*k+1}")
    a(f"v_mfma_f32_32x32x16_bf16 {r16(O)}, {r4(V0)}, {r4(Y)}, {r16(O)}")
    a(f"v_mfma_f32_32x32x16_bf16 {r16(O)}, {r4(S[1])}, {r4(Y+4)}, {r16(O)}")
    a(f"s_sub_u32 s{sCnt}, s{sCnt}, 1")
    a(f"s_cmp_lg_u32 s{sCnt}, 0")
    a("s_cbranch_scc1 B_SL2")
    a(f"v_mov_b32 v{V1}, v{O+8}")
    a("s_branch B_NORM")
    a.label("M_END")
    a("s_endpgm")
    return a

if __name__ == "__main__":
    out = sys.argv[1] if len(sys.argv) > 1 else "m1.s"
    lst = bool(TS) or bool(E("LIST"))
    nm = "m_kernel" if lst else "gated_mix__grouped_kv_mqa__dense_activation_relu__prompt_kernel"
    a = gen_m(nm)
    txt = HEADER + (f"; @launch kernel={nm} " if lst else "; @launch ") + f"grid=(256,1,1) block=(512,1,1) lds={M_LDS}\n"
    txt += '.amdgcn_target "amdgcn-amd-amdhsa--gfx950"\n.text\n'
    a.fix()
    txt += kernel_header(nm) + a.text()
    txt += '.section .rodata,"a"\n' + kernel_desc(nm, 256, 256)
    open(out, "w").write(txt)
```
